```python
import torch

def _softmax(x, axis=-1):
    return torch.softmax(x, dim=axis)
def _gelu(x):
    return torch.nn.functional.gelu(x, approximate="tanh")
def _silu(x):
    return torch.nn.functional.silu(x)
def _sigmoid(x):
    return torch.sigmoid(x)
def _layernorm(x, axis=-1, eps=1e-5):
    m = x.mean(dim=axis, keepdim=True)
    v = x.var(dim=axis, keepdim=True, unbiased=False)
    return (x - m) / torch.sqrt(v + eps)
def _scatter_add(tgt, idx, src, axis=0):
    return tgt.clone().index_add_(axis, idx, src)
def _segment_sum(src, seg, n):
    out = torch.zeros((n,) + src.shape[1:], dtype=src.dtype)
    return out.index_add_(0, seg, src)
def _pad(x, pw):
    flat = tuple(v for pair in reversed(pw) for v in pair)
    return torch.nn.functional.pad(x, flat)

kernel_name = 'recurrent_scan__sliding_block_cached__glu_gated_swiglu__decode'

def setup_inputs():

    _w = (lambda a: (lambda t: t.to(torch.bfloat16) if t.is_floating_point() else t)(torch.as_tensor(a)))
    def _A_setup():
        B, Sq, D = 2, 1, 576
        Hq, Hkv, Sk, Dh = 32, 16, 32768, 128
        assert Hq % Hkv == 0, (Hq, Hkv)
        return {
            "x": _w((lambda *s: torch.randn(*s, dtype=torch.bfloat16) * 0.05)(B, Sq, D)),
            "k_cache": _w((lambda *s: torch.randn(*s, dtype=torch.bfloat16) * 3.2)(B, Hkv, Sk, Dh)),
            "v_cache": _w((lambda *s: torch.randn(*s, dtype=torch.bfloat16) * 3.2)(B, Hkv, Sk, Dh)),
            "wq": _w((lambda *s: torch.randn(*s, dtype=torch.bfloat16) * 3.2)(D, Hq * Dh) * (D ** -0.5)),
            "wo": _w((lambda *s: torch.randn(*s, dtype=torch.bfloat16) * 3.2)(Hq * Dh, D) * ((Hq * Dh) ** -0.5)),
        }
    _A_in = _A_setup()

    def _B_setup():
        B, S, D, F = 2, 1, 576, 4608
        return {
            "x": _w((lambda *s: torch.randn(*s, dtype=torch.bfloat16) * 0.05)(B, S, D)),
            "w1": _w((lambda *s: torch.randn(*s, dtype=torch.bfloat16) * 0.4)(D, F) * (2.0 / D) ** 0.5),
            "w3": _w((lambda *s: torch.randn(*s, dtype=torch.bfloat16) * 0.4)(D, F) * (2.0 / D) ** 0.5),
            "w2": _w((lambda *s: torch.randn(*s, dtype=torch.bfloat16) * 0.4)(F, D) * (2.0 / F) ** 0.5),
        }
    _B_in = _B_setup()

    return {
        "A_x": _A_in["x"],
        "A_k_cache": _A_in["k_cache"],
        "A_v_cache": _A_in["v_cache"],
        "A_wq": _A_in["wq"],
        "A_wo": _A_in["wo"],
        "B_x": _B_in["x"],
        "B_w1": _B_in["w1"],
        "B_w3": _B_in["w3"],
        "B_w2": _B_in["w2"],
    }

def reference(A_x, A_k_cache, A_v_cache, A_wq, A_wo, B_x, B_w1, B_w3, B_w2):
    def _A_ref(x, k_cache, v_cache, wq, wo):
        B, Sq, D = x.shape
        Hq, Dh = 32, 128
        Hkv, Sk = k_cache.shape[1], k_cache.shape[2]
        W = min(4096, max(256, Sk // 4))
        rep = Hq // Hkv
        q = (lambda x, *d: x.permute(*d))((x @ wq).reshape(B, Sq, Hq, Dh), 0, 2, 1, 3)
        k = (lambda x, n, axis: torch.repeat_interleave(x, n, dim=axis))(k_cache[:, :, Sk - W:, :], rep, axis=1)
        v = (lambda x, n, axis: torch.repeat_interleave(x, n, dim=axis))(v_cache[:, :, Sk - W:, :], rep, axis=1)
        scores = torch.einsum("bhqd,bhkd->bhqk", q, k) * (Dh ** -0.5)
        p = _softmax(scores, axis=-1)
        o = torch.einsum("bhqk,bhkd->bhqd", p, v)
        return (lambda x, *d: x.permute(*d))(o, 0, 2, 1, 3).reshape(B, Sq, Hq * Dh) @ wo

    def _B_ref(x, w1, w3, w2):
        gate = torch.einsum("bsd,df->bsf", x, w1)
        up = torch.einsum("bsd,df->bsf", x, w3)
        h = _silu(gate) * up
        out = torch.einsum("bsf,fd->bsd", h, w2)
        return out

    x = A_x
    xn = _layernorm(x, axis=-1)
    s = _A_ref(xn, A_k_cache, A_v_cache, A_wq, A_wo)
    g = _silu(_B_ref(xn, B_w1, B_w3, B_w2))
    return x + s * g
```

```python
import re

def regs_of(tok):
    tok = tok.strip()
    neg = tok.lstrip('-')
    m = re.fullmatch(r'(?:abs\()?([vsa])(\d+)\)?', neg)
    if m: return [(m.group(1), int(m.group(2)))]
    m = re.fullmatch(r'([vsa])\[(\d+):(\d+)\]', neg)
    if m: return [(m.group(1), i) for i in range(int(m.group(2)), int(m.group(3)) + 1)]
    if neg == 'vcc': return [('s', 106), ('s', 107)]
    if neg == 'vcc_lo': return [('s', 106)]
    if neg == 'vcc_hi': return [('s', 107)]
    if neg == 'exec': return [('s', 126), ('s', 127)]
    if neg == 'exec_lo': return [('s', 126)]
    if neg == 'exec_hi': return [('s', 127)]
    if neg == 'm0': return [('s', 124)]
    return []

TRANS = ('v_exp_f32', 'v_log_f32', 'v_rcp_f32', 'v_rsq_f32', 'v_sqrt_f32', 'v_sin_f32', 'v_cos_f32')

class Ins:
    def __init__(self, text):
        self.text = text
        t = text.split(';')[0].strip()
        self.mn = t.split()[0] if t else ''
        rest = t[len(self.mn):].strip()
        parts = [p.strip() for p in rest.split(',')] if rest else []
        ops = []
        mods = ''
        for i, p in enumerate(parts):
            if i == len(parts) - 1:
                sp = p.split()
                if sp:
                    ops.append(sp[0]); mods = ' '.join(sp[1:])
            else:
                ops.append(p)
        if 'quad_perm' in t or 'op_sel' in t or 'neg_lo' in t or 'neg_hi' in t:
            m = re.search(r'\s(quad_perm|op_sel|op_sel_hi|neg_lo|neg_hi):', t)
            head = t[len(self.mn):m.start()].strip()
            ops = [p.strip() for p in head.split(',')]
            mods = t[m.start():]
        self.ops = ops; self.mods = mods
        mn = self.mn
        self.kind = 'other'
        self.vw = set(); self.vr = set(); self.sw = set(); self.sr = set()
        self.dpp = ('_dpp' in mn) or ('quad_perm' in t) or ('row_' in t)
        R = lambda k: regs_of(ops[k]) if k < len(ops) else []
        def addr(lst):
            for r in lst: (self.vr if r[0] in 'va' else self.sr).add(r)
        def addw(lst):
            for r in lst: (self.vw if r[0] in 'va' else self.sw).add(r)
        if mn.startswith('v_mfma'):
            self.kind = 'mfma'
            addw(R(0)); self.A = set(R(1)); self.B = set(R(2)); self.C = set(R(3))
            addr(R(1)); addr(R(2)); addr(R(3))
        elif mn.startswith('v_cmp'):
            self.kind = 'valu'
            addw(R(0))
            for k in range(1, len(ops)): addr(R(k))
        elif mn.startswith('v_readfirstlane') or mn.startswith('v_readlane'):
            self.kind = 'valu'; self.lane_read = True
            addw(R(0))
            for k in range(1, len(ops)): addr(R(k))
        elif mn.startswith('v_permlane'):
            self.kind = 'valu'; self.perm = True
            addw(R(0)); addw(R(1)); addr(R(0)); addr(R(1))
        elif mn.startswith('v_'):
            self.kind = 'valu'
            addw(R(0))
            for k in range(1, len(ops)): addr(R(k))
            if mn.startswith(('v_fmac', 'v_dot2c', 'v_mac')): addr(R(0))
            if mn.startswith('v_cndmask') and len(ops) == 3: addr(regs_of('vcc'))
            if self.dpp: addr(R(0))
        elif mn.startswith('global_load_lds'):
            self.kind = 'vmem'; self.ldsdma = True
            for k in range(len(ops)): addr(R(k))
            self.sr.add(('s', 124))
        elif mn.startswith(('global_load', 'buffer_load')):
            self.kind = 'vmem'
            addw(R(0))
            for k in range(1, len(ops)): addr(R(k))
        elif mn.startswith(('global_store', 'buffer_store')):
            self.kind = 'vmem'; self.store = True
            for k in range(len(ops)): addr(R(k))
            self.wide = ('x3' in mn or 'x4' in mn)
            self.data = set(R(1)) if mn.startswith('global') else set(R(0))
        elif mn.startswith('ds_'):
            self.kind = 'ds'
            if mn.startswith('ds_read') or '_rtn' in mn or mn.startswith(('ds_bpermute', 'ds_swizzle', 'ds_permute')):
                addw(R(0))
                for k in range(1, len(ops)): addr(R(k))
            else:
                for k in range(len(ops)): addr(R(k))
        elif mn.startswith('s_'):
            self.kind = 'salu'
            if mn.startswith(('s_cmp', 's_cbranch', 's_branch', 's_waitcnt', 's_nop', 's_barrier', 's_endpgm', 's_sleep', 's_setprio', 's_bitcmp')):
                for k in range(len(ops)): addr(R(k))
            else:
                addw(R(0))
                for k in range(1, len(ops)): addr(R(k))
                if 'saveexec' in mn:
                    addw(regs_of('exec')); addr(regs_of('exec'))
        self.trans = mn.replace('_e32', '').replace('_e64', '') in TRANS
    def states(self):
        if self.mn == 's_nop':
            return int(self.ops[0], 0) + 1
        return 1

class Asm:
    def __init__(self):
        self.lines = []
        self.hist = []
        self.nops = 0
    def raw(self, s):
        self.lines.append(s)
    def label(self, name):
        self.lines.append(name + ':')
    def c(self, s):
        self.lines.append('; ' + s)
    def need(self, cur):
        req = 0
        dist = 0
        for prev in reversed(self.hist):
            n = 0
            if prev.kind == 'valu':
                pw = prev.vw
                if cur.kind == 'mfma' and pw & cur.vr: n = max(n, 2)
                if cur.kind == 'valu' and cur.dpp and pw & cur.vr: n = max(n, 2)
                if getattr(cur, 'perm', False) and pw & cur.vr: n = max(n, 2)
                if getattr(cur, 'lane_read', False) and pw & cur.vr: n = max(n, 1)
                if prev.trans and cur.kind in ('valu', 'mfma') and not cur.trans and pw & cur.vr: n = max(n, 1)
                if prev.trans and cur.kind == 'valu' and cur.trans and pw & cur.vr: n = max(n, 1)
                if prev.sw:
                    if cur.kind == 'valu' and prev.sw & cur.sr: n = max(n, 2)
                    if getattr(cur, 'lane_read', False) and prev.sw & cur.sr: n = max(n, 4)
                    if cur.kind == 'vmem' and prev.sw & cur.sr: n = max(n, 5)
                    if cur.kind == 'salu' and prev.sw & cur.sr: n = max(n, 1)
            if prev.kind == 'mfma':
                pw = prev.vw
                if cur.kind == 'mfma':
                    if pw & (cur.A | cur.B): n = max(n, 8)
                    if pw & cur.C and not (pw == cur.C): n = max(n, 6)
                    if pw & cur.vw and not (pw == cur.C): n = max(n, 8)
                elif cur.kind in ('valu', 'vmem', 'ds'):
                    if pw & (cur.vr | cur.vw): n = max(n, 8)
                    if cur.kind == 'valu' and prev.C & cur.vw: n = max(n, 3)
            if prev.kind == 'vmem' and getattr(prev, 'store', False) and prev.wide:
                if cur.kind in ('valu',) and prev.data & cur.vw: n = max(n, 2)
                if cur.kind in ('vmem', 'ds', 'mfma') and prev.data & cur.vw: n = max(n, 1)
            if prev.kind == 'salu' and ('s', 124) in prev.sw and getattr(cur, 'ldsdma', False): n = max(n, 1)
            if prev.kind == 'salu' and (('s', 126) in prev.sw or ('s', 127) in prev.sw):
                if cur.kind == 'valu' and cur.dpp: n = max(n, 1)
            req = max(req, n - dist)
            dist += prev.states()
            if dist > 12: break
        return req
    def __call__(self, text):
        for t in text.strip().split('\n'):
            t = t.strip()
            if not t: continue
            if t.endswith(':'):
                self.lines.append(t); continue
            if t.startswith(';'):
                self.lines.append(t); continue
            cur = Ins(t)
            k = self.need(cur)
            while k > 0:
                m = min(k, 16)
                nop = Ins(f's_nop {m-1}')
                self.lines.append('    ' + nop.text); self.hist.append(nop); self.nops += m
                k -= m
            self.lines.append('    ' + t)
            self.hist.append(cur)
            if len(self.hist) > 24: self.hist = self.hist[-24:]
    def flush_hist(self, nstates=0):
        pass
    def text(self):
        return '\n'.join(self.lines) + '\n'
```

```python
import sys, json
sys.path.insert(0, 'work')
from asmb import Asm

KNAME = "recurrent_scan__sliding_block_cached__glu_gated_swiglu__decode_kernel"

LDS_K  = 0
LDS_T  = 131072
LDS_Q  = LDS_T + 4608
LDS_R1 = LDS_Q + 512
LDS_R2 = LDS_R1 + 12288
LDS_M  = LDS_R2 + 8192
LDS_C  = LDS_M + 128
LDS_END = LDS_C + 64
C_WQ, C_GU, C_Q, C_M, C_L, C_V, C_O, C_LATE = [4*i for i in range(8)]

WS_QB  = 0x010000
WS_GU  = 0x060000
WS_ML  = 0x0A0000
WS_OB  = 0x0B0000
WS_FIN = 0x100000
WS_DBG = 0x200000

LOG2E = 0x3fb8aa3b
SCALE = 0x3db504f3
SPIN_MAX = 1 << 22

class Cfg:
    def __init__(self, **kw):
        self.Wk = 4; self.Wv = 4; self.extra = 2; self.trig = 16; self.rot = 1
        self.prio_w = 3; self.prio_late = 3; self.stamps = False; self.nt = " nt"
        self.spin_max = SPIN_MAX
        self.__dict__.update(kw)

def gen(cfg):
    a = Asm()
    NT = cfg.nt
    uid = [0]
    def lab(p):
        uid[0] += 1
        return f"L_{p}_{uid[0]}"

    nstamp = [0]
    def stamp(idx):
        if cfg.stamps:
            a(f"s_memrealtime s[{64+2*idx}:{65+2*idx}]")
    def dump_stamps(n):
        if not cfg.stamps: return
        a("s_waitcnt vmcnt(0) lgkmcnt(0)")
        a("s_mov_b64 exec, 1")
        a("s_lshl_b32 s28, s2, 4"); a("s_add_u32 s28, s28, s3"); a("s_lshl_b32 s28, s28, 7")
        a(f"s_add_u32 s28, s28, {WS_DBG}")
        a("v_mov_b32 v2, s28")
        for q in range(0, 16, 4):
            for e in range(4):
                a(f"v_mov_b32 v{4+e}, s{64+2*(q+e)}")
            a(f"global_store_dwordx4 v2, v[4:7], s[26:27] offset:{q*4}")
        a("s_getreg_b32 s28, hwreg(HW_REG_XCC_ID)")
        a("v_mov_b32 v4, s28")
        a("global_store_dword v2, v4, s[26:27] offset:64")

    def spin_lds(cnt_off, target, vaddr, vtmp, stmp="s29", sto="s30"):
        L = lab("spin"); D = lab("spind")
        a(f"s_mov_b32 {sto}, 0")
        a.label(L)
        a(f"ds_read_b32 {vtmp}, {vaddr} offset:{cnt_off}")
        a("s_waitcnt lgkmcnt(0)")
        a(f"v_readfirstlane_b32 {stmp}, {vtmp}")
        a(f"s_cmp_ge_u32 {stmp}, {target}")
        a(f"s_cbranch_scc1 {D}")
        a(f"s_add_u32 {sto}, {sto}, 1")
        a(f"s_cmp_lt_u32 {sto}, {cfg.spin_max}")
        a(f"s_cbranch_scc1 {L}")
        a.label(D)

    def set_exec(lo, hi):
        a(f"s_mov_b32 exec_lo, {hex(lo)}"); a(f"s_mov_b32 exec_hi, {hex(hi)}")

    def arrive_rtn(cnt_off, vaddr, vone, vtmp, sdst):
        a("s_mov_b64 exec, 1")
        a(f"ds_add_rtn_u32 {vtmp}, {vaddr}, {vone} offset:{cnt_off}")
        a("s_waitcnt lgkmcnt(0)")
        a(f"v_readfirstlane_b32 {sdst}, {vtmp}")
        a("s_mov_b64 exec, -1")

    def arrive(cnt_off, vaddr, vone):
        a("s_mov_b64 exec, 1")
        a(f"ds_add_u32 {vaddr}, {vone} offset:{cnt_off}")
        a("s_mov_b64 exec, -1")

    DPP = "row_mask:0xf bank_mask:0xf"
    def allreduce8(op, regs, tmp=None):
        for r in regs: a(f"{op}_dpp {r}, {r}, {r} quad_perm:[1,0,3,2] {DPP}")
        for r in regs: a(f"{op}_dpp {r}, {r}, {r} quad_perm:[2,3,0,1] {DPP}")
        for r in regs: a(f"{op}_dpp {r}, {r}, {r} row_half_mirror {DPP}")
    def allreduce_quad(op, regs):
        for r in regs: a(f"{op}_dpp {r}, {r}, {r} quad_perm:[1,0,3,2] {DPP}")
        for r in regs: a(f"{op}_dpp {r}, {r}, {r} quad_perm:[2,3,0,1] {DPP}")
    def allreduce_x16_x32(op, regs, tmps):
        for r, t in zip(regs, tmps): a(f"v_mov_b32 {t}, {r}")
        for r, t in zip(regs, tmps): a(f"v_permlane16_swap_b32 {r}, {t}")
        for r, t in zip(regs, tmps): a(f"{op} {r}, {r}, {t}")
        for r, t in zip(regs, tmps): a(f"v_mov_b32 {t}, {r}")
        for r, t in zip(regs, tmps): a(f"v_permlane32_swap_b32 {r}, {t}")
        for r, t in zip(regs, tmps): a(f"{op} {r}, {r}, {t}")

    def tag_consts():
        for i in range(4): a(f"s_mov_b32 s{40+i}, {hex(0x07060500+i)}")
        a("s_mov_b32 s44, 0x0c0c0400"); a("s_mov_b32 s45, 0x04000c0c"); a("s_mov_b32 s46, 0xffffff00")
    def make_tag(vE, vT, t1):
        a(f"v_add_u32 {vE}, 1, {vE}")
        a(f"s_mov_b32 s28, 0x9E3779B1")
        a(f"v_mul_lo_u32 {vT}, {vE}, s28")
        a(f"v_not_b32 {t1}, {vT}")
        a(f"v_and_b32 {t1}, 1, {t1}")
        a(f"v_lshlrev_b32 {t1}, 8, {t1}")
        a(f"v_and_b32 {vT}, 0xfffffeff, {vT}")
        a(f"v_or_b32 {vT}, {vT}, {t1}")
    def tag_insert(base, vT):
        for i in range(4): a(f"v_perm_b32 v{base+i}, v{base+i}, {vT}, s{40+i}")
    def tag_check(base, vT, vacc, t1, t2, first):
        a(f"v_perm_b32 {t1}, v{base+1}, v{base}, s44")
        a(f"v_perm_b32 {t2}, v{base+3}, v{base+2}, s45")
        if first:
            a(f"v_bitop3_b32 {vacc}, {t1}, {t2}, {vT} bitop3:0x56")
        else:
            a(f"v_bitop3_b32 {t1}, {t1}, {t2}, {vT} bitop3:0x56")
            a(f"v_or_b32 {vacc}, {vacc}, {t1}")
    def tag_strip(base):
        for i in range(4): a(f"v_and_b32 v{base+i}, s46, v{base+i}")
    def poll_loop(issue, check, vacc):
        L = lab("poll"); D = lab("polld")
        a("s_mov_b32 s30, 0")
        a.label(L)
        issue()
        a("s_waitcnt vmcnt(0)")
        check()
        a(f"v_cmp_ne_u32 vcc, 0, {vacc}")
        a(f"s_cbranch_vccz {D}")
        a("s_add_u32 s30, s30, 1")
        a(f"s_cmp_lt_u32 s30, {cfg.spin_max}")
        a(f"s_cbranch_scc1 {L}")
        a.label(D)

    a.raw(f"{KNAME}:")
    a("s_cmp_ge_u32 s2, 256")
    a("s_cbranch_scc1 L_end")
    stamp(0)
    a("s_load_dwordx16 s[4:19], s[0:1], 0")
    a("s_load_dwordx8 s[20:27], s[0:1], 64")
    a("v_lshrrev_b32 v2, 6, v0")
    a("v_and_b32 v1, 63, v0")
    a("v_readfirstlane_b32 s3, v2")
    a("v_and_b32 v3, 7, v1")
    a("v_and_b32 v4, 1, v3"); a("v_lshlrev_b32 v4, 4, v4"); a("v_mov_b32 v5, 0xffff"); a("v_lshlrev_b32 v4, v4, v5")
    a("v_lshrrev_b32 v3, 1, v3")
    for w in range(4):
        a(f"v_cmp_eq_u32 vcc, {w}, v3"); a(f"v_cndmask_b32 v{12+w}, 0, v4, vcc")
    a(f"v_mov_b32 v10, {LDS_C}")
    a("v_mov_b32 v11, 1")
    tag_consts()
    Lni = lab("noinit")
    a("s_cmp_lg_u32 s3, 0"); a(f"s_cbranch_scc1 {Lni}")
    a("v_lshlrev_b32 v3, 2, v1"); a(f"v_add_u32 v3, {LDS_C}, v3"); a("v_mov_b32 v4, 0")
    set_exec(0xffff, 0); a("ds_write_b32 v3, v4"); a("s_mov_b64 exec, -1")
    a.label(Lni)
    a("s_cmp_ge_u32 s3, 8"); a("s_cbranch_scc1 L_wts")

    vE, vT = "v16", "v17"
    vKA = [2, 3, 4, 5]; vVA = 6; vKR = [7, 8, 9, 18]; vQA = 19
    QB = 20; SB = 36; KF = 52; ACC = 84; BT = 88; VB = 96; TM = 160
    a("v_lshrrev_b32 v20, 4, v1"); a("v_and_b32 v21, 15, v1")
    a("v_lshlrev_b32 v22, 2, v20"); a("v_lshlrev_b32 v23, 8, v20")
    for r in range(4):
        a(f"v_add_u32 v24, {r}, v22"); a("v_xor_b32 v24, v24, v21"); a(f"v_lshl_add_u32 v{vKA[r]}, v24, 4, v23")
    a(f"v_lshlrev_b32 v{vVA}, 4, v1")
    a("v_lshrrev_b32 v22, 2, v21"); a("v_and_b32 v23, 3, v21")
    a("v_lshl_add_u32 v24, v23, 2, v22"); a("v_lshlrev_b32 v24, 8, v24")
    a("v_xor_b32 v25, v23, v20")
    a("s_lshl_b32 s28, s3, 14"); a("v_add_u32 v24, s28, v24")
    a("v_lshl_add_u32 v24, v25, 4, v24")
    for jj in range(4):
        a(f"v_xor_b32 v26, {jj}, v22"); a(f"v_lshl_add_u32 v{vKR[jj]}, v26, 6, v24")
    a("v_lshrrev_b32 v22, 3, v1"); a("v_and_b32 v22, 1, v22"); a("v_lshlrev_b32 v22, 8, v22")
    a(f"v_lshl_add_u32 v{vQA}, v20, 4, v22"); a(f"v_add_u32 v{vQA}, {LDS_Q}, v{vQA}")
    a(f"v_mov_b32 v{TM}, 0")
    a("s_waitcnt lgkmcnt(0)")
    a("s_lshr_b32 s28, s2, 3"); a("s_and_b32 s29, s2, 7")
    a("s_lshl_b32 s28, s28, 23"); a("s_lshl_b32 s29, s29, 17"); a("s_add_u32 s28, s28, s29"); a("s_add_u32 s28, s28, 0x700000")
    a("s_add_u32 s6, s6, s28"); a("s_addc_u32 s7, s7, 0"); a("s_add_u32 s8, s8, s28"); a("s_addc_u32 s9, s9, 0")
    a(f"s_mul_i32 s31, s2, {cfg.rot}"); a("s_add_u32 s31, s31, s3")
    a("s_lshl_b32 s37, s3, 14")
    vmq = []
    def vm_issue(tag): vmq.append(tag)
    def vm_wait(tag):
        idx = max(i for i, t in enumerate(vmq) if t == tag)
        n = len(vmq) - 1 - idx
        a(f"s_waitcnt vmcnt({n})")
    def vm_window(W):
        a(f"s_waitcnt vmcnt({W-1})")
    a(f"global_load_dword {vE}, v{TM}, s[26:27] sc1"); vm_issue("E")
    def tile_off(u):
        a(f"s_add_u32 s32, s31, {8*u}"); a("s_and_b32 s32, s32, 31"); a("s_lshl_b32 s32, s32, 12")
    nissued = [1]
    def issue_k(u, r):
        if r == 0:
            tile_off(u)
            a("s_add_u32 s34, s6, s32"); a("s_addc_u32 s35, s7, 0")
            a(f"s_add_u32 s33, s37, {4096*u}"); a("s_mov_b32 m0, s33")
        a(f"global_load_lds_dwordx4 v{vKA[r]}, s[34:35] offset:{1024*r}{NT}"); vm_issue(("k", u, r))
    def issue_v(i):
        u, r = divmod(i, 4)
        if r == 0:
            tile_off(u)
            a("s_add_u32 s38, s8, s32"); a("s_addc_u32 s39, s9, 0")
        a(f"global_load_dwordx4 v[{VB+4*i}:{VB+4*i+3}], v{vVA}, s[38:39] offset:{1024*r}{NT}"); vm_issue(("v", i))
        if i == cfg.trig - 1:
            arrive(C_V, "v10", "v11")
    kops = [(u, r) for u in range(4) for r in range(4)]
    bar_done = False
    for i, (u, r) in enumerate(kops):
        if i >= cfg.Wk: vm_window(cfg.Wk)
        issue_k(u, r)
        if i == cfg.Wk - 1:
            a("s_waitcnt lgkmcnt(0)"); a("s_barrier")
    stamp(1)
    nv = 0
    for i in range(cfg.Wk):
        vm_window(cfg.Wk); issue_v(nv); nv += 1
    vm_wait(("k", 3, 3))
    for i in range(cfg.extra):
        issue_v(nv); nv += 1
    stamp(2)
    make_tag(vE, vT, f"v{TM}")
    spin_lds(C_Q, 4, "v10", f"v{TM}")
    stamp(3)
    for jj in range(4):
        a(f"ds_read_b128 v[{QB+4*jj}:{QB+4*jj+3}], v{vQA} offset:{64*jj}")
    def kread(u):
        b = KF + 16*(u & 1)
        for jj in range(4):
            a(f"ds_read_b128 v[{b+4*jj}:{b+4*jj+3}], v{vKR[jj]} offset:{4096*u}")
    kread(0); kread(1)
    for u in range(4):
        b = KF + 16*(u & 1)
        a("s_waitcnt lgkmcnt(4)" if u < 3 else "s_waitcnt lgkmcnt(0)")
        for jj in range(4):
            c = "0" if jj == 0 else f"v[{SB+4*u}:{SB+4*u+3}]"
            a(f"v_mfma_f32_16x16x32_bf16 v[{SB+4*u}:{SB+4*u+3}], v[{b+4*jj}:{b+4*jj+3}], v[{QB+4*jj}:{QB+4*jj+3}], {c}")
        if u + 2 < 4: kread(u + 2)
    a(f"s_mov_b32 s47, {hex(SCALE)}")
    for u in range(4):
        for h in range(2):
            s0 = SB + 4*u + 2*h
            t = TM + 2*h
            a(f"v_cvt_pk_bf16_f32 v{t}, v{s0}, v{s0+1}")
            a(f"v_lshlrev_b32 v{s0}, 16, v{t}")
            a(f"v_and_b32 v{s0+1}, 0xffff0000, v{t}")
            a(f"v_mul_f32 v{s0}, s47, v{s0}")
            a(f"v_mul_f32 v{s0+1}, s47, v{s0+1}")
            a(f"v_cvt_pk_bf16_f32 v{t+1}, v{s0}, v{s0+1}")
            a(f"v_lshlrev_b32 v{s0}, 16, v{t+1}")
            a(f"v_and_b32 v{s0+1}, 0xffff0000, v{t+1}")
    a(f"v_max3_f32 v{TM}, v{SB}, v{SB+1}, v{SB+2}")
    a(f"v_max3_f32 v{TM+1}, v{SB+3}, v{SB+4}, v{SB+5}")
    a(f"v_max3_f32 v{TM+2}, v{SB+6}, v{SB+7}, v{SB+8}")
    a(f"v_max3_f32 v{TM+3}, v{SB+9}, v{SB+10}, v{SB+11}")
    a(f"v_max3_f32 v{TM}, v{TM}, v{SB+12}, v{SB+13}")
    a(f"v_max3_f32 v{TM+1}, v{TM+1}, v{SB+14}, v{SB+15}")
    a(f"v_max3_f32 v{TM}, v{TM}, v{TM+1}, v{TM+2}")
    a(f"v_max_f32 v{TM}, v{TM}, v{TM+3}")
    allreduce_x16_x32("v_max_f32", [f"v{TM}"], [f"v{TM+1}"])
    a("v_lshrrev_b32 v20, 3, v1"); a("v_and_b32 v20, 1, v20"); a("v_lshlrev_b32 v20, 5, v20")
    a(f"v_add_u32 v20, {LDS_M}, v20")
    a("s_lshl_b32 s28, s3, 2"); a("v_add_u32 v21, s28, v20")
    set_exec(0x101, 0); a(f"ds_write_b32 v21, v{TM}"); a("s_mov_b64 exec, -1")
    arrive(C_M, "v10", "v11")
    spin_lds(C_M, 8, "v10", f"v{TM+1}")
    a(f"ds_read_b128 v[{KF}:{KF+3}], v20"); a(f"ds_read_b128 v[{KF+4}:{KF+7}], v20 offset:16")
    a("s_waitcnt lgkmcnt(0)")
    a(f"v_max3_f32 v{TM}, v{KF}, v{KF+1}, v{KF+2}")
    a(f"v_max3_f32 v{TM+1}, v{KF+3}, v{KF+4}, v{KF+5}")
    a(f"v_max3_f32 v{TM}, v{TM}, v{KF+6}, v{KF+7}")
    a(f"v_max_f32 v22, v{TM}, v{TM+1}")
    a(f"s_mov_b32 s48, {hex(LOG2E)}")
    a("v_mul_f32 v23, s48, v22")
    for i in range(16):
        a(f"v_fma_f32 v{SB+i}, v{SB+i}, s48, -v23")
    for i in range(16):
        a(f"v_exp_f32 v{SB+i}, v{SB+i}")
    a(f"v_add_f32 v{TM}, v{SB}, v{SB+1}"); a(f"v_add_f32 v{TM+1}, v{SB+2}, v{SB+3}")
    for i in range(4, 16, 2):
        a(f"v_add_f32 v{TM+((i>>1)&1)}, v{TM+((i>>1)&1)}, v{SB+i}")
        a(f"v_add_f32 v{TM+((i>>1)&1)}, v{TM+((i>>1)&1)}, v{SB+i+1}")
    a(f"v_add_f32 v{TM}, v{TM}, v{TM+1}")
    for i in range(16):
        a(f"v_cvt_pk_bf16_f32 v{SB+i}, v{SB+i}, v{SB+i}")
    allreduce_x16_x32("v_add_f32", [f"v{TM}"], [f"v{TM+1}"])
    set_exec(0x101, 0); a(f"ds_write_b32 v21, v{TM} offset:64"); a("s_mov_b64 exec, -1")
    arrive_rtn(C_L, "v10", "v11", f"v{TM+1}", "s49")
    Lnoml = lab("noml")
    a("s_cmp_lg_u32 s49, 7"); a(f"s_cbranch_scc1 {Lnoml}")
    a(f"ds_read_b128 v[{KF}:{KF+3}], v20 offset:64"); a(f"ds_read_b128 v[{KF+4}:{KF+7}], v20 offset:80")
    a("s_waitcnt lgkmcnt(0)")
    a(f"v_add_f32 v{KF}, v{KF}, v{KF+1}"); a(f"v_add_f32 v{KF+2}, v{KF+2}, v{KF+3}")
    a(f"v_add_f32 v{KF+4}, v{KF+4}, v{KF+5}"); a(f"v_add_f32 v{KF+6}, v{KF+6}, v{KF+7}")
    a(f"v_add_f32 v{KF}, v{KF}, v{KF+2}"); a(f"v_add_f32 v{KF+4}, v{KF+4}, v{KF+6}")
    a(f"v_add_f32 v{KF+1}, v{KF}, v{KF+4}")
    a(f"v_mov_b32 v{KF}, v22"); a(f"v_mov_b32 v{KF+2}, 0"); a(f"v_mov_b32 v{KF+3}, 0")
    tag_insert(KF, vT)
    a("s_lshr_b32 s28, s2, 3"); a("s_and_b32 s29, s28, 15"); a("s_lshr_b32 s28, s28, 4")
    a("s_lshl_b32 s29, s29, 9"); a("s_lshl_b32 s28, s28, 7"); a("s_add_u32 s28, s28, s29")
    a("s_and_b32 s29, s2, 7"); a("s_lshl_b32 s29, s29, 4"); a("s_add_u32 s28, s28, s29"); a(f"s_add_u32 s28, s28, {WS_ML}")
    a("v_lshrrev_b32 v24, 3, v1"); a("v_and_b32 v24, 1, v24"); a("v_lshlrev_b32 v24, 8, v24"); a("v_add_u32 v24, s28, v24")
    set_exec(0x101, 0)
    a(f"global_store_dwordx4 v24, v[{KF}:{KF+3}], s[26:27] sc1"); ml_store = True
    a("s_mov_b64 exec, -1")
    a.label(Lnoml)
    stamp(4)
    for i in range(16):
        bt = BT + 4*(i & 1)
        for w in range(4):
            a(f"v_and_b32 v{bt+w}, v{SB+i}, v{12+w}")
        vm_wait(("v", i))
        c = "0" if i == 0 else f"v[{ACC}:{ACC+3}]"
        a(f"v_mfma_f32_16x16x32_bf16 v[{ACC}:{ACC+3}], v[{VB+4*i}:{VB+4*i+3}], v[{bt}:{bt+3}], {c}")
        while nv < 16 and nv - (i + 1) < cfg.Wv:
            issue_v(nv); nv += 1
    stamp(5)
    a("s_lshl_b32 s28, s3, 10"); a(f"s_add_u32 s28, s28, {LDS_R2}")
    a(f"v_add_u32 v20, s28, v{vVA}")
    a(f"ds_write_b128 v20, v[{ACC}:{ACC+3}]")
    arrive_rtn(C_O, "v10", "v11", f"v{TM}", "s49")
    a("s_cmp_lg_u32 s49, 7"); a("s_cbranch_scc1 L_att_done")
    a(f"v_add_u32 v20, {LDS_R2}, v{vVA}")
    for w in range(8):
        a(f"ds_read_b128 v[{KF+4*w}:{KF+4*w+3}], v20 offset:{1024*w}")
    a("v_lshrrev_b32 v21, 4, v1"); a("v_lshlrev_b32 v21, 7, v21")
    a("v_lshrrev_b32 v22, 3, v1"); a("v_and_b32 v22, 1, v22"); a("v_lshl_add_u32 v21, v22, 9, v21")
    a("v_and_b32 v22, 7, v1"); a("v_lshl_add_u32 v21, v22, 4, v21")
    a("s_lshl_b32 s28, s2, 10"); a(f"s_add_u32 s28, s28, {WS_OB}"); a("v_add_u32 v21, s28, v21")
    for st in (4, 2, 1):
        pass
    a("s_waitcnt lgkmcnt(6)")
    for e in range(4): a(f"v_add_f32 v{KF+e}, v{KF+e}, v{KF+4+e}")
    a("s_waitcnt lgkmcnt(4)")
    for e in range(4): a(f"v_add_f32 v{KF+8+e}, v{KF+8+e}, v{KF+12+e}")
    a("s_waitcnt lgkmcnt(2)")
    for e in range(4): a(f"v_add_f32 v{KF+16+e}, v{KF+16+e}, v{KF+20+e}")
    for e in range(4): a(f"v_add_f32 v{KF+e}, v{KF+e}, v{KF+8+e}")
    a("s_waitcnt lgkmcnt(0)")
    for e in range(4): a(f"v_add_f32 v{KF+24+e}, v{KF+24+e}, v{KF+28+e}")
    for e in range(4): a(f"v_add_f32 v{KF+16+e}, v{KF+16+e}, v{KF+24+e}")
    for e in range(4): a(f"v_add_f32 v{KF+e}, v{KF+e}, v{KF+16+e}")
    tag_insert(KF, vT)
    a(f"global_store_dwordx4 v21, v[{KF}:{KF+3}], s[26:27] sc1")
    a.label("L_att_done")
    stamp(6)
    dump_stamps(8)
    a("s_endpgm")

    a.label("L_wts")
    a(f"s_setprio {cfg.prio_w}")
    a("s_sub_u32 s36, s3, 8")
    XR = 20; EX = 30; WQD = 48; FD = 68; AC = 116; BB = 140; TP = 148; TM = 160
    a("v_lshrrev_b32 v6, 3, v1"); a("v_and_b32 v7, 7, v1"); a("v_lshlrev_b32 v7, 4, v7")
    a("v_lshl_add_u32 v2, v6, 13, v7")
    a("s_movk_i32 s28, 9216"); a("v_mad_u32_u24 v3, v6, s28, v7")
    a("s_movk_i32 s28, 1152"); a("v_mad_u32_u24 v4, v6, s28, v7")
    a("v_lshrrev_b32 v8, 5, v1"); a("v_and_b32 v9, 31, v1")
    a("v_mul_u32_u24 v18, 36, v9"); a("v_mad_u32_u24 v18, v8, s28, v18")
    a(f"v_mov_b32 v{TM}, 0")
    for e in range(4): a(f"v_mov_b32 v{WQD+16+e}, 0")
    a("s_mov_b32 s50, 0x00ff00ff"); a("s_mov_b32 s51, 0xff00ff00")
    a("s_mov_b32 s52, 0xff00ff00"); a("s_mov_b32 s53, 0xff00ff00")
    a("s_mov_b32 s54, 0xffff0000"); a("s_mov_b32 s55, 0xffff0000")
    a("s_waitcnt lgkmcnt(0)")
    a(f"global_load_dword v16, v{TM}, s[26:27] sc1")
    a(f"global_load_dwordx4 v[{XR}:{XR+3}], v18, s[4:5]")
    a(f"global_load_dwordx4 v[{XR+4}:{XR+7}], v18, s[4:5] offset:16")
    a(f"global_load_dword v{XR+8}, v18, s[4:5] offset:32")
    a("s_and_b32 s56, s2, 3"); a("s_lshr_b32 s57, s2, 2")
    a(f"s_mul_i32 s28, s56, {144*8192}"); a("s_lshl_b32 s29, s57, 7"); a("s_add_u32 s28, s28, s29")
    a("s_add_u32 s10, s10, s28"); a("s_addc_u32 s11, s11, 0")
    a("s_lshl_b32 s28, s36, 16"); a("s_add_u32 s32, s10, s28"); a("s_addc_u32 s33, s11, 0")
    for i in range(4):
        a(f"global_load_dwordx4 v[{WQD+4*i}:{WQD+4*i+3}], v2, s[32:33]{NT}")
        if i < 3:
            a(f"s_add_u32 s32, s32, {32*8192}"); a("s_addc_u32 s33, s33, 0")
    a("s_lshl_b32 s28, s36, 15"); a(f"s_add_u32 s28, s28, {128*8192}")
    a("s_add_u32 s32, s10, s28"); a("s_addc_u32 s33, s11, 0")
    set_exec(0xffffffff, 0)
    a(f"global_load_dwordx4 v[{WQD+16}:{WQD+19}], v2, s[32:33]{NT}")
    a("s_mov_b64 exec, -1")
    a("s_mul_hi_u32 s58, s2, 0x55555556"); a("s_mul_i32 s59, s58, 3"); a("s_sub_u32 s59, s2, s59")
    Lnf = lab("noffn")
    a("s_cmp_ge_u32 s2, 216"); a(f"s_cbranch_scc1 {Lnf}")
    a(f"s_mul_i32 s28, s59, {192*9216}"); a("s_lshl_b32 s29, s58, 7"); a("s_add_u32 s28, s28, s29")
    a(f"s_mul_i32 s29, s36, {8*9216}"); a("s_add_u32 s28, s28, s29")
    a("s_add_u32 s16, s16, s28"); a("s_addc_u32 s17, s17, 0"); a("s_add_u32 s18, s18, s28"); a("s_addc_u32 s19, s19, 0")
    for i in range(6):
        a(f"global_load_dwordx4 v[{FD+8*i}:{FD+8*i+3}], v3, s[16:17]{NT}")
        a(f"global_load_dwordx4 v[{FD+8*i+4}:{FD+8*i+7}], v3, s[18:19]{NT}")
        if i < 5:
            a(f"s_add_u32 s16, s16, {32*9216}"); a("s_addc_u32 s17, s17, 0"); a(f"s_add_u32 s18, s18, {32*9216}"); a("s_addc_u32 s19, s19, 0")
    a.label(Lnf)
    a("s_waitcnt lgkmcnt(0)"); a("s_barrier")
    stamp(1)
    def heavy_wait(n_other, extra_heavy):
        L1 = lab("hw"); L2 = lab("hwd")
        a("s_cmp_ge_u32 s2, 216"); a(f"s_cbranch_scc1 {L1}")
        a(f"s_waitcnt vmcnt({n_other+extra_heavy})"); a(f"s_branch {L2}")
        a.label(L1); a(f"s_waitcnt vmcnt({n_other})"); a.label(L2)
    a("v_lshrrev_b32 v6, 3, v1"); a("v_and_b32 v6, 1, v6")
    a("v_lshrrev_b32 v7, 4, v1")
    a("s_movk_i32 s28, 2304"); a("v_mul_u32_u24 v5, 0x900, v6")
    a(f"v_add_u32 v5, {LDS_T}, v5")
    a("v_and_b32 v19, 1, v7"); a("v_lshl_add_u32 v19, v19, 3, v5")
    a("v_lshl_add_u32 v5, v7, 3, v5")
    a("v_mul_u32_u24 v6, 72, v9"); a("v_mul_u32_u24 v7, 0x900, v8"); a("v_add_u32 v6, v6, v7"); a(f"v_add_u32 v6, {LDS_T}, v6")
    a("v_lshl_add_u32 v7, v8, 2, v6")
    a("v_xor_b32 v8, 1, v8"); a("v_lshl_add_u32 v8, v8, 2, v6")
    heavy_wait(5, 12)
    stamp(2)
    for k in range(9):
        a(f"v_lshlrev_b32 v{EX+2*k}, 16, v{XR+k}"); a(f"v_and_b32 v{EX+2*k+1}, 0xffff0000, v{XR+k}")
    a(f"v_add_f32 v{TM}, v{EX}, v{EX+1}"); a(f"v_add_f32 v{TM+1}, v{EX+2}, v{EX+3}")
    for k in range(4, 18, 2):
        t = TM + ((k >> 1) & 1)
        a(f"v_add_f32 v{t}, v{t}, v{EX+k}"); a(f"v_add_f32 v{t}, v{t}, v{EX+k+1}")
    a(f"v_add_f32 v{TM}, v{TM}, v{TM+1}")
    def allreduce32(r, t):
        allreduce8("v_add_f32", [r])
        a(f"v_add_f32_dpp {r}, {r}, {r} row_mirror {DPP}")
        a(f"v_mov_b32 {t}, {r}"); a(f"v_permlane16_swap_b32 {r}, {t}"); a(f"v_add_f32 {r}, {r}, {t}")
    allreduce32(f"v{TM}", f"v{TM+1}")
    a(f"v_mul_f32 v{TM}, 0x3ae38e39, v{TM}")
    a(f"v_sub_f32 v{TM+2}, v{EX}, v{TM}"); a(f"v_mul_f32 v{TM+1}, v{TM+2}, v{TM+2}")
    a(f"v_sub_f32 v{TM+3}, v{EX+1}, v{TM}"); a(f"v_mul_f32 v{TM+4}, v{TM+3}, v{TM+3}")
    for k in range(2, 18, 2):
        a(f"v_sub_f32 v{TM+2}, v{EX+k}, v{TM}"); a(f"v_sub_f32 v{TM+3}, v{EX+k+1}, v{TM}")
        a(f"v_fmac_f32 v{TM+1}, v{TM+2}, v{TM+2}"); a(f"v_fmac_f32 v{TM+4}, v{TM+3}, v{TM+3}")
    a(f"v_add_f32 v{TM+1}, v{TM+1}, v{TM+4}")
    allreduce32(f"v{TM+1}", f"v{TM+2}")
    a(f"v_mul_f32 v{TM+1}, 0x3ae38e39, v{TM+1}")
    a(f"v_cvt_pk_bf16_f32 v{TM}, v{TM}, v{TM+1}")
    a(f"v_and_b32 v{TM+1}, 0xffff0000, v{TM}")
    a(f"v_lshlrev_b32 v{TM}, 16, v{TM}")
    a(f"v_add_f32 v{TM+1}, 0x3727c5ac, v{TM+1}")
    a(f"v_cvt_pk_bf16_f32 v{TM+1}, v{TM+1}, v{TM+1}"); a(f"v_and_b32 v{TM+1}, 0xffff0000, v{TM+1}")
    a(f"v_sqrt_f32 v{TM+1}, v{TM+1}")
    a(f"v_cvt_pk_bf16_f32 v{TM+1}, v{TM+1}, v{TM+1}"); a(f"v_and_b32 v{TM+1}, 0xffff0000, v{TM+1}")
    a(f"v_rcp_f32 v{TM+2}, v{TM+1}")
    for k in range(9):
        e0, e1 = EX + 2*k, EX + 2*k + 1
        a(f"v_sub_f32 v{e0}, v{e0}, v{TM}"); a(f"v_sub_f32 v{e1}, v{e1}, v{TM}")
        a(f"v_cvt_pk_bf16_f32 v{TM+3}, v{e0}, v{e1}")
        a(f"v_lshlrev_b32 v{e0}, 16, v{TM+3}"); a(f"v_and_b32 v{e1}, 0xffff0000, v{TM+3}")
        a(f"v_mul_f32 v{TM+4}, v{e0}, v{TM+2}"); a(f"v_mul_f32 v{TM+5}, v{e1}, v{TM+2}")
        a(f"v_fma_f32 v{e0}, -v{TM+4}, v{TM+1}, v{e0}"); a(f"v_fma_f32 v{e1}, -v{TM+5}, v{TM+1}, v{e1}")
        a(f"v_fmac_f32 v{TM+4}, v{e0}, v{TM+2}"); a(f"v_fmac_f32 v{TM+5}, v{e1}, v{TM+2}")
        a(f"v_cvt_pk_bf16_f32 v{e0}, v{TM+4}, v{TM+4}"); a(f"v_cvt_pk_bf16_f32 v{e1}, v{TM+5}, v{TM+5}")
        a(f"ds_write_b32 v7, v{e0} offset:{8*k}"); a(f"ds_write_b32 v8, v{e1} offset:{8*k}")
    make_tag("v16", "v17", f"v{TM}")
    stamp(3)
    def gemv_unit(dreg_list, pair, accs, first):
        for w in range(4): a(f"v_and_b32 v{BB+w}, v{pair}, v{12+w}")
        for w in range(4): a(f"v_and_b32 v{BB+4+w}, v{pair+1}, v{12+w}")
        for d, (d1, d2) in zip(dreg_list, accs):
            c1 = "0" if first else f"v[{d1}:{d1+3}]"; c2 = "0" if first else f"v[{d2}:{d2+3}]"
            a(f"v_mfma_f32_16x16x32_bf16 v[{d1}:{d1+3}], v[{d}:{d+3}], v[{BB}:{BB+3}], {c1}")
            a(f"v_mfma_f32_16x16x32_bf16 v[{d2}:{d2+3}], v[{d}:{d+3}], v[{BB+4}:{BB+7}], {c2}")
    def zsel(d1, d2):
        for e in range(4): a(f"v_cndmask_b32_e64 v{d1+e}, v{d2+e}, v{d1+e}, s[50:51]")
    a("s_mul_i32 s28, s56, 576"); a("s_lshl_b32 s29, s36, 5"); a("s_add_u32 s28, s28, s29"); a("v_add_u32 v6, s28, v5")
    for i in range(4): a(f"ds_read_b64 v[{TP+2*i}:{TP+2*i+1}], v6 offset:{128*i}")
    a("s_mul_i32 s28, s56, 576"); a("s_lshl_b32 s29, s36, 4"); a("s_add_u32 s28, s28, s29"); a("s_add_u32 s28, s28, 512"); a("v_add_u32 v6, s28, v19")
    a(f"ds_read_b64 v[{TP+8}:{TP+9}], v6")
    heavy_wait(0, 12)
    a("s_waitcnt lgkmcnt(0)")
    for i in range(5):
        gemv_unit([WQD + 4*i], TP + 2*i, [(AC, AC + 4)], i == 0)
    zsel(AC, AC + 4)
    a("v_lshlrev_b32 v18, 4, v1")
    a("s_lshl_b32 s28, s36, 10"); a(f"s_add_u32 s28, s28, {LDS_R1}"); a("v_add_u32 v6, s28, v18")
    a(f"ds_write_b128 v6, v[{AC}:{AC+3}]")
    arrive_rtn(C_WQ, "v10", "v11", f"v{TM}", "s49")
    Lnq = lab("noqpub")
    a("s_cmp_lg_u32 s49, 3"); a(f"s_cbranch_scc1 {Lnq}")
    a("v_and_b32 v6, 31, v1"); a("v_lshlrev_b32 v6, 4, v6"); a("v_lshrrev_b32 v7, 5, v1"); a("v_lshl_add_u32 v6, v7, 3, v6"); a(f"v_add_u32 v6, {LDS_R1}, v6")
    for w in range(4):
        for e in range(2):
            a(f"ds_read_b64 v[{EX+4*w+2*e}:{EX+4*w+2*e+1}], v6 offset:{1024*w+512*e}")
    a("v_lshrrev_b32 v8, 3, v1"); a("v_and_b32 v8, 1, v8"); a("v_lshlrev_b32 v8, 9, v8"); a("v_lshl_add_u32 v8, v7, 8, v8")
    a("v_lshrrev_b32 v9, 4, v1"); a("v_and_b32 v9, 1, v9"); a("v_lshl_add_u32 v8, v9, 7, v8")
    a("v_and_b32 v9, 7, v1"); a("v_lshl_add_u32 v8, v9, 4, v8")
    a("s_lshl_b32 s28, s2, 10"); a(f"s_add_u32 s28, s28, {WS_QB}"); a("v_add_u32 v8, s28, v8")
    a("s_waitcnt lgkmcnt(0)")
    for st in range(4):
        a(f"v_add_f32 v{EX+4*st}, v{EX+4*st}, v{EX+4*st+2}"); a(f"v_add_f32 v{EX+4*st+1}, v{EX+4*st+1}, v{EX+4*st+3}")
    for st in (0, 8):
        a(f"v_add_f32 v{EX+st}, v{EX+st}, v{EX+st+4}"); a(f"v_add_f32 v{EX+st+1}, v{EX+st+1}, v{EX+st+5}")
    a(f"v_add_f32 v{EX}, v{EX}, v{EX+8}"); a(f"v_add_f32 v{EX+2}, v{EX+1}, v{EX+9}")
    a(f"v_mov_b32 v{EX+1}, v16"); a(f"v_mov_b32 v{EX+3}, v16")
    a(f"global_store_dwordx4 v8, v[{EX}:{EX+3}], s[26:27] sc1")
    a.label(Lnq)
    stamp(4)
    Lnf2 = lab("noffn2")
    a("s_cmp_ge_u32 s2, 216"); a(f"s_cbranch_scc1 {Lnf2}")
    a("s_mul_i32 s28, s59, 768"); a("s_lshl_b32 s29, s36, 5"); a("s_add_u32 s28, s28, s29"); a("v_add_u32 v6, s28, v5")
    for i in range(6): a(f"ds_read_b64 v[{TP+2*i}:{TP+2*i+1}], v6 offset:{128*i}")
    a("s_waitcnt lgkmcnt(0)")
    for i in range(6):
        a(f"s_waitcnt vmcnt({10-2*i})")
        gemv_unit([FD + 8*i, FD + 8*i + 4], TP + 2*i, [(AC, AC + 4), (AC + 8, AC + 12)], i == 0)
    zsel(AC, AC + 4); zsel(AC + 8, AC + 12)
    a("s_lshl_b32 s28, s36, 11"); a(f"s_add_u32 s28, s28, {LDS_R1+4096}"); a("v_add_u32 v6, s28, v18")
    a(f"ds_write_b128 v6, v[{AC}:{AC+3}]"); a(f"ds_write_b128 v6, v[{AC+8}:{AC+11}] offset:1024")
    arrive_rtn(C_GU, "v10", "v11", f"v{TM}", "s49")
    a("s_cmp_lg_u32 s49, 3"); a(f"s_cbranch_scc1 {Lnf2}")
    a("v_and_b32 v6, 31, v1"); a("v_lshlrev_b32 v6, 4, v6"); a("v_lshrrev_b32 v7, 5, v1"); a("v_lshl_add_u32 v6, v7, 10, v6"); a(f"v_add_u32 v6, {LDS_R1+4096}, v6")
    for w in range(4):
        for e in range(2):
            r = FD + 8*w + 4*e
            a(f"ds_read_b128 v[{r}:{r+3}], v6 offset:{2048*w+512*e}")
    a("v_lshrrev_b32 v8, 3, v1"); a("v_and_b32 v8, 1, v8"); a("v_lshlrev_b32 v8, 8, v8"); a("v_lshl_add_u32 v8, v7, 9, v8")
    a("v_lshrrev_b32 v9, 4, v1"); a("v_and_b32 v9, 1, v9"); a("v_lshl_add_u32 v8, v9, 7, v8")
    a("v_and_b32 v9, 7, v1"); a("v_lshl_add_u32 v8, v9, 4, v8")
    a("s_lshl_b32 s28, s2, 10"); a(f"s_add_u32 s28, s28, {WS_GU}"); a("v_add_u32 v8, s28, v8")
    a("s_waitcnt lgkmcnt(0)")
    for w in range(4):
        for e in range(4): a(f"v_add_f32 v{FD+8*w+e}, v{FD+8*w+e}, v{FD+8*w+4+e}")
    for w in (0, 2):
        for e in range(4): a(f"v_add_f32 v{FD+8*w+e}, v{FD+8*w+e}, v{FD+8*w+8+e}")
    for e in range(4): a(f"v_add_f32 v{FD+e}, v{FD+e}, v{FD+16+e}")
    tag_insert(FD, "v17")
    a(f"global_store_dwordx4 v8, v[{FD}:{FD+3}], s[26:27] sc1")
    a.label(Lnf2)
    stamp(5)
    a("s_lshr_b32 s28, s2, 3"); a("s_lshr_b32 s60, s28, 4"); a("s_and_b32 s61, s28, 15")
    a("s_lshl_b32 s28, s61, 2"); a("s_add_u32 s28, s28, s36"); a("s_lshl_b32 s28, s28, 12")
    a("s_lshl_b32 s29, s60, 9"); a("s_add_u32 s28, s28, s29"); a(f"s_add_u32 s28, s28, {WS_QB}")
    a("v_and_b32 v6, 3, v1"); a("v_lshlrev_b32 v6, 10, v6")
    a("v_lshrrev_b32 v7, 2, v1"); a("v_and_b32 v7, 7, v7"); a("v_lshl_add_u32 v6, v7, 4, v6")
    a("v_lshrrev_b32 v8, 5, v1"); a("v_lshl_add_u32 v6, v8, 7, v6"); a("v_add_u32 v6, s28, v6")
    G = EX
    def iss():
        a(f"global_load_dwordx4 v[{G}:{G+3}], v6, s[26:27] sc1")
        a(f"global_load_dwordx4 v[{G+4}:{G+7}], v6, s[26:27] offset:256 sc1")
    def chk():
        a(f"v_bitop3_b32 v{TM}, v{G+1}, v{G+3}, v16 bitop3:0x7e")
        a(f"v_bitop3_b32 v{TM+1}, v{G+5}, v{G+7}, v16 bitop3:0x7e")
        a(f"v_or_b32 v{TM}, v{TM}, v{TM+1}")
    poll_loop(iss, chk, f"v{TM}")
    qv = [G, G + 2, G + 4, G + 6]
    allreduce_quad("v_add_f32", [f"v{r}" for r in qv])
    for r in qv: a(f"v_cvt_pk_bf16_f32 v{r}, v{r}, v{r}")
    a("s_lshr_b32 s28, s36, 1"); a("s_lshl_b32 s28, s28, 8"); a("s_and_b32 s29, s36, 1"); a("s_lshl_b32 s29, s29, 7")
    a("s_add_u32 s28, s28, s29"); a(f"s_add_u32 s28, s28, {LDS_Q}")
    a("v_lshlrev_b32 v8, 6, v8"); a("v_lshl_add_u32 v8, v7, 1, v8"); a("v_add_u32 v8, s28, v8")
    a("s_mov_b32 exec_lo, 0x11111111"); a("s_mov_b32 exec_hi, 0x11111111")
    for r in range(4): a(f"ds_write_b16 v8, v{qv[r]} offset:{16*r}")
    a("s_mov_b64 exec, -1")
    arrive(C_Q, "v10", "v11")
    stamp(6)

    a("s_cmp_lt_u32 s2, 144"); a("s_cbranch_scc1 L_wtype")
    a("s_cmp_lt_u32 s2, 160"); a("s_cbranch_scc1 L_wts_done")

    OA = EX
    def late_loads(sb):
        for t in range(4):
            for cg in range(3):
                r = FD + 12*t + 4*cg
                a(f"global_load_dwordx4 v[{r}:{r+3}], v4, s[{sb}:{sb+1}] offset:{128*cg}{NT}")
            if t < 3:
                a(f"s_add_u32 s{sb}, s{sb}, 9216"); a(f"s_addc_u32 s{sb+1}, s{sb+1}, 0")
    def late_gemv():
        for t in range(4):
            a(f"v_cndmask_b32_e64 v{TP}, v{OA+t}, v{OA+4+t}, s[52:53]")
            a(f"v_cndmask_b32_e64 v{TP+2}, v{OA+4+t}, v{OA+t}, s[52:53]")
            a(f"v_mov_b32_dpp v{TP+1}, v{TP+2} row_ror:8 {DPP}")
            gemv_unit([FD + 12*t + 4*cg for cg in range(3)], TP, [(AC + 8*cg, AC + 8*cg + 4) for cg in range(3)], t == 0)
        for cg in range(3): zsel(AC + 8*cg, AC + 8*cg + 4)
    def late_reduce(nW, sj, sslot):
        a("s_mul_i32 s28, s36, 3072"); a(f"s_add_u32 s28, s28, {LDS_R1}"); a("v_add_u32 v6, s28, v18")
        for cg in range(3): a(f"ds_write_b128 v6, v[{AC+8*cg}:{AC+8*cg+3}] offset:{1024*cg}")
        arrive_rtn(C_LATE, "v10", "v11", f"v{TM}", "s49")
        a(f"s_cmp_lg_u32 s49, {nW-1}"); a("s_cbranch_scc1 L_wts_done")
        a(f"v_add_u32 v6, {LDS_R1}, v18")
        for cg in range(3):
            for w in range(nW):
                r = FD + 16*cg + 4*w
                a(f"ds_read_b128 v[{r}:{r+3}], v6 offset:{3072*w+1024*cg}")
        a("v_lshrrev_b32 v7, 3, v1")
        a("v_and_b32 v8, 1, v7")
        a("v_lshrrev_b32 v7, 1, v7")
        a("v_lshl_add_u32 v7, v7, 1, v8")
        a("s_movk_i32 s28, 10240"); a("v_mul_lo_u32 v7, v7, s28")
        a("v_and_b32 v8, 7, v1"); a("v_lshl_add_u32 v7, v8, 4, v7")
        a(f"s_mul_i32 s28, {sj}, {12*10240}"); a(f"s_lshl_b32 s29, {sslot}, 7"); a("s_add_u32 s28, s28, s29"); a(f"s_add_u32 s28, s28, {WS_FIN}")
        a("v_add_u32 v7, s28, v7")
        for cg in range(3):
            a(f"s_waitcnt lgkmcnt({(2-cg)*nW})")
            r = FD + 16*cg
            for e in range(4): a(f"v_add_f32 v{r+e}, v{r+e}, v{r+4+e}")
            if nW == 4:
                for e in range(4): a(f"v_add_f32 v{r+8+e}, v{r+8+e}, v{r+12+e}")
            for e in range(4): a(f"v_add_f32 v{r+e}, v{r+e}, v{r+8+e}")
        r0, r1, r2 = FD, FD + 16, FD + 32
        for e in range(4): a(f"v_mov_b32 v{r2+4+e}, v{r2+e}")
        for e in range(4): a(f"v_permlane32_swap_b32 v{r0+e}, v{r1+e}")
        for e in range(4): a(f"v_permlane32_swap_b32 v{r2+e}, v{r2+4+e}")
        for e in range(4): a(f"v_add_f32 v{r0+e}, v{r0+e}, v{r1+e}")
        for e in range(4): a(f"v_add_f32 v{r2+e}, v{r2+e}, v{r2+4+e}")
        tag_insert(r0, "v17"); tag_insert(r2, "v17")
        a(f"global_store_dwordx4 v7, v[{r0}:{r0+3}], s[26:27] sc1")
        a(f"v_add_u32 v8, {8*10240}, v7")
        set_exec(0xffffffff, 0)
        a(f"global_store_dwordx4 v8, v[{r2}:{r2+3}], s[26:27] sc1")
        a("s_mov_b64 exec, -1")

    a("; ---- O type ----")
    a("s_sub_u32 s28, s2, 160"); a("s_mul_hi_u32 s62, s28, 0x55555556"); a("s_mul_i32 s29, s62, 3"); a("s_sub_u32 s63, s28, s29")
    a("v_and_b32 v6, 7, v1"); a("v_lshlrev_b32 v6, 4, v6"); a("s_lshl_b32 s28, s62, 8"); a(f"s_add_u32 s28, s28, {WS_ML}"); a("v_add_u32 v6, s28, v6")
    G = XR
    def iss():
        a(f"global_load_dwordx4 v[{G}:{G+3}], v6, s[26:27] sc1")
        a(f"global_load_dwordx4 v[{G+4}:{G+7}], v6, s[26:27] offset:128 sc1")
    def chk():
        tag_check(G, "v17", f"v{TM}", f"v{TM+1}", f"v{TM+2}", True)
        tag_check(G + 4, "v17", f"v{TM}", f"v{TM+1}", f"v{TM+2}", False)
    poll_loop(iss, chk, f"v{TM}")
    for bb in range(2):
        g = G + 4*bb
        a(f"v_and_b32 v{g}, s46, v{g}"); a(f"v_and_b32 v{g+1}, s46, v{g+1}")
        a(f"v_mov_b32 v{g+2}, v{g}")
    allreduce8("v_max_f32", [f"v{G+2}", f"v{G+6}"])
    a(f"s_mov_b32 s48, {hex(LOG2E)}")
    for bb in range(2):
        g = G + 4*bb
        a(f"v_sub_f32 v{g}, v{g}, v{g+2}"); a(f"v_mul_f32 v{g}, s48, v{g}"); a(f"v_exp_f32 v{g}, v{g}")
    for bb in range(2):
        g = G + 4*bb
        a(f"v_mul_f32 v{g+1}, v{g+1}, v{g}")
    allreduce8("v_add_f32", [f"v{G+1}", f"v{G+5}"])
    for bb in range(2):
        g = G + 4*bb
        a(f"v_rcp_f32 v{g+2}, v{g+1}")
    for bb in range(2):
        g = G + 4*bb
        a(f"v_mul_f32 v{28+bb}, v{g}, v{g+2}")
    a(f"s_mul_i32 s28, s62, {128*1152}"); a("s_mul_i32 s29, s63, 384"); a("s_add_u32 s28, s28, s29"); a(f"s_mul_i32 s29, s36, {32*1152}"); a("s_add_u32 s28, s28, s29")
    a("s_add_u32 s12, s12, s28"); a("s_addc_u32 s13, s13, 0")
    a("s_lshr_b32 s28, s62, 1"); a("s_lshl_b32 s28, s28, 13"); a("s_and_b32 s29, s62, 1"); a("s_lshl_b32 s29, s29, 9"); a("s_add_u32 s28, s28, s29")
    a("s_lshl_b32 s29, s36, 7"); a("s_add_u32 s28, s28, s29"); a(f"s_add_u32 s28, s28, {WS_OB}")
    a("v_and_b32 v6, 7, v1"); a("v_lshlrev_b32 v6, 10, v6"); a("v_lshrrev_b32 v7, 3, v1"); a("v_lshl_add_u32 v6, v7, 4, v6"); a("v_add_u32 v6, s28, v6")
    a(f"v_add_u32 v7, {16*8*1024}, v6")
    spin_lds(C_V, 8, "v10", f"v{TM}")
    a(f"s_setprio {cfg.prio_late}")
    stamp(7)
    late_loads(12)
    def iss():
        a(f"global_load_dwordx4 v[{OA}:{OA+3}], v6, s[26:27] sc1")
        a(f"global_load_dwordx4 v[{OA+4}:{OA+7}], v7, s[26:27] sc1")
    def chk():
        tag_check(OA, "v17", f"v{TM}", f"v{TM+1}", f"v{TM+2}", True)
        tag_check(OA + 4, "v17", f"v{TM}", f"v{TM+1}", f"v{TM+2}", False)
    poll_loop(iss, chk, f"v{TM}")
    stamp(8)
    tag_strip(OA); tag_strip(OA + 4)
    for bb in range(2):
        for e in range(4): a(f"v_mul_f32 v{OA+4*bb+e}, v{OA+4*bb+e}, v{28+bb}")
    allreduce8("v_add_f32", [f"v{OA+e}" for e in range(8)])
    for e in range(8): a(f"v_cvt_pk_bf16_f32 v{OA+e}, v{OA+e}, v{OA+e}")
    late_gemv()
    late_reduce(4, "s63", "s62")
    stamp(9)
    a("s_branch L_wts_done")

    a.label("L_wtype")
    a("; ---- W type ----")
    a("s_cmp_eq_u32 s36, 3"); a("s_cbranch_scc1 L_final")
    a("s_mul_i32 s28, s58, 3"); a("s_add_u32 s28, s28, s36"); a("s_lshr_b32 s29, s28, 1"); a("s_and_b32 s28, s28, 1")
    a("s_mul_i32 s29, s29, 3072"); a("s_lshl_b32 s28, s28, 7"); a("s_add_u32 s28, s28, s29"); a(f"s_add_u32 s28, s28, {WS_GU}")
    a("v_and_b32 v6, 3, v1"); a("v_cmp_ne_u32 s[56:57], 3, v6"); a("v_cndmask_b32_e64 v6, 0, v6, s[56:57]")
    a("v_lshlrev_b32 v6, 10, v6")
    a("v_lshrrev_b32 v7, 2, v1"); a("v_and_b32 v7, 1, v7"); a("v_lshl_add_u32 v6, v7, 9, v6")
    a("v_lshrrev_b32 v7, 3, v1"); a("v_lshl_add_u32 v6, v7, 4, v6"); a("v_add_u32 v6, s28, v6")
    def iss():
        a(f"global_load_dwordx4 v[{OA}:{OA+3}], v6, s[26:27] sc1")
        a(f"global_load_dwordx4 v[{OA+4}:{OA+7}], v6, s[26:27] offset:256 sc1")
    def chk():
        tag_check(OA, "v17", f"v{TM}", f"v{TM+1}", f"v{TM+2}", True)
        tag_check(OA + 4, "v17", f"v{TM}", f"v{TM+1}", f"v{TM+2}", False)
    poll_loop(iss, chk, f"v{TM}")
    tag_strip(OA); tag_strip(OA + 4)
    for e in range(8): a(f"v_cndmask_b32_e64 v{OA+e}, 0, v{OA+e}, s[56:57]")
    allreduce_quad("v_add_f32", [f"v{OA+e}" for e in range(8)])
    OB2 = OA + 8
    for e in range(8): a(f"v_mov_b32_dpp v{OB2+e}, v{OA+e} row_half_mirror {DPP}")
    a("s_mov_b32 s56, 0xf0f0f0f0"); a("s_mov_b32 s57, 0xf0f0f0f0")
    a(f"s_mov_b32 s48, {hex(LOG2E)}")
    for e in range(8):
        g, u = TM, TM + 1
        a(f"v_cndmask_b32_e64 v{g}, v{OA+e}, v{OB2+e}, s[56:57]")
        a(f"v_cndmask_b32_e64 v{u}, v{OB2+e}, v{OA+e}, s[56:57]")
        a(f"v_cvt_pk_bf16_f32 v{g}, v{g}, v{u}")
        a(f"v_and_b32 v{u}, 0xffff0000, v{g}"); a(f"v_lshlrev_b32 v{g}, 16, v{g}")
        a(f"v_mul_f32 v{TM+2}, s48, v{g}"); a(f"v_exp_f32 v{TM+2}, -v{TM+2}"); a(f"v_add_f32 v{TM+2}, 1.0, v{TM+2}")
        a(f"v_rcp_f32 v{TM+3}, v{TM+2}")
        a(f"v_mul_f32 v{TM+4}, v{g}, v{TM+3}")
        a(f"v_fma_f32 v{TM+5}, -v{TM+4}, v{TM+2}, v{g}"); a(f"v_fmac_f32 v{TM+4}, v{TM+5}, v{TM+3}")
        a(f"v_cvt_pk_bf16_f32 v{TM+4}, v{TM+4}, v{TM+4}"); a(f"v_and_b32 v{TM+4}, 0xffff0000, v{TM+4}")
        a(f"v_mul_f32 v{TM+4}, v{TM+4}, v{u}")
        a(f"v_cvt_pk_bf16_f32 v{OA+e}, v{TM+4}, v{TM+4}")
    a(f"s_mul_i32 s28, s58, {96*1152}"); a("s_mul_i32 s29, s59, 384"); a("s_add_u32 s28, s28, s29"); a(f"s_mul_i32 s29, s36, {32*1152}"); a("s_add_u32 s28, s28, s29")
    a("s_add_u32 s20, s20, s28"); a("s_addc_u32 s21, s21, 0")
    spin_lds(C_V, 8, "v10", f"v{TM}")
    a(f"s_setprio {cfg.prio_late}")
    stamp(7)
    late_loads(20)
    a("s_waitcnt vmcnt(0)")
    stamp(8)
    late_gemv()
    a("s_add_u32 s62, s58, 32")
    late_reduce(3, "s59", "s62")
    stamp(9)
    a("s_branch L_wts_done")

    a.label("L_final")
    a("s_cmp_ge_u32 s2, 36"); a("s_cbranch_scc1 L_wts_done")
    a("s_mul_i32 s28, s2, 10240"); a(f"s_add_u32 s28, s28, {WS_FIN}"); a("v_add_u32 v6, s28, v18")
    a("v_add_u32 v7, 4096, v6"); a("v_add_u32 v8, 8192, v6")
    a("s_and_b32 s28, s2, 1"); a("s_mul_i32 s28, s28, 576"); a("s_lshr_b32 s29, s2, 1"); a("s_lshl_b32 s29, s29, 5"); a("s_add_u32 s28, s28, s29")
    a("v_and_b32 v9, 31, v1"); a("v_add_u32 v9, s28, v9"); a("v_lshlrev_b32 v9, 1, v9")
    a("global_load_ushort v19, v9, s[4:5]")
    G = FD
    def iss():
        for t in range(6):
            base, off = (("v7", 1024*t) if t < 4 else ("v8", 1024*(t-4)))
            a(f"global_load_dwordx4 v[{G+4*t}:{G+4*t+3}], {base}, s[26:27] offset:{off} sc1")
    def chk():
        for t in range(6): tag_check(G + 4*t, "v17", f"v{TM}", f"v{TM+1}", f"v{TM+2}", t == 0)
    poll_loop(iss, chk, f"v{TM}")
    stamp(7)
    def reduce_slots(n):
        for t in range(n): tag_strip(G + 4*t)
        for t in range(1, n):
            for e in range(4): a(f"v_add_f32 v{G+e}, v{G+e}, v{G+4*t+e}")
        for e in range(4): a(f"v_add_f32_dpp v{G+e}, v{G+e}, v{G+e} row_ror:8 {DPP}")
        allreduce_x16_x32("v_add_f32", [f"v{G+e}" for e in range(4)], [f"v{G+4+e}" for e in range(4)])
        a(f"v_cndmask_b32_e64 v{G}, v{G}, v{G+1}, s[52:53]"); a(f"v_cndmask_b32_e64 v{G+2}, v{G+2}, v{G+3}, s[52:53]")
        a(f"v_cndmask_b32_e64 v{G}, v{G}, v{G+2}, s[54:55]")
    reduce_slots(6)
    a(f"s_mov_b32 s48, {hex(LOG2E)}")
    a(f"v_cvt_pk_bf16_f32 v{G}, v{G}, v{G}"); a(f"v_and_b32 v{G}, 0xffff0000, v{G}")
    a(f"v_mul_f32 v{TM+2}, s48, v{G}"); a(f"v_exp_f32 v{TM+2}, -v{TM+2}"); a(f"v_add_f32 v{TM+2}, 1.0, v{TM+2}")
    a(f"v_rcp_f32 v{TM+3}, v{TM+2}"); a(f"v_mul_f32 v{TM+4}, v{G}, v{TM+3}")
    a(f"v_fma_f32 v{TM+5}, -v{TM+4}, v{TM+2}, v{G}"); a(f"v_fmac_f32 v{TM+4}, v{TM+5}, v{TM+3}")
    a(f"v_cvt_pk_bf16_f32 v{TM+4}, v{TM+4}, v{TM+4}"); a(f"v_and_b32 v20, 0xffff0000, v{TM+4}")
    a("v_lshlrev_b32 v19, 16, v19")
    def iss():
        for t in range(4):
            a(f"global_load_dwordx4 v[{G+4*t}:{G+4*t+3}], v6, s[26:27] offset:{1024*t} sc1")
    def chk():
        for t in range(4): tag_check(G + 4*t, "v17", f"v{TM}", f"v{TM+1}", f"v{TM+2}", t == 0)
    poll_loop(iss, chk, f"v{TM}")
    stamp(8)
    reduce_slots(4)
    a(f"v_cvt_pk_bf16_f32 v{G}, v{G}, v{G}"); a(f"v_and_b32 v{G}, 0xffff0000, v{G}")
    a(f"v_mul_f32 v{G}, v{G}, v20"); a(f"v_cvt_pk_bf16_f32 v{G}, v{G}, v{G}"); a(f"v_and_b32 v{G}, 0xffff0000, v{G}")
    a(f"v_add_f32 v{G}, v19, v{G}"); a(f"v_cvt_pk_bf16_f32 v{G}, v{G}, v{G}")
    set_exec(0xffffffff, 0)
    a(f"global_store_short v9, v{G}, s[22:23]")
    a("s_mov_b64 exec, -1")
    a("s_cmp_lg_u32 s2, 0"); a("s_cbranch_scc1 L_wts_done")
    a(f"v_mov_b32 v{TM}, 0")
    a("s_mov_b64 exec, 1")
    a(f"global_store_dword v{TM}, v16, s[26:27] sc1")
    a("s_mov_b64 exec, -1")
    a.label("L_wts_done")
    stamp(10)
    dump_stamps(12)
    a.label("L_end")
    a("s_endpgm")
    return a

HEADER = """; Kernarg layout (96 bytes, pointers only, base s[0:1]):
; @launch grid=(256,1,1) block=(768,1,1) lds=%d
.amdgcn_target "amdgcn-amd-amdhsa--gfx950"
.text
.globl %s
.p2align 8
.type %s,@function
"""
FOOTER = """.section .rodata,"a"
.p2align 6
.amdhsa_kernel %s
  .amdhsa_next_free_vgpr 168
  .amdhsa_next_free_sgpr 102
  .amdhsa_accum_offset 168
  .amdhsa_group_segment_fixed_size 0
  .amdhsa_kernarg_size 96
  .amdhsa_user_sgpr_count 2
  .amdhsa_user_sgpr_kernarg_segment_ptr 1
  .amdhsa_system_sgpr_workgroup_id_x 1
  .amdhsa_float_denorm_mode_32 3
.end_amdhsa_kernel
"""
def build(cfg):
    a = gen(cfg)
    lds = (LDS_END + 255) // 256 * 256
    return HEADER % (lds, KNAME, KNAME) + a.text() + FOOTER % KNAME

if __name__ == "__main__":
    out = sys.argv[1] if len(sys.argv) > 1 else "k.s"
    kw = eval(sys.argv[2]) if len(sys.argv) > 2 else {}
    open(out, "w").write(build(Cfg(**kw)))
```

```python
import sys, json
sys.path.insert(0, 'work')
from asmb import Asm

KNAME = "recurrent_scan__sliding_block_cached__glu_gated_swiglu__decode_kernel"

LDS_K  = 0
LDS_T  = 131072
LDS_Q  = LDS_T + 4608
LDS_R1 = LDS_Q + 512
LDS_R2 = LDS_K + 16384
LDS_R3 = LDS_K
LDS_M  = LDS_R1 + 12288
LDS_C  = LDS_M + 128
LDS_END = LDS_C + 64
C_WQ, C_GU, C_Q, C_M, C_L, C_V, C_O, C_LATE = [4*i for i in range(8)]

WS_QB  = 0x010000
WS_GU  = 0x060000
WS_ML  = 0x0A0000
WS_OB  = 0x0B0000
WS_FIN = 0x100000
WS_DBG = 0x200000

LOG2E = 0x3fb8aa3b
SCALE = 0x3db504f3
SPIN_MAX = 1 << 22

class Cfg:
    def __init__(self, **kw):
        self.Wk = 4; self.Wv = 4; self.extra = 2; self.trig = 16; self.rot = 1
        self.attmap = 'id'; self.rmap = 'id'; self.emode = 's'; self.masked = True; self.wait_ffn1 = True; self.bar_first = True; self.sl_gu = 4; self.sl_ml = 4; self.sl_fin = 2; self.fin_wait_v = True; self.ffn1 = 3; self.ml_at = 3; self.prio_k = 2; self.prio_v1 = 1; self.prio_v2 = 0; self.v2_at = 8; self.prio_tail = 3; self.prio_w = 3; self.prio_late = 3; self.stamps = False; self.nt = " nt"
        self.spin_max = SPIN_MAX
        self.__dict__.update(kw)

def gen(cfg):
    assert cfg.trig > cfg.Wk + cfg.extra
    a = Asm()
    NT = cfg.nt
    uid = [0]
    def lab(p):
        uid[0] += 1
        return f"L_{p}_{uid[0]}"

    nstamp = [0]
    def stamp(idx):
        if cfg.stamps:
            a(f"s_memrealtime s[{64+2*idx}:{65+2*idx}]")
    def dump_stamps(n):
        if not cfg.stamps: return
        a("s_waitcnt vmcnt(0) lgkmcnt(0)")
        a("s_mov_b64 exec, 1")
        a("s_lshl_b32 s28, s2, 4"); a("s_add_u32 s28, s28, s3"); a("s_lshl_b32 s28, s28, 7")
        a(f"s_add_u32 s28, s28, {WS_DBG}")
        a("v_mov_b32 v2, s28")
        for q in range(0, 16, 4):
            for e in range(4):
                a(f"v_mov_b32 v{4+e}, s{64+2*(q+e)}")
            a(f"global_store_dwordx4 v2, v[4:7], s[26:27] offset:{q*4}")
        a("s_getreg_b32 s28, hwreg(HW_REG_XCC_ID)")
        a("v_mov_b32 v4, s28")
        a("global_store_dword v2, v4, s[26:27] offset:64")

    def spin_lds(cnt_off, target, vaddr, vtmp, stmp="s29", sto="s30"):
        L = lab("spin"); D = lab("spind")
        a(f"s_mov_b32 {sto}, 0")
        a.label(L)
        a(f"ds_read_b32 {vtmp}, {vaddr} offset:{cnt_off}")
        a("s_waitcnt lgkmcnt(0)")
        a(f"v_readfirstlane_b32 {stmp}, {vtmp}")
        a(f"s_cmp_ge_u32 {stmp}, {target}")
        a(f"s_cbranch_scc1 {D}")
        a(f"s_add_u32 {sto}, {sto}, 1")
        a(f"s_cmp_lt_u32 {sto}, {cfg.spin_max}")
        a(f"s_cbranch_scc1 {L}")
        a.label(D)

    def set_exec(lo, hi):
        a(f"s_mov_b32 exec_lo, {hex(lo)}"); a(f"s_mov_b32 exec_hi, {hex(hi)}")

    def arrive_rtn(cnt_off, vaddr, vone, vtmp, sdst):
        a("s_mov_b64 exec, 1")
        a(f"ds_add_rtn_u32 {vtmp}, {vaddr}, {vone} offset:{cnt_off}")
        a("s_waitcnt lgkmcnt(0)")
        a(f"v_readfirstlane_b32 {sdst}, {vtmp}")
        a("s_mov_b64 exec, -1")

    def arrive(cnt_off, vaddr, vone):
        a("s_mov_b64 exec, 1")
        a(f"ds_add_u32 {vaddr}, {vone} offset:{cnt_off}")
        a("s_mov_b64 exec, -1")

    DPP = "row_mask:0xf bank_mask:0xf"
    def allreduce8(op, regs, tmp=None):
        for r in regs: a(f"{op}_dpp {r}, {r}, {r} quad_perm:[1,0,3,2] {DPP}")
        for r in regs: a(f"{op}_dpp {r}, {r}, {r} quad_perm:[2,3,0,1] {DPP}")
        for r in regs: a(f"{op}_dpp {r}, {r}, {r} row_half_mirror {DPP}")
    def allreduce_quad(op, regs):
        for r in regs: a(f"{op}_dpp {r}, {r}, {r} quad_perm:[1,0,3,2] {DPP}")
        for r in regs: a(f"{op}_dpp {r}, {r}, {r} quad_perm:[2,3,0,1] {DPP}")
    def allreduce_x16_x32(op, regs, tmps):
        for r, t in zip(regs, tmps): a(f"v_mov_b32 {t}, {r}")
        for r, t in zip(regs, tmps): a(f"v_permlane16_swap_b32 {r}, {t}")
        for r, t in zip(regs, tmps): a(f"{op} {r}, {r}, {t}")
        for r, t in zip(regs, tmps): a(f"v_mov_b32 {t}, {r}")
        for r, t in zip(regs, tmps): a(f"v_permlane32_swap_b32 {r}, {t}")
        for r, t in zip(regs, tmps): a(f"{op} {r}, {r}, {t}")

    def tag_consts():
        for i in range(4): a(f"s_mov_b32 s{40+i}, {hex(0x07060500+i)}")
        a("s_mov_b32 s44, 0x0c0c0400"); a("s_mov_b32 s45, 0x04000c0c"); a("s_mov_b32 s46, 0xffffff00")
    def make_tag(vE, vT, t1):
        a(f"v_add_u32 {vE}, 1, {vE}")
        a(f"s_mov_b32 s28, 0x9E3779B1")
        a(f"v_mul_lo_u32 {vT}, {vE}, s28")
        a(f"v_not_b32 {t1}, {vT}")
        a(f"v_and_b32 {t1}, 1, {t1}")
        a(f"v_lshlrev_b32 {t1}, 8, {t1}")
        a(f"v_and_b32 {vT}, 0xfffffeff, {vT}")
        a(f"v_or_b32 {vT}, {vT}, {t1}")
    def tag_insert(base, vT):
        for i in range(4): a(f"v_perm_b32 v{base+i}, v{base+i}, {vT}, s{40+i}")
    def tag_check(base, vT, vacc, t1, t2, first):
        a(f"v_perm_b32 {t1}, v{base+1}, v{base}, s44")
        a(f"v_perm_b32 {t2}, v{base+3}, v{base+2}, s45")
        if first:
            a(f"v_bitop3_b32 {vacc}, {t1}, {t2}, {vT} bitop3:0x56")
        else:
            a(f"v_bitop3_b32 {t1}, {t1}, {t2}, {vT} bitop3:0x56")
            a(f"v_or_b32 {vacc}, {vacc}, {t1}")
    def tag_strip(base):
        for i in range(4): a(f"v_and_b32 v{base+i}, s46, v{base+i}")
    def poll_loop(issue, check, vacc, sleep=0):
        L = lab("poll"); D = lab("polld")
        a("s_mov_b32 s30, 0")
        a.label(L)
        issue()
        a("s_waitcnt vmcnt(0)")
        check()
        a(f"v_cmp_ne_u32 vcc, 0, {vacc}")
        a(f"s_cbranch_vccz {D}")
        if cfg.masked: a("s_mov_b64 exec, vcc")
        if sleep: a(f"s_sleep {sleep}")
        a("s_add_u32 s30, s30, 1")
        a(f"s_cmp_lt_u32 s30, {cfg.spin_max}")
        a(f"s_cbranch_scc1 {L}")
        a.label(D)
        if cfg.masked: a("s_mov_b64 exec, -1")

    a.raw(f"{KNAME}:")
    a("s_cmp_ge_u32 s2, 256")
    a("s_cbranch_scc1 L_end")
    stamp(0)
    a("s_load_dwordx16 s[4:19], s[0:1], 0")
    a("s_load_dwordx8 s[20:27], s[0:1], 64")
    a("v_lshrrev_b32 v2, 6, v0")
    a("v_and_b32 v1, 63, v0")
    a("v_readfirstlane_b32 s3, v2")
    if cfg.attmap == "id": a("s_mov_b32 s96, s2")
    elif cfg.attmap == "T":
        a("s_and_b32 s96, s2, 31"); a("s_lshl_b32 s96, s96, 3"); a("s_lshr_b32 s97, s2, 5"); a("s_add_u32 s96, s96, s97")
    a("s_mov_b32 s97, s2")
    if cfg.rmap == "id": a("s_mov_b32 s98, s2")
    elif cfg.rmap == "odd":
        a("s_sub_u32 s98, s2, 176"); a("s_lshr_b32 s98, s98, 1"); a("s_and_b32 s28, s2, 1"); a("s_mul_i32 s28, s28, 40")
        a("s_add_u32 s98, s98, s28"); a("s_add_u32 s98, s98, 176")
        a("s_cmp_lt_u32 s2, 176"); a("s_cselect_b32 s98, s2, s98")
    a("v_and_b32 v3, 7, v1")
    a("v_and_b32 v4, 1, v3"); a("v_lshlrev_b32 v4, 4, v4"); a("v_mov_b32 v5, 0xffff"); a("v_lshlrev_b32 v4, v4, v5")
    a("v_lshrrev_b32 v3, 1, v3")
    for w in range(4):
        a(f"v_cmp_eq_u32 vcc, {w}, v3"); a(f"v_cndmask_b32 v{12+w}, 0, v4, vcc")
    a(f"v_mov_b32 v10, {LDS_C}")
    a("v_mov_b32 v11, 1")
    tag_consts()
    Lni = lab("noinit")
    a("s_cmp_lg_u32 s3, 0"); a(f"s_cbranch_scc1 {Lni}")
    a("v_lshlrev_b32 v3, 2, v1"); a(f"v_add_u32 v3, {LDS_C}, v3"); a("v_mov_b32 v4, 0")
    set_exec(0xffff, 0); a("ds_write_b32 v3, v4"); a("s_mov_b64 exec, -1")
    a.label(Lni)
    a("s_cmp_ge_u32 s3, 8"); a("s_cbranch_scc1 L_wts")

    vE, vT = "v16", "v17"
    vKA = [2, 3, 4, 5]; vVA = 6; vKR = [7, 8, 9, 18]; vQA = 19
    QB = 20; SB = 36; KF = 52; ACC = 84; BT = 88; VB = 96; TM = 160
    a(f"s_setprio {cfg.prio_k}")
    a("v_lshrrev_b32 v20, 4, v1"); a("v_and_b32 v21, 15, v1")
    a("v_lshlrev_b32 v22, 2, v20"); a("v_lshlrev_b32 v23, 8, v20")
    for r in range(4):
        a(f"v_add_u32 v24, {r}, v22"); a("v_xor_b32 v24, v24, v21"); a(f"v_lshl_add_u32 v{vKA[r]}, v24, 4, v23")
    a(f"v_lshlrev_b32 v{vVA}, 4, v1")
    a("v_lshrrev_b32 v22, 2, v21"); a("v_and_b32 v23, 3, v21")
    a("v_lshl_add_u32 v24, v23, 2, v22"); a("v_lshlrev_b32 v24, 8, v24")
    a("v_xor_b32 v25, v23, v20")
    a("s_lshl_b32 s28, s3, 14"); a("v_add_u32 v24, s28, v24")
    a("v_lshl_add_u32 v24, v25, 4, v24")
    for jj in range(4):
        a(f"v_xor_b32 v26, {jj}, v22"); a(f"v_lshl_add_u32 v{vKR[jj]}, v26, 6, v24")
    a("v_lshrrev_b32 v22, 3, v1"); a("v_and_b32 v22, 1, v22"); a("v_lshlrev_b32 v22, 8, v22")
    a(f"v_lshl_add_u32 v{vQA}, v20, 4, v22"); a(f"v_add_u32 v{vQA}, {LDS_Q}, v{vQA}")
    a(f"v_mov_b32 v{TM}, 0")
    a("s_waitcnt lgkmcnt(0)")
    a("s_lshr_b32 s28, s96, 3"); a("s_and_b32 s29, s96, 7")
    a("s_lshl_b32 s28, s28, 23"); a("s_lshl_b32 s29, s29, 17"); a("s_add_u32 s28, s28, s29"); a("s_add_u32 s28, s28, 0x700000")
    a("s_add_u32 s6, s6, s28"); a("s_addc_u32 s7, s7, 0"); a("s_add_u32 s8, s8, s28"); a("s_addc_u32 s9, s9, 0")
    a(f"s_mul_i32 s31, s96, {cfg.rot}"); a("s_add_u32 s31, s31, s3")
    a("s_lshl_b32 s37, s3, 14")
    vmq = []
    def vm_issue(tag): vmq.append(tag)
    def vm_wait(tag):
        idx = max(i for i, t in enumerate(vmq) if t == tag)
        n = len(vmq) - 1 - idx
        a(f"s_waitcnt vmcnt({n})")
    def vm_window(W):
        a(f"s_waitcnt vmcnt({W-1})")
    if cfg.bar_first:
        a("s_barrier")
    if cfg.emode == "s": a("s_load_dword s99, s[26:27], 0")
    else:
        a(f"global_load_dword {vE}, v{TM}, s[26:27]" + (" sc1" if cfg.emode == "sc1" else "")); vm_issue("E")
    def tile_off(u):
        a(f"s_add_u32 s32, s31, {8*u}"); a("s_and_b32 s32, s32, 31"); a("s_lshl_b32 s32, s32, 12")
    nissued = [1]
    def issue_k(u, r):
        if r == 0:
            tile_off(u)
            a("s_add_u32 s34, s6, s32"); a("s_addc_u32 s35, s7, 0")
            a(f"s_add_u32 s33, s37, {4096*u}"); a("s_mov_b32 m0, s33")
        a(f"global_load_lds_dwordx4 v{vKA[r]}, s[34:35] offset:{1024*r}{NT}"); vm_issue(("k", u, r))
    def issue_v(i):
        u, r = divmod(i, 4)
        if r == 0:
            tile_off(u)
            a("s_add_u32 s38, s8, s32"); a("s_addc_u32 s39, s9, 0")
        a(f"global_load_dwordx4 v[{VB+4*i}:{VB+4*i+3}], v{vVA}, s[38:39] offset:{1024*r}{NT}"); vm_issue(("v", i))
        if i == cfg.trig - 1:
            arrive(C_V, "v10", "v11")
        if i == cfg.v2_at:
            a(f"s_setprio {cfg.prio_v2}")
    kops = [(u, r) for u in range(4) for r in range(4)]
    bar_done = False
    for i, (u, r) in enumerate(kops):
        if i >= cfg.Wk: vm_window(cfg.Wk)
        if r == 0 and u > 0: stamp(6 + u)
        issue_k(u, r)
        if i == cfg.Wk - 1 and not cfg.bar_first:
            a("s_waitcnt lgkmcnt(0)"); a("s_barrier")
    stamp(1)
    a(f"s_setprio {cfg.prio_v1}")
    nv = 0
    for i in range(cfg.Wk):
        vm_window(cfg.Wk); issue_v(nv); nv += 1
    vm_wait(("k", 3, 3))
    for i in range(cfg.extra):
        issue_v(nv); nv += 1
    stamp(2)
    if cfg.emode == "s": a("s_waitcnt lgkmcnt(0)"); a(f"v_mov_b32 {vE}, s99")
    make_tag(vE, vT, f"v{TM}")
    spin_lds(C_Q, 4, "v10", f"v{TM}")
    stamp(3)
    for jj in range(4):
        a(f"ds_read_b128 v[{QB+4*jj}:{QB+4*jj+3}], v{vQA} offset:{64*jj}")
    def kread(u):
        b = KF + 16*(u & 1)
        for jj in range(4):
            a(f"ds_read_b128 v[{b+4*jj}:{b+4*jj+3}], v{vKR[jj]} offset:{4096*u}")
    kread(0); kread(1)
    for u in range(4):
        b = KF + 16*(u & 1)
        a("s_waitcnt lgkmcnt(4)" if u < 3 else "s_waitcnt lgkmcnt(0)")
        for jj in range(4):
            c = "0" if jj == 0 else f"v[{SB+4*u}:{SB+4*u+3}]"
            a(f"v_mfma_f32_16x16x32_bf16 v[{SB+4*u}:{SB+4*u+3}], v[{b+4*jj}:{b+4*jj+3}], v[{QB+4*jj}:{QB+4*jj+3}], {c}")
        if u + 2 < 4: kread(u + 2)
    a(f"s_mov_b32 s47, {hex(SCALE)}")
    for u in range(4):
        for h in range(2):
            s0 = SB + 4*u + 2*h
            t = TM + 2*h
            a(f"v_cvt_pk_bf16_f32 v{t}, v{s0}, v{s0+1}")
            a(f"v_lshlrev_b32 v{s0}, 16, v{t}")
            a(f"v_and_b32 v{s0+1}, 0xffff0000, v{t}")
            a(f"v_mul_f32 v{s0}, s47, v{s0}")
            a(f"v_mul_f32 v{s0+1}, s47, v{s0+1}")
            a(f"v_cvt_pk_bf16_f32 v{t+1}, v{s0}, v{s0+1}")
            a(f"v_lshlrev_b32 v{s0}, 16, v{t+1}")
            a(f"v_and_b32 v{s0+1}, 0xffff0000, v{t+1}")
    a(f"v_max3_f32 v{TM}, v{SB}, v{SB+1}, v{SB+2}")
    a(f"v_max3_f32 v{TM+1}, v{SB+3}, v{SB+4}, v{SB+5}")
    a(f"v_max3_f32 v{TM+2}, v{SB+6}, v{SB+7}, v{SB+8}")
    a(f"v_max3_f32 v{TM+3}, v{SB+9}, v{SB+10}, v{SB+11}")
    a(f"v_max3_f32 v{TM}, v{TM}, v{SB+12}, v{SB+13}")
    a(f"v_max3_f32 v{TM+1}, v{TM+1}, v{SB+14}, v{SB+15}")
    a(f"v_max3_f32 v{TM}, v{TM}, v{TM+1}, v{TM+2}")
    a(f"v_max_f32 v{TM}, v{TM}, v{TM+3}")
    allreduce_x16_x32("v_max_f32", [f"v{TM}"], [f"v{TM+1}"])
    a(f"v_mov_b32 v22, v{TM}")
    a("v_lshrrev_b32 v20, 3, v1"); a("v_and_b32 v20, 1, v20"); a("v_lshlrev_b32 v20, 5, v20")
    a(f"v_add_u32 v20, {LDS_M}, v20")
    a("s_lshl_b32 s28, s3, 2"); a("v_add_u32 v21, s28, v20")
    a(f"s_mov_b32 s48, {hex(LOG2E)}")
    a("v_mul_f32 v23, s48, v22")
    for i in range(16):
        a(f"v_fma_f32 v{SB+i}, v{SB+i}, s48, -v23")
    for i in range(16):
        a(f"v_exp_f32 v{SB+i}, v{SB+i}")
    a(f"v_add_f32 v24, v{SB}, v{SB+1}"); a(f"v_add_f32 v25, v{SB+2}, v{SB+3}")
    for i in range(4, 16, 2):
        t = 24 + ((i >> 1) & 1)
        a(f"v_add_f32 v{t}, v{t}, v{SB+i}")
        a(f"v_add_f32 v{t}, v{t}, v{SB+i+1}")
    a(f"v_add_f32 v24, v24, v25")
    for i in range(16):
        a(f"v_cvt_pk_bf16_f32 v{SB+i}, v{SB+i}, v{SB+i}")
    stamp(4)
    def publish_ml():
        allreduce_x16_x32("v_add_f32", ["v24"], ["v25"])
        set_exec(0x101, 0); a("ds_write_b32 v21, v22"); a("ds_write_b32 v21, v24 offset:64"); a("s_mov_b64 exec, -1")
        arrive_rtn(C_L, "v10", "v11", f"v{TM+1}", "s49")
        Lnoml = lab("noml")
        a("s_cmp_lg_u32 s49, 7"); a(f"s_cbranch_scc1 {Lnoml}")
        a(f"ds_read_b128 v[{KF}:{KF+3}], v20"); a(f"ds_read_b128 v[{KF+4}:{KF+7}], v20 offset:16")
        a(f"ds_read_b128 v[{KF+8}:{KF+11}], v20 offset:64"); a(f"ds_read_b128 v[{KF+12}:{KF+15}], v20 offset:80")
        a("s_waitcnt lgkmcnt(0)")
        a(f"v_max3_f32 v26, v{KF}, v{KF+1}, v{KF+2}"); a(f"v_max3_f32 v27, v{KF+3}, v{KF+4}, v{KF+5}")
        a(f"v_max3_f32 v26, v26, v{KF+6}, v{KF+7}"); a("v_max_f32 v26, v26, v27")
        for w in range(8): a(f"v_sub_f32 v{KF+w}, v{KF+w}, v26")
        for w in range(8): a(f"v_mul_f32 v{KF+w}, s48, v{KF+w}")
        for w in range(8): a(f"v_exp_f32 v{KF+w}, v{KF+w}")
        for w in range(8): a(f"v_mul_f32 v{KF+w}, v{KF+w}, v{KF+8+w}")
        a(f"v_add_f32 v{KF}, v{KF}, v{KF+1}"); a(f"v_add_f32 v{KF+2}, v{KF+2}, v{KF+3}")
        a(f"v_add_f32 v{KF+4}, v{KF+4}, v{KF+5}"); a(f"v_add_f32 v{KF+6}, v{KF+6}, v{KF+7}")
        a(f"v_add_f32 v{KF}, v{KF}, v{KF+2}"); a(f"v_add_f32 v{KF+4}, v{KF+4}, v{KF+6}")
        a(f"v_add_f32 v{KF+1}, v{KF}, v{KF+4}")
        a(f"v_mov_b32 v{KF}, v26"); a(f"v_mov_b32 v{KF+2}, 0"); a(f"v_mov_b32 v{KF+3}, 0")
        tag_insert(KF, vT)
        a("s_lshr_b32 s28, s96, 3"); a("s_and_b32 s29, s28, 15"); a("s_lshr_b32 s28, s28, 4")
        a("s_lshl_b32 s29, s29, 9"); a("s_lshl_b32 s28, s28, 7"); a("s_add_u32 s28, s28, s29")
        a("s_and_b32 s29, s96, 7"); a("s_lshl_b32 s29, s29, 4"); a("s_add_u32 s28, s28, s29"); a(f"s_add_u32 s28, s28, {WS_ML}")
        a("v_lshrrev_b32 v27, 3, v1"); a("v_and_b32 v27, 1, v27"); a("v_lshlrev_b32 v27, 8, v27"); a("v_add_u32 v27, s28, v27")
        set_exec(0x101, 0)
        a(f"global_store_dwordx4 v27, v[{KF}:{KF+3}], s[26:27] sc1")
        a("s_mov_b64 exec, -1")
        a.label(Lnoml)
    def wave_factor():
        spin_lds(C_L, 8, "v10", f"v{TM}")
        a(f"ds_read_b128 v[{KF}:{KF+3}], v20"); a(f"ds_read_b128 v[{KF+4}:{KF+7}], v20 offset:16")
        a("v_lshrrev_b32 v28, 4, v1"); a("v_lshlrev_b32 v28, 7, v28")
        a("v_lshrrev_b32 v29, 3, v1"); a("v_and_b32 v29, 1, v29"); a("v_lshl_add_u32 v28, v29, 9, v28")
        a("v_and_b32 v29, 7, v1"); a("v_lshl_add_u32 v28, v29, 4, v28")
        a("s_lshl_b32 s28, s96, 10"); a(f"s_add_u32 s28, s28, {WS_OB}"); a("v_add_u32 v28, s28, v28")
        a("s_lshl_b32 s28, s3, 10"); a(f"s_add_u32 s28, s28, {LDS_R2}"); a(f"v_add_u32 v29, s28, v{vVA}")
        a(f"v_add_u32 v30, {LDS_R2}, v{vVA}")
        a("s_waitcnt lgkmcnt(0)")
        a(f"v_max3_f32 v26, v{KF}, v{KF+1}, v{KF+2}"); a(f"v_max3_f32 v27, v{KF+3}, v{KF+4}, v{KF+5}")
        a(f"v_max3_f32 v26, v26, v{KF+6}, v{KF+7}"); a("v_max_f32 v26, v26, v27")
        a("v_sub_f32 v26, v22, v26"); a("v_mul_f32 v26, s48, v26"); a("v_exp_f32 v26, v26")
    did_factor = False
    for i in range(16):
        bt = BT + 4*(i & 1)
        for w in range(4):
            a(f"v_and_b32 v{bt+w}, v{SB+i}, v{12+w}")
        vm_wait(("v", i))
        c = "0" if i == 0 else f"v[{ACC}:{ACC+3}]"
        a(f"v_mfma_f32_16x16x32_bf16 v[{ACC}:{ACC+3}], v[{VB+4*i}:{VB+4*i+3}], v[{bt}:{bt+3}], {c}")
        if i % 4 == 3 and i < 15: stamp(10 + i // 4)
        while nv < 16 and nv - (i + 1) < cfg.Wv:
            issue_v(nv); nv += 1
        if i == cfg.ml_at:
            publish_ml()
        if nv == 16 and not did_factor and i > cfg.ml_at:
            wave_factor(); did_factor = True
            a(f"s_setprio {cfg.prio_tail}")
    stamp(5)
    for e in range(4): a(f"v_mul_f32 v{ACC+e}, v{ACC+e}, v26")
    a(f"ds_write_b128 v29, v[{ACC}:{ACC+3}]")
    arrive_rtn(C_O, "v10", "v11", f"v{TM}", "s49")
    a("s_cmp_lg_u32 s49, 7"); a("s_cbranch_scc1 L_att_done")
    for w in range(8):
        a(f"ds_read_b128 v[{KF+4*w}:{KF+4*w+3}], v30 offset:{1024*w}")
    def pk(d, x, y): a(f"v_pk_add_f32 v[{d}:{d+1}], v[{x}:{x+1}], v[{y}:{y+1}]")
    a("s_waitcnt lgkmcnt(6)")
    for e in (0, 2): pk(KF+e, KF+e, KF+4+e)
    a("s_waitcnt lgkmcnt(4)")
    for e in (0, 2): pk(KF+8+e, KF+8+e, KF+12+e)
    a("s_waitcnt lgkmcnt(2)")
    for e in (0, 2): pk(KF+16+e, KF+16+e, KF+20+e)
    for e in (0, 2): pk(KF+e, KF+e, KF+8+e)
    a("s_waitcnt lgkmcnt(0)")
    for e in (0, 2): pk(KF+24+e, KF+24+e, KF+28+e)
    for e in (0, 2): pk(KF+16+e, KF+16+e, KF+24+e)
    for e in (0, 2): pk(KF+e, KF+e, KF+16+e)
    tag_insert(KF, vT)
    a(f"global_store_dwordx4 v28, v[{KF}:{KF+3}], s[26:27] sc1")
    a.label("L_att_done")
    stamp(6)
    dump_stamps(8)
    a("s_endpgm")

    a.label("L_wts")
    a(f"s_setprio {cfg.prio_w}")
    a("s_sub_u32 s36, s3, 8")
    XR = 20; EX = 30; WQD = 48; FD = 68; AC = 116; BB = 140; TP = 148; TM = 160
    a("v_lshrrev_b32 v6, 3, v1"); a("v_and_b32 v7, 7, v1"); a("v_lshlrev_b32 v7, 4, v7")
    a("v_lshl_add_u32 v2, v6, 13, v7")
    a("s_movk_i32 s28, 9216"); a("v_mad_u32_u24 v3, v6, s28, v7")
    a("s_movk_i32 s28, 1152"); a("v_mad_u32_u24 v4, v6, s28, v7")
    a("v_lshrrev_b32 v8, 5, v1"); a("v_and_b32 v9, 31, v1")
    a("v_mul_u32_u24 v18, 36, v9"); a("v_mad_u32_u24 v18, v8, s28, v18")
    a(f"v_mov_b32 v{TM}, 0")
    for e in range(4): a(f"v_mov_b32 v{WQD+16+e}, 0")
    a("s_mov_b32 s50, 0x00ff00ff"); a("s_mov_b32 s51, 0xff00ff00")
    a("s_mov_b32 s52, 0xff00ff00"); a("s_mov_b32 s53, 0xff00ff00")
    a("s_mov_b32 s54, 0xffff0000"); a("s_mov_b32 s55, 0xffff0000")
    a("s_waitcnt lgkmcnt(0)")
    if cfg.emode != "s":
        a(f"global_load_dword v16, v{TM}, s[26:27]" + (" sc1" if cfg.emode == "sc1" else ""))
    a(f"global_load_dwordx4 v[{XR}:{XR+3}], v18, s[4:5]")
    a(f"global_load_dwordx4 v[{XR+4}:{XR+7}], v18, s[4:5] offset:16")
    a(f"global_load_dword v{XR+8}, v18, s[4:5] offset:32")
    a("s_and_b32 s56, s97, 3"); a("s_lshr_b32 s57, s97, 2")
    a(f"s_mul_i32 s28, s56, {144*8192}"); a("s_lshl_b32 s29, s57, 7"); a("s_add_u32 s28, s28, s29")
    a("s_add_u32 s10, s10, s28"); a("s_addc_u32 s11, s11, 0")
    a("s_lshl_b32 s28, s36, 16"); a("s_add_u32 s32, s10, s28"); a("s_addc_u32 s33, s11, 0")
    for i in range(4):
        a(f"global_load_dwordx4 v[{WQD+4*i}:{WQD+4*i+3}], v2, s[32:33]{NT}")
        if i < 3:
            a(f"s_add_u32 s32, s32, {32*8192}"); a("s_addc_u32 s33, s33, 0")
    a("s_lshl_b32 s28, s36, 15"); a(f"s_add_u32 s28, s28, {128*8192}")
    a("s_add_u32 s32, s10, s28"); a("s_addc_u32 s33, s11, 0")
    set_exec(0xffffffff, 0)
    a(f"global_load_dwordx4 v[{WQD+16}:{WQD+19}], v2, s[32:33]{NT}")
    a("s_mov_b64 exec, -1")
    a("s_waitcnt lgkmcnt(0)"); a("s_barrier")
    if cfg.emode == "s": a("s_load_dword s99, s[26:27], 0")
    stamp(1)
    a("s_mul_hi_u32 s58, s98, 0x55555556"); a("s_mul_i32 s59, s58, 3"); a("s_sub_u32 s59, s98, s59")
    a(f"s_mul_i32 s28, s59, {192*9216}"); a("s_min_u32 s29, s58, 71"); a("s_lshl_b32 s29, s29, 7"); a("s_add_u32 s28, s28, s29")
    a(f"s_mul_i32 s29, s36, {8*9216}"); a("s_add_u32 s28, s28, s29")
    a("s_add_u32 s16, s16, s28"); a("s_addc_u32 s17, s17, 0"); a("s_add_u32 s18, s18, s28"); a("s_addc_u32 s19, s19, 0")
    def ffn_issue(i0_, i1_):
        for i in range(i0_, i1_):
            a(f"global_load_dwordx4 v[{FD+8*i}:{FD+8*i+3}], v3, s[16:17]{NT}")
            a(f"global_load_dwordx4 v[{FD+8*i+4}:{FD+8*i+7}], v3, s[18:19]{NT}")
            if i < 5:
                a(f"s_add_u32 s16, s16, {32*9216}"); a("s_addc_u32 s17, s17, 0"); a(f"s_add_u32 s18, s18, {32*9216}"); a("s_addc_u32 s19, s19, 0")
    a("v_lshrrev_b32 v6, 3, v1"); a("v_and_b32 v6, 1, v6")
    a("v_lshrrev_b32 v7, 4, v1")
    a("s_movk_i32 s28, 2304"); a("v_mul_u32_u24 v5, 0x900, v6")
    a(f"v_add_u32 v5, {LDS_T}, v5")
    a("v_and_b32 v19, 1, v7"); a("v_lshl_add_u32 v19, v19, 3, v5")
    a("v_lshl_add_u32 v5, v7, 3, v5")
    a("v_mul_u32_u24 v6, 72, v9"); a("v_mul_u32_u24 v7, 0x900, v8"); a("v_add_u32 v6, v6, v7"); a(f"v_add_u32 v6, {LDS_T}, v6")
    a("v_lshl_add_u32 v7, v8, 2, v6")
    a("v_xor_b32 v8, 1, v8"); a("v_lshl_add_u32 v8, v8, 2, v6")
    a("s_waitcnt vmcnt(5)")
    stamp(2)
    for k in range(9):
        a(f"v_lshlrev_b32 v{EX+2*k}, 16, v{XR+k}"); a(f"v_and_b32 v{EX+2*k+1}, 0xffff0000, v{XR+k}")
    a(f"v_add_f32 v{TM}, v{EX}, v{EX+1}"); a(f"v_add_f32 v{TM+1}, v{EX+2}, v{EX+3}")
    for k in range(4, 18, 2):
        t = TM + ((k >> 1) & 1)
        a(f"v_add_f32 v{t}, v{t}, v{EX+k}"); a(f"v_add_f32 v{t}, v{t}, v{EX+k+1}")
    a(f"v_add_f32 v{TM}, v{TM}, v{TM+1}")
    def allreduce32(r, t):
        allreduce8("v_add_f32", [r])
        a(f"v_add_f32_dpp {r}, {r}, {r} row_mirror {DPP}")
        a(f"v_mov_b32 {t}, {r}"); a(f"v_permlane16_swap_b32 {r}, {t}"); a(f"v_add_f32 {r}, {r}, {t}")
    allreduce32(f"v{TM}", f"v{TM+1}")
    a(f"v_mul_f32 v{TM}, 0x3ae38e39, v{TM}")
    a(f"v_sub_f32 v{TM+2}, v{EX}, v{TM}"); a(f"v_mul_f32 v{TM+1}, v{TM+2}, v{TM+2}")
    a(f"v_sub_f32 v{TM+3}, v{EX+1}, v{TM}"); a(f"v_mul_f32 v{TM+4}, v{TM+3}, v{TM+3}")
    for k in range(2, 18, 2):
        a(f"v_sub_f32 v{TM+2}, v{EX+k}, v{TM}"); a(f"v_sub_f32 v{TM+3}, v{EX+k+1}, v{TM}")
        a(f"v_fmac_f32 v{TM+1}, v{TM+2}, v{TM+2}"); a(f"v_fmac_f32 v{TM+4}, v{TM+3}, v{TM+3}")
    a(f"v_add_f32 v{TM+1}, v{TM+1}, v{TM+4}")
    allreduce32(f"v{TM+1}", f"v{TM+2}")
    a(f"v_mul_f32 v{TM+1}, 0x3ae38e39, v{TM+1}")
    a(f"v_cvt_pk_bf16_f32 v{TM}, v{TM}, v{TM+1}")
    a(f"v_and_b32 v{TM+1}, 0xffff0000, v{TM}")
    a(f"v_lshlrev_b32 v{TM}, 16, v{TM}")
    a(f"v_add_f32 v{TM+1}, 0x3727c5ac, v{TM+1}")
    a(f"v_cvt_pk_bf16_f32 v{TM+1}, v{TM+1}, v{TM+1}"); a(f"v_and_b32 v{TM+1}, 0xffff0000, v{TM+1}")
    a(f"v_sqrt_f32 v{TM+1}, v{TM+1}")
    a(f"v_cvt_pk_bf16_f32 v{TM+1}, v{TM+1}, v{TM+1}"); a(f"v_and_b32 v{TM+1}, 0xffff0000, v{TM+1}")
    a(f"v_rcp_f32 v{TM+2}, v{TM+1}")
    for k in range(9):
        e0, e1 = EX + 2*k, EX + 2*k + 1
        a(f"v_sub_f32 v{e0}, v{e0}, v{TM}"); a(f"v_sub_f32 v{e1}, v{e1}, v{TM}")
        a(f"v_cvt_pk_bf16_f32 v{TM+3}, v{e0}, v{e1}")
        a(f"v_lshlrev_b32 v{e0}, 16, v{TM+3}"); a(f"v_and_b32 v{e1}, 0xffff0000, v{TM+3}")
        a(f"v_mul_f32 v{TM+4}, v{e0}, v{TM+2}"); a(f"v_mul_f32 v{TM+5}, v{e1}, v{TM+2}")
        a(f"v_fma_f32 v{e0}, -v{TM+4}, v{TM+1}, v{e0}"); a(f"v_fma_f32 v{e1}, -v{TM+5}, v{TM+1}, v{e1}")
        a(f"v_fmac_f32 v{TM+4}, v{e0}, v{TM+2}"); a(f"v_fmac_f32 v{TM+5}, v{e1}, v{TM+2}")
        a(f"v_cvt_pk_bf16_f32 v{e0}, v{TM+4}, v{TM+4}"); a(f"v_cvt_pk_bf16_f32 v{e1}, v{TM+5}, v{TM+5}")
        a(f"ds_write_b32 v7, v{e0} offset:{8*k}"); a(f"ds_write_b32 v8, v{e1} offset:{8*k}")
    if cfg.emode == "s": a("s_waitcnt lgkmcnt(0)"); a("v_mov_b32 v16, s99")
    make_tag("v16", "v17", f"v{TM}")
    stamp(3)
    def gemv_unit(dreg_list, pair, accs, first):
        for w in range(4): a(f"v_and_b32 v{BB+w}, v{pair}, v{12+w}")
        for w in range(4): a(f"v_and_b32 v{BB+4+w}, v{pair+1}, v{12+w}")
        for d, (d1, d2) in zip(dreg_list, accs):
            c1 = "0" if first else f"v[{d1}:{d1+3}]"; c2 = "0" if first else f"v[{d2}:{d2+3}]"
            a(f"v_mfma_f32_16x16x32_bf16 v[{d1}:{d1+3}], v[{d}:{d+3}], v[{BB}:{BB+3}], {c1}")
            a(f"v_mfma_f32_16x16x32_bf16 v[{d2}:{d2+3}], v[{d}:{d+3}], v[{BB+4}:{BB+7}], {c2}")
    def zsel(d1, d2):
        for e in range(4): a(f"v_cndmask_b32_e64 v{d1+e}, v{d2+e}, v{d1+e}, s[50:51]")
    a("s_mul_i32 s28, s56, 576"); a("s_lshl_b32 s29, s36, 5"); a("s_add_u32 s28, s28, s29"); a("v_add_u32 v6, s28, v5")
    for i in range(4): a(f"ds_read_b64 v[{TP+2*i}:{TP+2*i+1}], v6 offset:{128*i}")
    a("s_mul_i32 s28, s56, 576"); a("s_lshl_b32 s29, s36, 4"); a("s_add_u32 s28, s28, s29"); a("s_add_u32 s28, s28, 512"); a("v_add_u32 v6, s28, v19")
    a(f"ds_read_b64 v[{TP+8}:{TP+9}], v6")
    a("s_waitcnt vmcnt(0)")
    a("s_waitcnt lgkmcnt(0)")
    for i in range(5):
        gemv_unit([WQD + 4*i], TP + 2*i, [(AC, AC + 4)], i == 0)
    zsel(AC, AC + 4)
    a("v_lshlrev_b32 v18, 4, v1")
    a("s_lshl_b32 s28, s36, 10"); a(f"s_add_u32 s28, s28, {LDS_R1}"); a("v_add_u32 v6, s28, v18")
    a(f"ds_write_b128 v6, v[{AC}:{AC+3}]")
    arrive_rtn(C_WQ, "v10", "v11", f"v{TM}", "s49")
    Lnq = lab("noqpub")
    a("s_cmp_lg_u32 s49, 3"); a(f"s_cbranch_scc1 {Lnq}")
    a("v_and_b32 v6, 31, v1"); a("v_lshlrev_b32 v6, 4, v6"); a("v_lshrrev_b32 v7, 5, v1"); a("v_lshl_add_u32 v6, v7, 3, v6"); a(f"v_add_u32 v6, {LDS_R1}, v6")
    for w in range(4):
        for e in range(2):
            a(f"ds_read_b64 v[{EX+4*w+2*e}:{EX+4*w+2*e+1}], v6 offset:{1024*w+512*e}")
    a("v_lshrrev_b32 v8, 3, v1"); a("v_and_b32 v8, 1, v8"); a("v_lshlrev_b32 v8, 9, v8"); a("v_lshl_add_u32 v8, v7, 8, v8")
    a("v_lshrrev_b32 v9, 4, v1"); a("v_and_b32 v9, 1, v9"); a("v_lshl_add_u32 v8, v9, 7, v8")
    a("v_and_b32 v9, 7, v1"); a("v_lshl_add_u32 v8, v9, 4, v8")
    a("s_lshl_b32 s28, s97, 10"); a(f"s_add_u32 s28, s28, {WS_QB}"); a("v_add_u32 v8, s28, v8")
    a("s_waitcnt lgkmcnt(0)")
    for st in range(4):
        a(f"v_add_f32 v{EX+4*st}, v{EX+4*st}, v{EX+4*st+2}"); a(f"v_add_f32 v{EX+4*st+1}, v{EX+4*st+1}, v{EX+4*st+3}")
    for st in (0, 8):
        a(f"v_add_f32 v{EX+st}, v{EX+st}, v{EX+st+4}"); a(f"v_add_f32 v{EX+st+1}, v{EX+st+1}, v{EX+st+5}")
    a(f"v_add_f32 v{EX}, v{EX}, v{EX+8}"); a(f"v_add_f32 v{EX+2}, v{EX+1}, v{EX+9}")
    a(f"v_mov_b32 v{EX+1}, v16"); a(f"v_mov_b32 v{EX+3}, v16")
    a(f"global_store_dwordx4 v8, v[{EX}:{EX+3}], s[26:27] sc1")
    a.label(Lnq)
    stamp(4)
    Lnf1 = lab("noffn1")
    a("s_cmp_ge_u32 s98, 216"); a(f"s_cbranch_scc1 {Lnf1}")
    ffn_issue(0, cfg.ffn1)
    a("s_mul_i32 s28, s59, 768"); a("s_lshl_b32 s29, s36, 5"); a("s_add_u32 s28, s28, s29"); a("v_add_u32 v6, s28, v5")
    for i in range(6): a(f"ds_read_b64 v[{TP+2*i}:{TP+2*i+1}], v6 offset:{128*i}")
    a("s_waitcnt lgkmcnt(0)")
    if cfg.wait_ffn1: a("s_waitcnt vmcnt(0)")
    a.label(Lnf1)
    a("s_lshr_b32 s28, s96, 3"); a("s_lshr_b32 s60, s28, 4"); a("s_and_b32 s61, s28, 15")
    a("s_lshl_b32 s28, s61, 2"); a("s_add_u32 s28, s28, s36"); a("s_lshl_b32 s28, s28, 12")
    a("s_lshl_b32 s29, s60, 9"); a("s_add_u32 s28, s28, s29"); a(f"s_add_u32 s28, s28, {WS_QB}")
    a("v_and_b32 v6, 3, v1"); a("v_lshlrev_b32 v6, 10, v6")
    a("v_lshrrev_b32 v7, 2, v1"); a("v_and_b32 v7, 7, v7"); a("v_lshl_add_u32 v6, v7, 4, v6")
    a("v_lshrrev_b32 v8, 5, v1"); a("v_lshl_add_u32 v6, v8, 7, v6"); a("v_add_u32 v6, s28, v6")
    G = EX
    def iss():
        a(f"global_load_dwordx4 v[{G}:{G+3}], v6, s[26:27] sc1")
        a(f"global_load_dwordx4 v[{G+4}:{G+7}], v6, s[26:27] offset:256 sc1")
    def chk():
        a(f"v_bitop3_b32 v{TM}, v{G+1}, v{G+3}, v16 bitop3:0x7e")
        a(f"v_bitop3_b32 v{TM+1}, v{G+5}, v{G+7}, v16 bitop3:0x7e")
        a(f"v_or_b32 v{TM}, v{TM}, v{TM+1}")
    poll_loop(iss, chk, f"v{TM}")
    qv = [G, G + 2, G + 4, G + 6]
    allreduce_quad("v_add_f32", [f"v{r}" for r in qv])
    for r in qv: a(f"v_cvt_pk_bf16_f32 v{r}, v{r}, v{r}")
    a("s_lshr_b32 s28, s36, 1"); a("s_lshl_b32 s28, s28, 8"); a("s_and_b32 s29, s36, 1"); a("s_lshl_b32 s29, s29, 7")
    a("s_add_u32 s28, s28, s29"); a(f"s_add_u32 s28, s28, {LDS_Q}")
    a("v_lshlrev_b32 v8, 6, v8"); a("v_lshl_add_u32 v8, v7, 1, v8"); a("v_add_u32 v8, s28, v8")
    a("s_mov_b32 exec_lo, 0x11111111"); a("s_mov_b32 exec_hi, 0x11111111")
    for r in range(4): a(f"ds_write_b16 v8, v{qv[r]} offset:{16*r}")
    a("s_mov_b64 exec, -1")
    arrive(C_Q, "v10", "v11")
    stamp(5)

    Lnf2 = lab("noffn2")
    a("s_cmp_ge_u32 s98, 216"); a(f"s_cbranch_scc1 {Lnf2}")
    ffn_issue(cfg.ffn1, 6)
    for i in range(6):
        if i >= cfg.ffn1: a(f"s_waitcnt vmcnt({10-2*i})")
        gemv_unit([FD + 8*i, FD + 8*i + 4], TP + 2*i, [(AC, AC + 4), (AC + 8, AC + 12)], i == 0)
    zsel(AC, AC + 4); zsel(AC + 8, AC + 12)
    a("s_lshl_b32 s28, s36, 11"); a(f"s_add_u32 s28, s28, {LDS_R1+4096}"); a("v_add_u32 v6, s28, v18")
    a(f"ds_write_b128 v6, v[{AC}:{AC+3}]"); a(f"ds_write_b128 v6, v[{AC+8}:{AC+11}] offset:1024")
    arrive_rtn(C_GU, "v10", "v11", f"v{TM}", "s49")
    a("s_cmp_lg_u32 s49, 3"); a(f"s_cbranch_scc1 {Lnf2}")
    a("v_and_b32 v6, 31, v1"); a("v_lshlrev_b32 v6, 4, v6"); a("v_lshrrev_b32 v7, 5, v1"); a("v_lshl_add_u32 v6, v7, 10, v6"); a(f"v_add_u32 v6, {LDS_R1+4096}, v6")
    for w in range(4):
        for e in range(2):
            r = FD + 8*w + 4*e
            a(f"ds_read_b128 v[{r}:{r+3}], v6 offset:{2048*w+512*e}")
    a("v_lshrrev_b32 v8, 3, v1"); a("v_and_b32 v8, 1, v8"); a("v_lshlrev_b32 v8, 8, v8"); a("v_lshl_add_u32 v8, v7, 9, v8")
    a("v_lshrrev_b32 v9, 4, v1"); a("v_and_b32 v9, 1, v9"); a("v_lshl_add_u32 v8, v9, 7, v8")
    a("v_and_b32 v9, 7, v1"); a("v_lshl_add_u32 v8, v9, 4, v8")
    a("s_lshl_b32 s28, s98, 10"); a(f"s_add_u32 s28, s28, {WS_GU}"); a("v_add_u32 v8, s28, v8")
    a("s_waitcnt lgkmcnt(0)")
    for w in range(4):
        for e in range(4): a(f"v_add_f32 v{FD+8*w+e}, v{FD+8*w+e}, v{FD+8*w+4+e}")
    for w in (0, 2):
        for e in range(4): a(f"v_add_f32 v{FD+8*w+e}, v{FD+8*w+e}, v{FD+8*w+8+e}")
    for e in range(4): a(f"v_add_f32 v{FD+e}, v{FD+e}, v{FD+16+e}")
    tag_insert(FD, "v17")
    a(f"global_store_dwordx4 v8, v[{FD}:{FD+3}], s[26:27] sc1")
    a.label(Lnf2)
    stamp(6)
    a("s_cmp_lt_u32 s98, 144"); a("s_cbranch_scc1 L_wtype")
    a("s_cmp_lt_u32 s98, 160"); a("s_cbranch_scc1 L_wts_done")

    OA = EX
    def late_loads(sb):
        for t in range(4):
            for cg in range(3):
                r = FD + 12*t + 4*cg
                a(f"global_load_dwordx4 v[{r}:{r+3}], v4, s[{sb}:{sb+1}] offset:{128*cg}{NT}")
            if t < 3:
                a(f"s_add_u32 s{sb}, s{sb}, 9216"); a(f"s_addc_u32 s{sb+1}, s{sb+1}, 0")
    def late_gemv():
        for t in range(4):
            a(f"v_cndmask_b32_e64 v{TP}, v{OA+t}, v{OA+4+t}, s[52:53]")
            a(f"v_cndmask_b32_e64 v{TP+2}, v{OA+4+t}, v{OA+t}, s[52:53]")
            a(f"v_mov_b32_dpp v{TP+1}, v{TP+2} row_ror:8 {DPP}")
            gemv_unit([FD + 12*t + 4*cg for cg in range(3)], TP, [(AC + 8*cg, AC + 8*cg + 4) for cg in range(3)], t == 0)
        for cg in range(3): zsel(AC + 8*cg, AC + 8*cg + 4)
    def late_reduce(nW, sj, sslot):
        a("s_mul_i32 s28, s36, 3072"); a(f"s_add_u32 s28, s28, {LDS_R3}"); a("v_add_u32 v6, s28, v18")
        for cg in range(3): a(f"ds_write_b128 v6, v[{AC+8*cg}:{AC+8*cg+3}] offset:{1024*cg}")
        arrive_rtn(C_LATE, "v10", "v11", f"v{TM}", "s49")
        a(f"s_cmp_lg_u32 s49, {nW-1}"); a("s_cbranch_scc1 L_wts_done")
        a(f"v_add_u32 v6, {LDS_R3}, v18")
        for cg in range(3):
            for w in range(nW):
                r = FD + 16*cg + 4*w
                a(f"ds_read_b128 v[{r}:{r+3}], v6 offset:{3072*w+1024*cg}")
        a("v_lshrrev_b32 v7, 3, v1")
        a("v_and_b32 v8, 1, v7")
        a("v_lshrrev_b32 v7, 1, v7")
        a("v_lshl_add_u32 v7, v7, 1, v8")
        a("s_movk_i32 s28, 10240"); a("v_mul_lo_u32 v7, v7, s28")
        a("v_and_b32 v8, 7, v1"); a("v_lshl_add_u32 v7, v8, 4, v7")
        a(f"s_mul_i32 s28, {sj}, {12*10240}"); a(f"s_lshl_b32 s29, {sslot}, 7"); a("s_add_u32 s28, s28, s29"); a(f"s_add_u32 s28, s28, {WS_FIN}")
        a("v_add_u32 v7, s28, v7")
        for cg in range(3):
            a(f"s_waitcnt lgkmcnt({(2-cg)*nW})")
            r = FD + 16*cg
            for e in range(4): a(f"v_add_f32 v{r+e}, v{r+e}, v{r+4+e}")
            if nW == 4:
                for e in range(4): a(f"v_add_f32 v{r+8+e}, v{r+8+e}, v{r+12+e}")
            for e in range(4): a(f"v_add_f32 v{r+e}, v{r+e}, v{r+8+e}")
        r0, r1, r2 = FD, FD + 16, FD + 32
        for e in range(4): a(f"v_mov_b32 v{r2+4+e}, v{r2+e}")
        for e in range(4): a(f"v_permlane32_swap_b32 v{r0+e}, v{r1+e}")
        for e in range(4): a(f"v_permlane32_swap_b32 v{r2+e}, v{r2+4+e}")
        for e in range(4): a(f"v_add_f32 v{r0+e}, v{r0+e}, v{r1+e}")
        for e in range(4): a(f"v_add_f32 v{r2+e}, v{r2+e}, v{r2+4+e}")
        tag_insert(r0, "v17"); tag_insert(r2, "v17")
        a(f"global_store_dwordx4 v7, v[{r0}:{r0+3}], s[26:27] sc1")
        a(f"v_add_u32 v8, {8*10240}, v7")
        set_exec(0xffffffff, 0)
        a(f"global_store_dwordx4 v8, v[{r2}:{r2+3}], s[26:27] sc1")
        a("s_mov_b64 exec, -1")

    a("; ---- O type ----")
    a("s_sub_u32 s28, s98, 160"); a("s_mul_hi_u32 s62, s28, 0x55555556"); a("s_mul_i32 s29, s62, 3"); a("s_sub_u32 s63, s28, s29")
    a("v_and_b32 v6, 7, v1"); a("v_lshlrev_b32 v6, 4, v6"); a("s_lshl_b32 s28, s62, 8"); a(f"s_add_u32 s28, s28, {WS_ML}"); a("v_add_u32 v6, s28, v6")
    G = XR
    def iss():
        a(f"global_load_dwordx4 v[{G}:{G+3}], v6, s[26:27] sc1")
        a(f"global_load_dwordx4 v[{G+4}:{G+7}], v6, s[26:27] offset:128 sc1")
    def chk():
        tag_check(G, "v17", f"v{TM}", f"v{TM+1}", f"v{TM+2}", True)
        tag_check(G + 4, "v17", f"v{TM}", f"v{TM+1}", f"v{TM+2}", False)
    poll_loop(iss, chk, f"v{TM}", sleep=cfg.sl_ml)
    for bb in range(2):
        g = G + 4*bb
        a(f"v_and_b32 v{g}, s46, v{g}"); a(f"v_and_b32 v{g+1}, s46, v{g+1}")
        a(f"v_mov_b32 v{g+2}, v{g}")
    allreduce8("v_max_f32", [f"v{G+2}", f"v{G+6}"])
    a(f"s_mov_b32 s48, {hex(LOG2E)}")
    for bb in range(2):
        g = G + 4*bb
        a(f"v_sub_f32 v{g}, v{g}, v{g+2}"); a(f"v_mul_f32 v{g}, s48, v{g}"); a(f"v_exp_f32 v{g}, v{g}")
    for bb in range(2):
        g = G + 4*bb
        a(f"v_mul_f32 v{g+1}, v{g+1}, v{g}")
    allreduce8("v_add_f32", [f"v{G+1}", f"v{G+5}"])
    for bb in range(2):
        g = G + 4*bb
        a(f"v_rcp_f32 v{g+2}, v{g+1}")
    for bb in range(2):
        g = G + 4*bb
        a(f"v_mul_f32 v{28+bb}, v{g}, v{g+2}")
    a(f"s_mul_i32 s28, s62, {128*1152}"); a("s_mul_i32 s29, s63, 384"); a("s_add_u32 s28, s28, s29"); a(f"s_mul_i32 s29, s36, {32*1152}"); a("s_add_u32 s28, s28, s29")
    a("s_add_u32 s12, s12, s28"); a("s_addc_u32 s13, s13, 0")
    a("s_lshr_b32 s28, s62, 1"); a("s_lshl_b32 s28, s28, 13"); a("s_and_b32 s29, s62, 1"); a("s_lshl_b32 s29, s29, 9"); a("s_add_u32 s28, s28, s29")
    a("s_lshl_b32 s29, s36, 7"); a("s_add_u32 s28, s28, s29"); a(f"s_add_u32 s28, s28, {WS_OB}")
    a("v_and_b32 v6, 7, v1"); a("v_lshlrev_b32 v6, 10, v6"); a("v_lshrrev_b32 v7, 3, v1"); a("v_lshl_add_u32 v6, v7, 4, v6"); a("v_add_u32 v6, s28, v6")
    a(f"v_add_u32 v7, {16*8*1024}, v6")
    spin_lds(C_V, 8, "v10", f"v{TM}")
    a(f"s_setprio {cfg.prio_late}")
    stamp(7)
    late_loads(12)
    def iss():
        a(f"global_load_dwordx4 v[{OA}:{OA+3}], v6, s[26:27] sc1")
        a(f"global_load_dwordx4 v[{OA+4}:{OA+7}], v7, s[26:27] sc1")
    def chk():
        tag_check(OA, "v17", f"v{TM}", f"v{TM+1}", f"v{TM+2}", True)
        tag_check(OA + 4, "v17", f"v{TM}", f"v{TM+1}", f"v{TM+2}", False)
    poll_loop(iss, chk, f"v{TM}")
    stamp(8)
    tag_strip(OA); tag_strip(OA + 4)
    for bb in range(2):
        for e in range(4): a(f"v_mul_f32 v{OA+4*bb+e}, v{OA+4*bb+e}, v{28+bb}")
    allreduce8("v_add_f32", [f"v{OA+e}" for e in range(8)])
    for e in range(8): a(f"v_cvt_pk_bf16_f32 v{OA+e}, v{OA+e}, v{OA+e}")
    late_gemv()
    late_reduce(4, "s63", "s62")
    stamp(9)
    a("s_branch L_wts_done")

    a.label("L_wtype")
    a("; ---- W type ----")
    a("s_cmp_eq_u32 s36, 3"); a("s_cbranch_scc1 L_final")
    a("s_mul_i32 s28, s58, 3"); a("s_add_u32 s28, s28, s36"); a("s_lshr_b32 s29, s28, 1"); a("s_and_b32 s28, s28, 1")
    a("s_mul_i32 s29, s29, 3072"); a("s_lshl_b32 s28, s28, 7"); a("s_add_u32 s28, s28, s29"); a(f"s_add_u32 s28, s28, {WS_GU}")
    a("v_and_b32 v6, 3, v1"); a("v_cmp_ne_u32 s[56:57], 3, v6"); a("v_cndmask_b32_e64 v6, 0, v6, s[56:57]")
    a("v_lshlrev_b32 v6, 10, v6")
    a("v_lshrrev_b32 v7, 2, v1"); a("v_and_b32 v7, 1, v7"); a("v_lshl_add_u32 v6, v7, 9, v6")
    a("v_lshrrev_b32 v7, 3, v1"); a("v_lshl_add_u32 v6, v7, 4, v6"); a("v_add_u32 v6, s28, v6")
    def iss():
        a(f"global_load_dwordx4 v[{OA}:{OA+3}], v6, s[26:27] sc1")
        a(f"global_load_dwordx4 v[{OA+4}:{OA+7}], v6, s[26:27] offset:256 sc1")
    def chk():
        tag_check(OA, "v17", f"v{TM}", f"v{TM+1}", f"v{TM+2}", True)
        tag_check(OA + 4, "v17", f"v{TM}", f"v{TM+1}", f"v{TM+2}", False)
    poll_loop(iss, chk, f"v{TM}", sleep=cfg.sl_gu)
    tag_strip(OA); tag_strip(OA + 4)
    for e in range(8): a(f"v_cndmask_b32_e64 v{OA+e}, 0, v{OA+e}, s[56:57]")
    allreduce_quad("v_add_f32", [f"v{OA+e}" for e in range(8)])
    OB2 = OA + 8
    for e in range(8): a(f"v_mov_b32_dpp v{OB2+e}, v{OA+e} row_half_mirror {DPP}")
    a("s_mov_b32 s56, 0xf0f0f0f0"); a("s_mov_b32 s57, 0xf0f0f0f0")
    a(f"s_mov_b32 s48, {hex(LOG2E)}")
    for e in range(8):
        g, u = TM, TM + 1
        a(f"v_cndmask_b32_e64 v{g}, v{OA+e}, v{OB2+e}, s[56:57]")
        a(f"v_cndmask_b32_e64 v{u}, v{OB2+e}, v{OA+e}, s[56:57]")
        a(f"v_cvt_pk_bf16_f32 v{g}, v{g}, v{u}")
        a(f"v_and_b32 v{u}, 0xffff0000, v{g}"); a(f"v_lshlrev_b32 v{g}, 16, v{g}")
        a(f"v_mul_f32 v{TM+2}, s48, v{g}"); a(f"v_exp_f32 v{TM+2}, -v{TM+2}"); a(f"v_add_f32 v{TM+2}, 1.0, v{TM+2}")
        a(f"v_rcp_f32 v{TM+3}, v{TM+2}")
        a(f"v_mul_f32 v{TM+4}, v{g}, v{TM+3}")
        a(f"v_fma_f32 v{TM+5}, -v{TM+4}, v{TM+2}, v{g}"); a(f"v_fmac_f32 v{TM+4}, v{TM+5}, v{TM+3}")
        a(f"v_cvt_pk_bf16_f32 v{TM+4}, v{TM+4}, v{TM+4}"); a(f"v_and_b32 v{TM+4}, 0xffff0000, v{TM+4}")
        a(f"v_mul_f32 v{TM+4}, v{TM+4}, v{u}")
        a(f"v_cvt_pk_bf16_f32 v{OA+e}, v{TM+4}, v{TM+4}")
    a(f"s_mul_i32 s28, s58, {96*1152}"); a("s_mul_i32 s29, s59, 384"); a("s_add_u32 s28, s28, s29"); a(f"s_mul_i32 s29, s36, {32*1152}"); a("s_add_u32 s28, s28, s29")
    a("s_add_u32 s20, s20, s28"); a("s_addc_u32 s21, s21, 0")
    spin_lds(C_V, 8, "v10", f"v{TM}")
    a(f"s_setprio {cfg.prio_late}")
    stamp(7)
    late_loads(20)
    a("s_waitcnt vmcnt(0)")
    stamp(8)
    late_gemv()
    a("s_add_u32 s62, s58, 32")
    late_reduce(3, "s59", "s62")
    stamp(9)
    a("s_branch L_wts_done")

    a.label("L_final")
    a("s_cmp_ge_u32 s98, 36"); a("s_cbranch_scc1 L_wts_done")
    a("s_mul_i32 s28, s98, 10240"); a(f"s_add_u32 s28, s28, {WS_FIN}"); a("v_add_u32 v6, s28, v18")
    a("v_add_u32 v7, 4096, v6"); a("v_add_u32 v8, 8192, v6")
    a("s_and_b32 s28, s98, 1"); a("s_mul_i32 s28, s28, 576"); a("s_lshr_b32 s29, s98, 1"); a("s_lshl_b32 s29, s29, 5"); a("s_add_u32 s28, s28, s29")
    a("v_and_b32 v9, 31, v1"); a("v_add_u32 v9, s28, v9"); a("v_lshlrev_b32 v9, 1, v9")
    a("global_load_ushort v19, v9, s[4:5]")
    if cfg.fin_wait_v: spin_lds(C_V, 8, "v10", f"v{TM}")
    G = FD
    def iss():
        for t in range(6):
            base, off = (("v7", 1024*t) if t < 4 else ("v8", 1024*(t-4)))
            a(f"global_load_dwordx4 v[{G+4*t}:{G+4*t+3}], {base}, s[26:27] offset:{off} sc1")
    def chk():
        for t in range(6): tag_check(G + 4*t, "v17", f"v{TM}", f"v{TM+1}", f"v{TM+2}", t == 0)
    poll_loop(iss, chk, f"v{TM}", sleep=cfg.sl_fin)
    stamp(7)
    def reduce_slots(n):
        for t in range(n): tag_strip(G + 4*t)
        for t in range(1, n):
            for e in range(4): a(f"v_add_f32 v{G+e}, v{G+e}, v{G+4*t+e}")
        for e in range(4): a(f"v_add_f32_dpp v{G+e}, v{G+e}, v{G+e} row_ror:8 {DPP}")
        allreduce_x16_x32("v_add_f32", [f"v{G+e}" for e in range(4)], [f"v{G+4+e}" for e in range(4)])
        a(f"v_cndmask_b32_e64 v{G}, v{G}, v{G+1}, s[52:53]"); a(f"v_cndmask_b32_e64 v{G+2}, v{G+2}, v{G+3}, s[52:53]")
        a(f"v_cndmask_b32_e64 v{G}, v{G}, v{G+2}, s[54:55]")
    reduce_slots(6)
    a(f"s_mov_b32 s48, {hex(LOG2E)}")
    a(f"v_cvt_pk_bf16_f32 v{G}, v{G}, v{G}"); a(f"v_and_b32 v{G}, 0xffff0000, v{G}")
    a(f"v_mul_f32 v{TM+2}, s48, v{G}"); a(f"v_exp_f32 v{TM+2}, -v{TM+2}"); a(f"v_add_f32 v{TM+2}, 1.0, v{TM+2}")
    a(f"v_rcp_f32 v{TM+3}, v{TM+2}"); a(f"v_mul_f32 v{TM+4}, v{G}, v{TM+3}")
    a(f"v_fma_f32 v{TM+5}, -v{TM+4}, v{TM+2}, v{G}"); a(f"v_fmac_f32 v{TM+4}, v{TM+5}, v{TM+3}")
    a(f"v_cvt_pk_bf16_f32 v{TM+4}, v{TM+4}, v{TM+4}"); a(f"v_and_b32 v20, 0xffff0000, v{TM+4}")
    a("v_lshlrev_b32 v19, 16, v19")
    def iss():
        for t in range(4):
            a(f"global_load_dwordx4 v[{G+4*t}:{G+4*t+3}], v6, s[26:27] offset:{1024*t} sc1")
    def chk():
        for t in range(4): tag_check(G + 4*t, "v17", f"v{TM}", f"v{TM+1}", f"v{TM+2}", t == 0)
    poll_loop(iss, chk, f"v{TM}")
    stamp(8)
    reduce_slots(4)
    a(f"v_cvt_pk_bf16_f32 v{G}, v{G}, v{G}"); a(f"v_and_b32 v{G}, 0xffff0000, v{G}")
    a(f"v_mul_f32 v{G}, v{G}, v20"); a(f"v_cvt_pk_bf16_f32 v{G}, v{G}, v{G}"); a(f"v_and_b32 v{G}, 0xffff0000, v{G}")
    a(f"v_add_f32 v{G}, v19, v{G}"); a(f"v_cvt_pk_bf16_f32 v{G}, v{G}, v{G}")
    set_exec(0xffffffff, 0)
    a(f"global_store_short v9, v{G}, s[22:23]")
    a("s_mov_b64 exec, -1")
    a("s_cmp_lg_u32 s98, 0"); a("s_cbranch_scc1 L_wts_done")
    a(f"v_mov_b32 v{TM}, 0")
    a("s_mov_b64 exec, 1")
    a(f"global_store_dword v{TM}, v16, s[26:27] sc1")
    a("s_mov_b64 exec, -1")
    a.label("L_wts_done")
    stamp(10)
    dump_stamps(12)
    a.label("L_end")
    a("s_endpgm")
    return a

HEADER = """; Kernarg layout (96 bytes, pointers only, base s[0:1]):
; @launch grid=(256,1,1) block=(768,1,1) lds=%d
.amdgcn_target "amdgcn-amd-amdhsa--gfx950"
.text
.globl %s
.p2align 8
.type %s,@function
"""
FOOTER = """.section .rodata,"a"
.p2align 6
.amdhsa_kernel %s
  .amdhsa_next_free_vgpr 168
  .amdhsa_next_free_sgpr 102
  .amdhsa_accum_offset 168
  .amdhsa_group_segment_fixed_size 0
  .amdhsa_kernarg_size 96
  .amdhsa_user_sgpr_count 2
  .amdhsa_user_sgpr_kernarg_segment_ptr 1
  .amdhsa_system_sgpr_workgroup_id_x 1
  .amdhsa_float_denorm_mode_32 3
.end_amdhsa_kernel
"""
def build(cfg):
    a = gen(cfg)
    lds = (LDS_END + 255) // 256 * 256
    return HEADER % (lds, KNAME, KNAME) + a.text() + FOOTER % KNAME

if __name__ == "__main__":
    out = sys.argv[1] if len(sys.argv) > 1 else "k.s"
    kw = eval(sys.argv[2]) if len(sys.argv) > 2 else {}
    open(out, "w").write(build(Cfg(**kw)))
```

```python
import sys, json
sys.path.insert(0, 'work')
from asmb import Asm

KNAME = "recurrent_scan__sliding_block_cached__glu_gated_swiglu__decode_kernel"

LDS_K  = 0
LDS_T  = 131072
LDS_Q  = LDS_T + 4608
LDS_R1 = LDS_Q + 512
LDS_R2 = LDS_K + 16384
LDS_R3 = LDS_K
LDS_M  = LDS_R1 + 12288
LDS_C  = LDS_M + 128
LDS_END = LDS_C + 64
C_WQ, C_GU, C_Q, C_M, C_L, C_V, C_O, C_LATE = [4*i for i in range(8)]

WS_QB  = 0x010000
WS_GU  = 0x060000
WS_ML  = 0x0A0000
WS_OB  = 0x0B0000
WS_FIN = 0x100000
WS_DBG = 0x200000

LOG2E = 0x3fb8aa3b
SCALE = 0x3db504f3
SPIN_MAX = 1 << 22

class Cfg:
    def __init__(self, **kw):
        self.Wk = 4; self.Wv = 4; self.extra = 2; self.trig = 16; self.rot = 1
        self.attmap = 'id'; self.rmap = 'id'; self.emode = 's'; self.dbgout = False; self.masked = True; self.wait_ffn1 = True; self.bar_first = True; self.sl_gu = 4; self.sl_ml = 4; self.sl_fin = 2; self.fin_wait_v = True; self.ffn1 = 3; self.ml_at = 3; self.prio_k = 2; self.prio_v1 = 1; self.prio_v2 = 0; self.v2_at = 8; self.prio_tail = 3; self.prio_w = 3; self.prio_late = 3; self.stamps = False; self.nt = " nt"
        self.spin_max = SPIN_MAX
        self.__dict__.update(kw)

def gen(cfg):
    assert cfg.trig > cfg.Wk + cfg.extra
    a = Asm()
    NT = cfg.nt
    uid = [0]
    def lab(p):
        uid[0] += 1
        return f"L_{p}_{uid[0]}"

    nstamp = [0]
    def stamp(idx):
        if cfg.stamps:
            a(f"s_memrealtime s[{64+2*idx}:{65+2*idx}]")
    def dump_dbg(slots):
        a("s_waitcnt vmcnt(0) lgkmcnt(0)")
        a("s_mov_b64 exec, 1")
        a("v_mov_b32 v2, 0")
        a("s_not_b32 s28, s64"); a("v_mov_b32 v4, s28")
        a("global_atomic_umax v2, v4, s[24:25]")
        for word, idx in slots:
            a(f"v_mov_b32 v4, s{64+2*idx}")
            a(f"global_atomic_umax v2, v4, s[24:25] offset:{4*word}")
    def dump_stamps(n):
        if cfg.dbgout:
            dump_dbg([(1,2),(2,3),(3,4),(4,5),(5,6)] if n == 8 else [(6,2),(7,4),(8,5),(9,6),(10,8),(11,9),(15,10)])
            return
        if not cfg.stamps: return
        a("s_waitcnt vmcnt(0) lgkmcnt(0)")
        a("s_mov_b64 exec, 1")
        a("s_lshl_b32 s28, s2, 4"); a("s_add_u32 s28, s28, s3"); a("s_lshl_b32 s28, s28, 7")
        a(f"s_add_u32 s28, s28, {WS_DBG}")
        a("v_mov_b32 v2, s28")
        for q in range(0, 16, 4):
            for e in range(4):
                a(f"v_mov_b32 v{4+e}, s{64+2*(q+e)}")
            a(f"global_store_dwordx4 v2, v[4:7], s[26:27] offset:{q*4}")
        a("s_getreg_b32 s28, hwreg(HW_REG_XCC_ID)")
        a("v_mov_b32 v4, s28")
        a("global_store_dword v2, v4, s[26:27] offset:64")

    def spin_lds(cnt_off, target, vaddr, vtmp, stmp="s29", sto="s30"):
        L = lab("spin"); D = lab("spind")
        a(f"s_mov_b32 {sto}, 0")
        a.label(L)
        a(f"ds_read_b32 {vtmp}, {vaddr} offset:{cnt_off}")
        a("s_waitcnt lgkmcnt(0)")
        a(f"v_readfirstlane_b32 {stmp}, {vtmp}")
        a(f"s_cmp_ge_u32 {stmp}, {target}")
        a(f"s_cbranch_scc1 {D}")
        a(f"s_add_u32 {sto}, {sto}, 1")
        a(f"s_cmp_lt_u32 {sto}, {cfg.spin_max}")
        a(f"s_cbranch_scc1 {L}")
        a.label(D)

    def set_exec(lo, hi):
        a(f"s_mov_b32 exec_lo, {hex(lo)}"); a(f"s_mov_b32 exec_hi, {hex(hi)}")

    def arrive_rtn(cnt_off, vaddr, vone, vtmp, sdst):
        a("s_mov_b64 exec, 1")
        a(f"ds_add_rtn_u32 {vtmp}, {vaddr}, {vone} offset:{cnt_off}")
        a("s_waitcnt lgkmcnt(0)")
        a(f"v_readfirstlane_b32 {sdst}, {vtmp}")
        a("s_mov_b64 exec, -1")

    def arrive(cnt_off, vaddr, vone):
        a("s_mov_b64 exec, 1")
        a(f"ds_add_u32 {vaddr}, {vone} offset:{cnt_off}")
        a("s_mov_b64 exec, -1")

    DPP = "row_mask:0xf bank_mask:0xf"
    def allreduce8(op, regs, tmp=None):
        for r in regs: a(f"{op}_dpp {r}, {r}, {r} quad_perm:[1,0,3,2] {DPP}")
        for r in regs: a(f"{op}_dpp {r}, {r}, {r} quad_perm:[2,3,0,1] {DPP}")
        for r in regs: a(f"{op}_dpp {r}, {r}, {r} row_half_mirror {DPP}")
    def allreduce_quad(op, regs):
        for r in regs: a(f"{op}_dpp {r}, {r}, {r} quad_perm:[1,0,3,2] {DPP}")
        for r in regs: a(f"{op}_dpp {r}, {r}, {r} quad_perm:[2,3,0,1] {DPP}")
    def allreduce_x16_x32(op, regs, tmps):
        for r, t in zip(regs, tmps): a(f"v_mov_b32 {t}, {r}")
        for r, t in zip(regs, tmps): a(f"v_permlane16_swap_b32 {r}, {t}")
        for r, t in zip(regs, tmps): a(f"{op} {r}, {r}, {t}")
        for r, t in zip(regs, tmps): a(f"v_mov_b32 {t}, {r}")
        for r, t in zip(regs, tmps): a(f"v_permlane32_swap_b32 {r}, {t}")
        for r, t in zip(regs, tmps): a(f"{op} {r}, {r}, {t}")

    def tag_consts():
        for i in range(4): a(f"s_mov_b32 s{40+i}, {hex(0x07060500+i)}")
        a("s_mov_b32 s44, 0x0c0c0400"); a("s_mov_b32 s45, 0x04000c0c"); a("s_mov_b32 s46, 0xffffff00")
    def make_tag(vE, vT, t1):
        a(f"v_add_u32 {vE}, 1, {vE}")
        a(f"s_mov_b32 s28, 0x9E3779B1")
        a(f"v_mul_lo_u32 {vT}, {vE}, s28")
        a(f"v_not_b32 {t1}, {vT}")
        a(f"v_and_b32 {t1}, 1, {t1}")
        a(f"v_lshlrev_b32 {t1}, 8, {t1}")
        a(f"v_and_b32 {vT}, 0xfffffeff, {vT}")
        a(f"v_or_b32 {vT}, {vT}, {t1}")
    def tag_insert(base, vT):
        for i in range(4): a(f"v_perm_b32 v{base+i}, v{base+i}, {vT}, s{40+i}")
    def tag_check(base, vT, vacc, t1, t2, first):
        a(f"v_perm_b32 {t1}, v{base+1}, v{base}, s44")
        a(f"v_perm_b32 {t2}, v{base+3}, v{base+2}, s45")
        if first:
            a(f"v_bitop3_b32 {vacc}, {t1}, {t2}, {vT} bitop3:0x56")
        else:
            a(f"v_bitop3_b32 {t1}, {t1}, {t2}, {vT} bitop3:0x56")
            a(f"v_or_b32 {vacc}, {vacc}, {t1}")
    def tag_strip(base):
        for i in range(4): a(f"v_and_b32 v{base+i}, s46, v{base+i}")
    def poll_loop(issue, check, vacc, sleep=0):
        L = lab("poll"); D = lab("polld")
        a("s_mov_b32 s30, 0")
        a.label(L)
        issue()
        a("s_waitcnt vmcnt(0)")
        check()
        a(f"v_cmp_ne_u32 vcc, 0, {vacc}")
        a(f"s_cbranch_vccz {D}")
        if cfg.masked: a("s_mov_b64 exec, vcc")
        if sleep: a(f"s_sleep {sleep}")
        a("s_add_u32 s30, s30, 1")
        a(f"s_cmp_lt_u32 s30, {cfg.spin_max}")
        a(f"s_cbranch_scc1 {L}")
        a.label(D)
        if cfg.masked: a("s_mov_b64 exec, -1")

    a.raw(f"{KNAME}:")
    a("s_cmp_ge_u32 s2, 256")
    a("s_cbranch_scc1 L_end")
    if cfg.dbgout:
        for i in range(1, 16): a(f"s_mov_b32 s{64+2*i}, 0")
    stamp(0)
    a("s_load_dwordx16 s[4:19], s[0:1], 0")
    a("s_load_dwordx8 s[20:27], s[0:1], 64")
    a("v_lshrrev_b32 v2, 6, v0")
    a("v_and_b32 v1, 63, v0")
    a("v_readfirstlane_b32 s3, v2")
    if cfg.attmap == "id": a("s_mov_b32 s96, s2")
    elif cfg.attmap == "T":
        a("s_and_b32 s96, s2, 31"); a("s_lshl_b32 s96, s96, 3"); a("s_lshr_b32 s97, s2, 5"); a("s_add_u32 s96, s96, s97")
    a("s_mov_b32 s97, s2")
    if cfg.rmap == "id": a("s_mov_b32 s98, s2")
    elif cfg.rmap == "odd":
        a("s_sub_u32 s98, s2, 176"); a("s_lshr_b32 s98, s98, 1"); a("s_and_b32 s28, s2, 1"); a("s_mul_i32 s28, s28, 40")
        a("s_add_u32 s98, s98, s28"); a("s_add_u32 s98, s98, 176")
        a("s_cmp_lt_u32 s2, 176"); a("s_cselect_b32 s98, s2, s98")
    a("v_and_b32 v3, 7, v1")
    a("v_and_b32 v4, 1, v3"); a("v_lshlrev_b32 v4, 4, v4"); a("v_mov_b32 v5, 0xffff"); a("v_lshlrev_b32 v4, v4, v5")
    a("v_lshrrev_b32 v3, 1, v3")
    for w in range(4):
        a(f"v_cmp_eq_u32 vcc, {w}, v3"); a(f"v_cndmask_b32 v{12+w}, 0, v4, vcc")
    a(f"v_mov_b32 v10, {LDS_C}")
    a("v_mov_b32 v11, 1")
    tag_consts()
    Lni = lab("noinit")
    a("s_cmp_lg_u32 s3, 0"); a(f"s_cbranch_scc1 {Lni}")
    a("v_lshlrev_b32 v3, 2, v1"); a(f"v_add_u32 v3, {LDS_C}, v3"); a("v_mov_b32 v4, 0")
    set_exec(0xffff, 0); a("ds_write_b32 v3, v4"); a("s_mov_b64 exec, -1")
    a.label(Lni)
    a("s_cmp_ge_u32 s3, 8"); a("s_cbranch_scc1 L_wts")

    vE, vT = "v16", "v17"
    vKA = [2, 3, 4, 5]; vVA = 6; vKR = [7, 8, 9, 18]; vQA = 19
    QB = 20; SB = 36; KF = 52; ACC = 84; BT = 88; VB = 96; TM = 160
    a(f"s_setprio {cfg.prio_k}")
    a("v_lshrrev_b32 v20, 4, v1"); a("v_and_b32 v21, 15, v1")
    a("v_lshlrev_b32 v22, 2, v20"); a("v_lshlrev_b32 v23, 8, v20")
    for r in range(4):
        a(f"v_add_u32 v24, {r}, v22"); a("v_xor_b32 v24, v24, v21"); a(f"v_lshl_add_u32 v{vKA[r]}, v24, 4, v23")
    a(f"v_lshlrev_b32 v{vVA}, 4, v1")
    a("v_lshrrev_b32 v22, 2, v21"); a("v_and_b32 v23, 3, v21")
    a("v_lshl_add_u32 v24, v23, 2, v22"); a("v_lshlrev_b32 v24, 8, v24")
    a("v_xor_b32 v25, v23, v20")
    a("s_lshl_b32 s28, s3, 14"); a("v_add_u32 v24, s28, v24")
    a("v_lshl_add_u32 v24, v25, 4, v24")
    for jj in range(4):
        a(f"v_xor_b32 v26, {jj}, v22"); a(f"v_lshl_add_u32 v{vKR[jj]}, v26, 6, v24")
    a("v_lshrrev_b32 v22, 3, v1"); a("v_and_b32 v22, 1, v22"); a("v_lshlrev_b32 v22, 8, v22")
    a(f"v_lshl_add_u32 v{vQA}, v20, 4, v22"); a(f"v_add_u32 v{vQA}, {LDS_Q}, v{vQA}")
    a(f"v_mov_b32 v{TM}, 0")
    a("s_waitcnt lgkmcnt(0)")
    a("s_lshr_b32 s28, s96, 3"); a("s_and_b32 s29, s96, 7")
    a("s_lshl_b32 s28, s28, 23"); a("s_lshl_b32 s29, s29, 17"); a("s_add_u32 s28, s28, s29"); a("s_add_u32 s28, s28, 0x700000")
    a("s_add_u32 s6, s6, s28"); a("s_addc_u32 s7, s7, 0"); a("s_add_u32 s8, s8, s28"); a("s_addc_u32 s9, s9, 0")
    a(f"s_mul_i32 s31, s96, {cfg.rot}"); a("s_add_u32 s31, s31, s3")
    a("s_lshl_b32 s37, s3, 14")
    vmq = []
    def vm_issue(tag): vmq.append(tag)
    def vm_wait(tag):
        idx = max(i for i, t in enumerate(vmq) if t == tag)
        n = len(vmq) - 1 - idx
        a(f"s_waitcnt vmcnt({n})")
    def vm_window(W):
        a(f"s_waitcnt vmcnt({W-1})")
    if cfg.bar_first:
        a("s_barrier")
    if cfg.emode == "s": a("s_load_dword s99, s[26:27], 0")
    else:
        a(f"global_load_dword {vE}, v{TM}, s[26:27]" + (" sc1" if cfg.emode == "sc1" else "")); vm_issue("E")
    def tile_off(u):
        a(f"s_add_u32 s32, s31, {8*u}"); a("s_and_b32 s32, s32, 31"); a("s_lshl_b32 s32, s32, 12")
    nissued = [1]
    def issue_k(u, r):
        if r == 0:
            tile_off(u)
            a("s_add_u32 s34, s6, s32"); a("s_addc_u32 s35, s7, 0")
            a(f"s_add_u32 s33, s37, {4096*u}"); a("s_mov_b32 m0, s33")
        a(f"global_load_lds_dwordx4 v{vKA[r]}, s[34:35] offset:{1024*r}{NT}"); vm_issue(("k", u, r))
    def issue_v(i):
        u, r = divmod(i, 4)
        if r == 0:
            tile_off(u)
            a("s_add_u32 s38, s8, s32"); a("s_addc_u32 s39, s9, 0")
        a(f"global_load_dwordx4 v[{VB+4*i}:{VB+4*i+3}], v{vVA}, s[38:39] offset:{1024*r}{NT}"); vm_issue(("v", i))
        if i == cfg.trig - 1:
            arrive(C_V, "v10", "v11")
        if i == cfg.v2_at:
            a(f"s_setprio {cfg.prio_v2}")
    kops = [(u, r) for u in range(4) for r in range(4)]
    bar_done = False
    for i, (u, r) in enumerate(kops):
        if i >= cfg.Wk: vm_window(cfg.Wk)
        if r == 0 and u > 0: stamp(6 + u)
        issue_k(u, r)
        if i == cfg.Wk - 1 and not cfg.bar_first:
            a("s_waitcnt lgkmcnt(0)"); a("s_barrier")
    stamp(1)
    a(f"s_setprio {cfg.prio_v1}")
    nv = 0
    for i in range(cfg.Wk):
        vm_window(cfg.Wk); issue_v(nv); nv += 1
    vm_wait(("k", 3, 3))
    for i in range(cfg.extra):
        issue_v(nv); nv += 1
    stamp(2)
    if cfg.emode == "s": a("s_waitcnt lgkmcnt(0)"); a(f"v_mov_b32 {vE}, s99")
    make_tag(vE, vT, f"v{TM}")
    spin_lds(C_Q, 4, "v10", f"v{TM}")
    stamp(3)
    for jj in range(4):
        a(f"ds_read_b128 v[{QB+4*jj}:{QB+4*jj+3}], v{vQA} offset:{64*jj}")
    def kread(u):
        b = KF + 16*(u & 1)
        for jj in range(4):
            a(f"ds_read_b128 v[{b+4*jj}:{b+4*jj+3}], v{vKR[jj]} offset:{4096*u}")
    kread(0); kread(1)
    for u in range(4):
        b = KF + 16*(u & 1)
        a("s_waitcnt lgkmcnt(4)" if u < 3 else "s_waitcnt lgkmcnt(0)")
        for jj in range(4):
            c = "0" if jj == 0 else f"v[{SB+4*u}:{SB+4*u+3}]"
            a(f"v_mfma_f32_16x16x32_bf16 v[{SB+4*u}:{SB+4*u+3}], v[{b+4*jj}:{b+4*jj+3}], v[{QB+4*jj}:{QB+4*jj+3}], {c}")
        if u + 2 < 4: kread(u + 2)
    a(f"s_mov_b32 s47, {hex(SCALE)}")
    for u in range(4):
        for h in range(2):
            s0 = SB + 4*u + 2*h
            t = TM + 2*h
            a(f"v_cvt_pk_bf16_f32 v{t}, v{s0}, v{s0+1}")
            a(f"v_lshlrev_b32 v{s0}, 16, v{t}")
            a(f"v_and_b32 v{s0+1}, 0xffff0000, v{t}")
            a(f"v_mul_f32 v{s0}, s47, v{s0}")
            a(f"v_mul_f32 v{s0+1}, s47, v{s0+1}")
            a(f"v_cvt_pk_bf16_f32 v{t+1}, v{s0}, v{s0+1}")
            a(f"v_lshlrev_b32 v{s0}, 16, v{t+1}")
            a(f"v_and_b32 v{s0+1}, 0xffff0000, v{t+1}")
    a(f"v_max3_f32 v{TM}, v{SB}, v{SB+1}, v{SB+2}")
    a(f"v_max3_f32 v{TM+1}, v{SB+3}, v{SB+4}, v{SB+5}")
    a(f"v_max3_f32 v{TM+2}, v{SB+6}, v{SB+7}, v{SB+8}")
    a(f"v_max3_f32 v{TM+3}, v{SB+9}, v{SB+10}, v{SB+11}")
    a(f"v_max3_f32 v{TM}, v{TM}, v{SB+12}, v{SB+13}")
    a(f"v_max3_f32 v{TM+1}, v{TM+1}, v{SB+14}, v{SB+15}")
    a(f"v_max3_f32 v{TM}, v{TM}, v{TM+1}, v{TM+2}")
    a(f"v_max_f32 v{TM}, v{TM}, v{TM+3}")
    allreduce_x16_x32("v_max_f32", [f"v{TM}"], [f"v{TM+1}"])
    a(f"v_mov_b32 v22, v{TM}")
    a("v_lshrrev_b32 v20, 3, v1"); a("v_and_b32 v20, 1, v20"); a("v_lshlrev_b32 v20, 5, v20")
    a(f"v_add_u32 v20, {LDS_M}, v20")
    a("s_lshl_b32 s28, s3, 2"); a("v_add_u32 v21, s28, v20")
    a(f"s_mov_b32 s48, {hex(LOG2E)}")
    a("v_mul_f32 v23, s48, v22")
    for i in range(16):
        a(f"v_fma_f32 v{SB+i}, v{SB+i}, s48, -v23")
    for i in range(16):
        a(f"v_exp_f32 v{SB+i}, v{SB+i}")
    a(f"v_add_f32 v24, v{SB}, v{SB+1}"); a(f"v_add_f32 v25, v{SB+2}, v{SB+3}")
    for i in range(4, 16, 2):
        t = 24 + ((i >> 1) & 1)
        a(f"v_add_f32 v{t}, v{t}, v{SB+i}")
        a(f"v_add_f32 v{t}, v{t}, v{SB+i+1}")
    a(f"v_add_f32 v24, v24, v25")
    for i in range(16):
        a(f"v_cvt_pk_bf16_f32 v{SB+i}, v{SB+i}, v{SB+i}")
    stamp(4)
    def publish_ml():
        allreduce_x16_x32("v_add_f32", ["v24"], ["v25"])
        set_exec(0x101, 0); a("ds_write_b32 v21, v22"); a("ds_write_b32 v21, v24 offset:64"); a("s_mov_b64 exec, -1")
        arrive_rtn(C_L, "v10", "v11", f"v{TM+1}", "s49")
        Lnoml = lab("noml")
        a("s_cmp_lg_u32 s49, 7"); a(f"s_cbranch_scc1 {Lnoml}")
        a(f"ds_read_b128 v[{KF}:{KF+3}], v20"); a(f"ds_read_b128 v[{KF+4}:{KF+7}], v20 offset:16")
        a(f"ds_read_b128 v[{KF+8}:{KF+11}], v20 offset:64"); a(f"ds_read_b128 v[{KF+12}:{KF+15}], v20 offset:80")
        a("s_waitcnt lgkmcnt(0)")
        a(f"v_max3_f32 v26, v{KF}, v{KF+1}, v{KF+2}"); a(f"v_max3_f32 v27, v{KF+3}, v{KF+4}, v{KF+5}")
        a(f"v_max3_f32 v26, v26, v{KF+6}, v{KF+7}"); a("v_max_f32 v26, v26, v27")
        for w in range(8): a(f"v_sub_f32 v{KF+w}, v{KF+w}, v26")
        for w in range(8): a(f"v_mul_f32 v{KF+w}, s48, v{KF+w}")
        for w in range(8): a(f"v_exp_f32 v{KF+w}, v{KF+w}")
        for w in range(8): a(f"v_mul_f32 v{KF+w}, v{KF+w}, v{KF+8+w}")
        a(f"v_add_f32 v{KF}, v{KF}, v{KF+1}"); a(f"v_add_f32 v{KF+2}, v{KF+2}, v{KF+3}")
        a(f"v_add_f32 v{KF+4}, v{KF+4}, v{KF+5}"); a(f"v_add_f32 v{KF+6}, v{KF+6}, v{KF+7}")
        a(f"v_add_f32 v{KF}, v{KF}, v{KF+2}"); a(f"v_add_f32 v{KF+4}, v{KF+4}, v{KF+6}")
        a(f"v_add_f32 v{KF+1}, v{KF}, v{KF+4}")
        a(f"v_mov_b32 v{KF}, v26"); a(f"v_mov_b32 v{KF+2}, 0"); a(f"v_mov_b32 v{KF+3}, 0")
        tag_insert(KF, vT)
        a("s_lshr_b32 s28, s96, 3"); a("s_and_b32 s29, s28, 15"); a("s_lshr_b32 s28, s28, 4")
        a("s_lshl_b32 s29, s29, 9"); a("s_lshl_b32 s28, s28, 7"); a("s_add_u32 s28, s28, s29")
        a("s_and_b32 s29, s96, 7"); a("s_lshl_b32 s29, s29, 4"); a("s_add_u32 s28, s28, s29"); a(f"s_add_u32 s28, s28, {WS_ML}")
        a("v_lshrrev_b32 v27, 3, v1"); a("v_and_b32 v27, 1, v27"); a("v_lshlrev_b32 v27, 8, v27"); a("v_add_u32 v27, s28, v27")
        set_exec(0x101, 0)
        a(f"global_store_dwordx4 v27, v[{KF}:{KF+3}], s[26:27] sc1")
        a("s_mov_b64 exec, -1")
        a.label(Lnoml)
    def wave_factor():
        spin_lds(C_L, 8, "v10", f"v{TM}")
        a(f"ds_read_b128 v[{KF}:{KF+3}], v20"); a(f"ds_read_b128 v[{KF+4}:{KF+7}], v20 offset:16")
        a("v_lshrrev_b32 v28, 4, v1"); a("v_lshlrev_b32 v28, 7, v28")
        a("v_lshrrev_b32 v29, 3, v1"); a("v_and_b32 v29, 1, v29"); a("v_lshl_add_u32 v28, v29, 9, v28")
        a("v_and_b32 v29, 7, v1"); a("v_lshl_add_u32 v28, v29, 4, v28")
        a("s_lshl_b32 s28, s96, 10"); a(f"s_add_u32 s28, s28, {WS_OB}"); a("v_add_u32 v28, s28, v28")
        a("s_lshl_b32 s28, s3, 10"); a(f"s_add_u32 s28, s28, {LDS_R2}"); a(f"v_add_u32 v29, s28, v{vVA}")
        a(f"v_add_u32 v30, {LDS_R2}, v{vVA}")
        a("s_waitcnt lgkmcnt(0)")
        a(f"v_max3_f32 v26, v{KF}, v{KF+1}, v{KF+2}"); a(f"v_max3_f32 v27, v{KF+3}, v{KF+4}, v{KF+5}")
        a(f"v_max3_f32 v26, v26, v{KF+6}, v{KF+7}"); a("v_max_f32 v26, v26, v27")
        a("v_sub_f32 v26, v22, v26"); a("v_mul_f32 v26, s48, v26"); a("v_exp_f32 v26, v26")
    did_factor = False
    for i in range(16):
        bt = BT + 4*(i & 1)
        for w in range(4):
            a(f"v_and_b32 v{bt+w}, v{SB+i}, v{12+w}")
        vm_wait(("v", i))
        c = "0" if i == 0 else f"v[{ACC}:{ACC+3}]"
        a(f"v_mfma_f32_16x16x32_bf16 v[{ACC}:{ACC+3}], v[{VB+4*i}:{VB+4*i+3}], v[{bt}:{bt+3}], {c}")
        if i % 4 == 3 and i < 15: stamp(10 + i // 4)
        while nv < 16 and nv - (i + 1) < cfg.Wv:
            issue_v(nv); nv += 1
        if i == cfg.ml_at:
            publish_ml()
        if nv == 16 and not did_factor and i > cfg.ml_at:
            wave_factor(); did_factor = True
            a(f"s_setprio {cfg.prio_tail}")
    stamp(5)
    for e in range(4): a(f"v_mul_f32 v{ACC+e}, v{ACC+e}, v26")
    a(f"ds_write_b128 v29, v[{ACC}:{ACC+3}]")
    arrive_rtn(C_O, "v10", "v11", f"v{TM}", "s49")
    a("s_cmp_lg_u32 s49, 7"); a("s_cbranch_scc1 L_att_done")
    for w in range(8):
        a(f"ds_read_b128 v[{KF+4*w}:{KF+4*w+3}], v30 offset:{1024*w}")
    def pk(d, x, y): a(f"v_pk_add_f32 v[{d}:{d+1}], v[{x}:{x+1}], v[{y}:{y+1}]")
    a("s_waitcnt lgkmcnt(6)")
    for e in (0, 2): pk(KF+e, KF+e, KF+4+e)
    a("s_waitcnt lgkmcnt(4)")
    for e in (0, 2): pk(KF+8+e, KF+8+e, KF+12+e)
    a("s_waitcnt lgkmcnt(2)")
    for e in (0, 2): pk(KF+16+e, KF+16+e, KF+20+e)
    for e in (0, 2): pk(KF+e, KF+e, KF+8+e)
    a("s_waitcnt lgkmcnt(0)")
    for e in (0, 2): pk(KF+24+e, KF+24+e, KF+28+e)
    for e in (0, 2): pk(KF+16+e, KF+16+e, KF+24+e)
    for e in (0, 2): pk(KF+e, KF+e, KF+16+e)
    tag_insert(KF, vT)
    a(f"global_store_dwordx4 v28, v[{KF}:{KF+3}], s[26:27] sc1")
    a.label("L_att_done")
    stamp(6)
    dump_stamps(8)
    a("s_endpgm")

    a.label("L_wts")
    a(f"s_setprio {cfg.prio_w}")
    a("s_sub_u32 s36, s3, 8")
    XR = 20; EX = 30; WQD = 48; FD = 68; AC = 116; BB = 140; TP = 148; TM = 160
    a("v_lshrrev_b32 v6, 3, v1"); a("v_and_b32 v7, 7, v1"); a("v_lshlrev_b32 v7, 4, v7")
    a("v_lshl_add_u32 v2, v6, 13, v7")
    a("s_movk_i32 s28, 9216"); a("v_mad_u32_u24 v3, v6, s28, v7")
    a("s_movk_i32 s28, 1152"); a("v_mad_u32_u24 v4, v6, s28, v7")
    a("v_lshrrev_b32 v8, 5, v1"); a("v_and_b32 v9, 31, v1")
    a("v_mul_u32_u24 v18, 36, v9"); a("v_mad_u32_u24 v18, v8, s28, v18")
    a(f"v_mov_b32 v{TM}, 0")
    for e in range(4): a(f"v_mov_b32 v{WQD+16+e}, 0")
    a("s_mov_b32 s50, 0x00ff00ff"); a("s_mov_b32 s51, 0xff00ff00")
    a("s_mov_b32 s52, 0xff00ff00"); a("s_mov_b32 s53, 0xff00ff00")
    a("s_mov_b32 s54, 0xffff0000"); a("s_mov_b32 s55, 0xffff0000")
    a("s_waitcnt lgkmcnt(0)")
    if cfg.emode != "s":
        a(f"global_load_dword v16, v{TM}, s[26:27]" + (" sc1" if cfg.emode == "sc1" else ""))
    a(f"global_load_dwordx4 v[{XR}:{XR+3}], v18, s[4:5]")
    a(f"global_load_dwordx4 v[{XR+4}:{XR+7}], v18, s[4:5] offset:16")
    a(f"global_load_dword v{XR+8}, v18, s[4:5] offset:32")
    a("s_and_b32 s56, s97, 3"); a("s_lshr_b32 s57, s97, 2")
    a(f"s_mul_i32 s28, s56, {144*8192}"); a("s_lshl_b32 s29, s57, 7"); a("s_add_u32 s28, s28, s29")
    a("s_add_u32 s10, s10, s28"); a("s_addc_u32 s11, s11, 0")
    a("s_lshl_b32 s28, s36, 16"); a("s_add_u32 s32, s10, s28"); a("s_addc_u32 s33, s11, 0")
    for i in range(4):
        a(f"global_load_dwordx4 v[{WQD+4*i}:{WQD+4*i+3}], v2, s[32:33]{NT}")
        if i < 3:
            a(f"s_add_u32 s32, s32, {32*8192}"); a("s_addc_u32 s33, s33, 0")
    a("s_lshl_b32 s28, s36, 15"); a(f"s_add_u32 s28, s28, {128*8192}")
    a("s_add_u32 s32, s10, s28"); a("s_addc_u32 s33, s11, 0")
    set_exec(0xffffffff, 0)
    a(f"global_load_dwordx4 v[{WQD+16}:{WQD+19}], v2, s[32:33]{NT}")
    a("s_mov_b64 exec, -1")
    a("s_waitcnt lgkmcnt(0)"); a("s_barrier")
    if cfg.emode == "s": a("s_load_dword s99, s[26:27], 0")
    stamp(1)
    a("s_mul_hi_u32 s58, s98, 0x55555556"); a("s_mul_i32 s59, s58, 3"); a("s_sub_u32 s59, s98, s59")
    a(f"s_mul_i32 s28, s59, {192*9216}"); a("s_min_u32 s29, s58, 71"); a("s_lshl_b32 s29, s29, 7"); a("s_add_u32 s28, s28, s29")
    a(f"s_mul_i32 s29, s36, {8*9216}"); a("s_add_u32 s28, s28, s29")
    a("s_add_u32 s16, s16, s28"); a("s_addc_u32 s17, s17, 0"); a("s_add_u32 s18, s18, s28"); a("s_addc_u32 s19, s19, 0")
    def ffn_issue(i0_, i1_):
        for i in range(i0_, i1_):
            a(f"global_load_dwordx4 v[{FD+8*i}:{FD+8*i+3}], v3, s[16:17]{NT}")
            a(f"global_load_dwordx4 v[{FD+8*i+4}:{FD+8*i+7}], v3, s[18:19]{NT}")
            if i < 5:
                a(f"s_add_u32 s16, s16, {32*9216}"); a("s_addc_u32 s17, s17, 0"); a(f"s_add_u32 s18, s18, {32*9216}"); a("s_addc_u32 s19, s19, 0")
    a("v_lshrrev_b32 v6, 3, v1"); a("v_and_b32 v6, 1, v6")
    a("v_lshrrev_b32 v7, 4, v1")
    a("s_movk_i32 s28, 2304"); a("v_mul_u32_u24 v5, 0x900, v6")
    a(f"v_add_u32 v5, {LDS_T}, v5")
    a("v_and_b32 v19, 1, v7"); a("v_lshl_add_u32 v19, v19, 3, v5")
    a("v_lshl_add_u32 v5, v7, 3, v5")
    a("v_mul_u32_u24 v6, 72, v9"); a("v_mul_u32_u24 v7, 0x900, v8"); a("v_add_u32 v6, v6, v7"); a(f"v_add_u32 v6, {LDS_T}, v6")
    a("v_lshl_add_u32 v7, v8, 2, v6")
    a("v_xor_b32 v8, 1, v8"); a("v_lshl_add_u32 v8, v8, 2, v6")
    a("s_waitcnt vmcnt(5)")
    stamp(2)
    for k in range(9):
        a(f"v_lshlrev_b32 v{EX+2*k}, 16, v{XR+k}"); a(f"v_and_b32 v{EX+2*k+1}, 0xffff0000, v{XR+k}")
    a(f"v_add_f32 v{TM}, v{EX}, v{EX+1}"); a(f"v_add_f32 v{TM+1}, v{EX+2}, v{EX+3}")
    for k in range(4, 18, 2):
        t = TM + ((k >> 1) & 1)
        a(f"v_add_f32 v{t}, v{t}, v{EX+k}"); a(f"v_add_f32 v{t}, v{t}, v{EX+k+1}")
    a(f"v_add_f32 v{TM}, v{TM}, v{TM+1}")
    def allreduce32(r, t):
        allreduce8("v_add_f32", [r])
        a(f"v_add_f32_dpp {r}, {r}, {r} row_mirror {DPP}")
        a(f"v_mov_b32 {t}, {r}"); a(f"v_permlane16_swap_b32 {r}, {t}"); a(f"v_add_f32 {r}, {r}, {t}")
    allreduce32(f"v{TM}", f"v{TM+1}")
    a(f"v_mul_f32 v{TM}, 0x3ae38e39, v{TM}")
    a(f"v_sub_f32 v{TM+2}, v{EX}, v{TM}"); a(f"v_mul_f32 v{TM+1}, v{TM+2}, v{TM+2}")
    a(f"v_sub_f32 v{TM+3}, v{EX+1}, v{TM}"); a(f"v_mul_f32 v{TM+4}, v{TM+3}, v{TM+3}")
    for k in range(2, 18, 2):
        a(f"v_sub_f32 v{TM+2}, v{EX+k}, v{TM}"); a(f"v_sub_f32 v{TM+3}, v{EX+k+1}, v{TM}")
        a(f"v_fmac_f32 v{TM+1}, v{TM+2}, v{TM+2}"); a(f"v_fmac_f32 v{TM+4}, v{TM+3}, v{TM+3}")
    a(f"v_add_f32 v{TM+1}, v{TM+1}, v{TM+4}")
    allreduce32(f"v{TM+1}", f"v{TM+2}")
    a(f"v_mul_f32 v{TM+1}, 0x3ae38e39, v{TM+1}")
    a(f"v_cvt_pk_bf16_f32 v{TM}, v{TM}, v{TM+1}")
    a(f"v_and_b32 v{TM+1}, 0xffff0000, v{TM}")
    a(f"v_lshlrev_b32 v{TM}, 16, v{TM}")
    a(f"v_add_f32 v{TM+1}, 0x3727c5ac, v{TM+1}")
    a(f"v_cvt_pk_bf16_f32 v{TM+1}, v{TM+1}, v{TM+1}"); a(f"v_and_b32 v{TM+1}, 0xffff0000, v{TM+1}")
    a(f"v_sqrt_f32 v{TM+1}, v{TM+1}")
    a(f"v_cvt_pk_bf16_f32 v{TM+1}, v{TM+1}, v{TM+1}"); a(f"v_and_b32 v{TM+1}, 0xffff0000, v{TM+1}")
    a(f"v_rcp_f32 v{TM+2}, v{TM+1}")
    for k in range(9):
        e0, e1 = EX + 2*k, EX + 2*k + 1
        a(f"v_sub_f32 v{e0}, v{e0}, v{TM}"); a(f"v_sub_f32 v{e1}, v{e1}, v{TM}")
        a(f"v_cvt_pk_bf16_f32 v{TM+3}, v{e0}, v{e1}")
        a(f"v_lshlrev_b32 v{e0}, 16, v{TM+3}"); a(f"v_and_b32 v{e1}, 0xffff0000, v{TM+3}")
        a(f"v_mul_f32 v{TM+4}, v{e0}, v{TM+2}"); a(f"v_mul_f32 v{TM+5}, v{e1}, v{TM+2}")
        a(f"v_fma_f32 v{e0}, -v{TM+4}, v{TM+1}, v{e0}"); a(f"v_fma_f32 v{e1}, -v{TM+5}, v{TM+1}, v{e1}")
        a(f"v_fmac_f32 v{TM+4}, v{e0}, v{TM+2}"); a(f"v_fmac_f32 v{TM+5}, v{e1}, v{TM+2}")
        a(f"v_cvt_pk_bf16_f32 v{e0}, v{TM+4}, v{TM+4}"); a(f"v_cvt_pk_bf16_f32 v{e1}, v{TM+5}, v{TM+5}")
        a(f"ds_write_b32 v7, v{e0} offset:{8*k}"); a(f"ds_write_b32 v8, v{e1} offset:{8*k}")
    if cfg.emode == "s": a("s_waitcnt lgkmcnt(0)"); a("v_mov_b32 v16, s99")
    make_tag("v16", "v17", f"v{TM}")
    stamp(3)
    def gemv_unit(dreg_list, pair, accs, first):
        for w in range(4): a(f"v_and_b32 v{BB+w}, v{pair}, v{12+w}")
        for w in range(4): a(f"v_and_b32 v{BB+4+w}, v{pair+1}, v{12+w}")
        for d, (d1, d2) in zip(dreg_list, accs):
            c1 = "0" if first else f"v[{d1}:{d1+3}]"; c2 = "0" if first else f"v[{d2}:{d2+3}]"
            a(f"v_mfma_f32_16x16x32_bf16 v[{d1}:{d1+3}], v[{d}:{d+3}], v[{BB}:{BB+3}], {c1}")
            a(f"v_mfma_f32_16x16x32_bf16 v[{d2}:{d2+3}], v[{d}:{d+3}], v[{BB+4}:{BB+7}], {c2}")
    def zsel(d1, d2):
        for e in range(4): a(f"v_cndmask_b32_e64 v{d1+e}, v{d2+e}, v{d1+e}, s[50:51]")
    a("s_mul_i32 s28, s56, 576"); a("s_lshl_b32 s29, s36, 5"); a("s_add_u32 s28, s28, s29"); a("v_add_u32 v6, s28, v5")
    for i in range(4): a(f"ds_read_b64 v[{TP+2*i}:{TP+2*i+1}], v6 offset:{128*i}")
    a("s_mul_i32 s28, s56, 576"); a("s_lshl_b32 s29, s36, 4"); a("s_add_u32 s28, s28, s29"); a("s_add_u32 s28, s28, 512"); a("v_add_u32 v6, s28, v19")
    a(f"ds_read_b64 v[{TP+8}:{TP+9}], v6")
    a("s_waitcnt vmcnt(0)")
    a("s_waitcnt lgkmcnt(0)")
    for i in range(5):
        gemv_unit([WQD + 4*i], TP + 2*i, [(AC, AC + 4)], i == 0)
    zsel(AC, AC + 4)
    a("v_lshlrev_b32 v18, 4, v1")
    a("s_lshl_b32 s28, s36, 10"); a(f"s_add_u32 s28, s28, {LDS_R1}"); a("v_add_u32 v6, s28, v18")
    a(f"ds_write_b128 v6, v[{AC}:{AC+3}]")
    arrive_rtn(C_WQ, "v10", "v11", f"v{TM}", "s49")
    Lnq = lab("noqpub")
    a("s_cmp_lg_u32 s49, 3"); a(f"s_cbranch_scc1 {Lnq}")
    a("v_and_b32 v6, 31, v1"); a("v_lshlrev_b32 v6, 4, v6"); a("v_lshrrev_b32 v7, 5, v1"); a("v_lshl_add_u32 v6, v7, 3, v6"); a(f"v_add_u32 v6, {LDS_R1}, v6")
    for w in range(4):
        for e in range(2):
            a(f"ds_read_b64 v[{EX+4*w+2*e}:{EX+4*w+2*e+1}], v6 offset:{1024*w+512*e}")
    a("v_lshrrev_b32 v8, 3, v1"); a("v_and_b32 v8, 1, v8"); a("v_lshlrev_b32 v8, 9, v8"); a("v_lshl_add_u32 v8, v7, 8, v8")
    a("v_lshrrev_b32 v9, 4, v1"); a("v_and_b32 v9, 1, v9"); a("v_lshl_add_u32 v8, v9, 7, v8")
    a("v_and_b32 v9, 7, v1"); a("v_lshl_add_u32 v8, v9, 4, v8")
    a("s_lshl_b32 s28, s97, 10"); a(f"s_add_u32 s28, s28, {WS_QB}"); a("v_add_u32 v8, s28, v8")
    a("s_waitcnt lgkmcnt(0)")
    for st in range(4):
        a(f"v_add_f32 v{EX+4*st}, v{EX+4*st}, v{EX+4*st+2}"); a(f"v_add_f32 v{EX+4*st+1}, v{EX+4*st+1}, v{EX+4*st+3}")
    for st in (0, 8):
        a(f"v_add_f32 v{EX+st}, v{EX+st}, v{EX+st+4}"); a(f"v_add_f32 v{EX+st+1}, v{EX+st+1}, v{EX+st+5}")
    a(f"v_add_f32 v{EX}, v{EX}, v{EX+8}"); a(f"v_add_f32 v{EX+2}, v{EX+1}, v{EX+9}")
    a(f"v_mov_b32 v{EX+1}, v16"); a(f"v_mov_b32 v{EX+3}, v16")
    a(f"global_store_dwordx4 v8, v[{EX}:{EX+3}], s[26:27] sc1")
    a.label(Lnq)
    stamp(4)
    Lnf1 = lab("noffn1")
    a("s_cmp_ge_u32 s98, 216"); a(f"s_cbranch_scc1 {Lnf1}")
    ffn_issue(0, cfg.ffn1)
    a("s_mul_i32 s28, s59, 768"); a("s_lshl_b32 s29, s36, 5"); a("s_add_u32 s28, s28, s29"); a("v_add_u32 v6, s28, v5")
    for i in range(6): a(f"ds_read_b64 v[{TP+2*i}:{TP+2*i+1}], v6 offset:{128*i}")
    a("s_waitcnt lgkmcnt(0)")
    if cfg.wait_ffn1: a("s_waitcnt vmcnt(0)")
    a.label(Lnf1)
    a("s_lshr_b32 s28, s96, 3"); a("s_lshr_b32 s60, s28, 4"); a("s_and_b32 s61, s28, 15")
    a("s_lshl_b32 s28, s61, 2"); a("s_add_u32 s28, s28, s36"); a("s_lshl_b32 s28, s28, 12")
    a("s_lshl_b32 s29, s60, 9"); a("s_add_u32 s28, s28, s29"); a(f"s_add_u32 s28, s28, {WS_QB}")
    a("v_and_b32 v6, 3, v1"); a("v_lshlrev_b32 v6, 10, v6")
    a("v_lshrrev_b32 v7, 2, v1"); a("v_and_b32 v7, 7, v7"); a("v_lshl_add_u32 v6, v7, 4, v6")
    a("v_lshrrev_b32 v8, 5, v1"); a("v_lshl_add_u32 v6, v8, 7, v6"); a("v_add_u32 v6, s28, v6")
    G = EX
    def iss():
        a(f"global_load_dwordx4 v[{G}:{G+3}], v6, s[26:27] sc1")
        a(f"global_load_dwordx4 v[{G+4}:{G+7}], v6, s[26:27] offset:256 sc1")
    def chk():
        a(f"v_bitop3_b32 v{TM}, v{G+1}, v{G+3}, v16 bitop3:0x7e")
        a(f"v_bitop3_b32 v{TM+1}, v{G+5}, v{G+7}, v16 bitop3:0x7e")
        a(f"v_or_b32 v{TM}, v{TM}, v{TM+1}")
    poll_loop(iss, chk, f"v{TM}")
    qv = [G, G + 2, G + 4, G + 6]
    allreduce_quad("v_add_f32", [f"v{r}" for r in qv])
    for r in qv: a(f"v_cvt_pk_bf16_f32 v{r}, v{r}, v{r}")
    a("s_lshr_b32 s28, s36, 1"); a("s_lshl_b32 s28, s28, 8"); a("s_and_b32 s29, s36, 1"); a("s_lshl_b32 s29, s29, 7")
    a("s_add_u32 s28, s28, s29"); a(f"s_add_u32 s28, s28, {LDS_Q}")
    a("v_lshlrev_b32 v8, 6, v8"); a("v_lshl_add_u32 v8, v7, 1, v8"); a("v_add_u32 v8, s28, v8")
    a("s_mov_b32 exec_lo, 0x11111111"); a("s_mov_b32 exec_hi, 0x11111111")
    for r in range(4): a(f"ds_write_b16 v8, v{qv[r]} offset:{16*r}")
    a("s_mov_b64 exec, -1")
    arrive(C_Q, "v10", "v11")
    stamp(5)

    Lnf2 = lab("noffn2")
    a("s_cmp_ge_u32 s98, 216"); a(f"s_cbranch_scc1 {Lnf2}")
    ffn_issue(cfg.ffn1, 6)
    for i in range(6):
        if i >= cfg.ffn1: a(f"s_waitcnt vmcnt({10-2*i})")
        gemv_unit([FD + 8*i, FD + 8*i + 4], TP + 2*i, [(AC, AC + 4), (AC + 8, AC + 12)], i == 0)
    zsel(AC, AC + 4); zsel(AC + 8, AC + 12)
    a("s_lshl_b32 s28, s36, 11"); a(f"s_add_u32 s28, s28, {LDS_R1+4096}"); a("v_add_u32 v6, s28, v18")
    a(f"ds_write_b128 v6, v[{AC}:{AC+3}]"); a(f"ds_write_b128 v6, v[{AC+8}:{AC+11}] offset:1024")
    arrive_rtn(C_GU, "v10", "v11", f"v{TM}", "s49")
    a("s_cmp_lg_u32 s49, 3"); a(f"s_cbranch_scc1 {Lnf2}")
    a("v_and_b32 v6, 31, v1"); a("v_lshlrev_b32 v6, 4, v6"); a("v_lshrrev_b32 v7, 5, v1"); a("v_lshl_add_u32 v6, v7, 10, v6"); a(f"v_add_u32 v6, {LDS_R1+4096}, v6")
    for w in range(4):
        for e in range(2):
            r = FD + 8*w + 4*e
            a(f"ds_read_b128 v[{r}:{r+3}], v6 offset:{2048*w+512*e}")
    a("v_lshrrev_b32 v8, 3, v1"); a("v_and_b32 v8, 1, v8"); a("v_lshlrev_b32 v8, 8, v8"); a("v_lshl_add_u32 v8, v7, 9, v8")
    a("v_lshrrev_b32 v9, 4, v1"); a("v_and_b32 v9, 1, v9"); a("v_lshl_add_u32 v8, v9, 7, v8")
    a("v_and_b32 v9, 7, v1"); a("v_lshl_add_u32 v8, v9, 4, v8")
    a("s_lshl_b32 s28, s98, 10"); a(f"s_add_u32 s28, s28, {WS_GU}"); a("v_add_u32 v8, s28, v8")
    a("s_waitcnt lgkmcnt(0)")
    for w in range(4):
        for e in range(4): a(f"v_add_f32 v{FD+8*w+e}, v{FD+8*w+e}, v{FD+8*w+4+e}")
    for w in (0, 2):
        for e in range(4): a(f"v_add_f32 v{FD+8*w+e}, v{FD+8*w+e}, v{FD+8*w+8+e}")
    for e in range(4): a(f"v_add_f32 v{FD+e}, v{FD+e}, v{FD+16+e}")
    tag_insert(FD, "v17")
    a(f"global_store_dwordx4 v8, v[{FD}:{FD+3}], s[26:27] sc1")
    a.label(Lnf2)
    stamp(6)
    a("s_cmp_lt_u32 s98, 144"); a("s_cbranch_scc1 L_wtype")
    a("s_cmp_lt_u32 s98, 160"); a("s_cbranch_scc1 L_wts_done")

    OA = EX
    def late_loads(sb):
        for t in range(4):
            for cg in range(3):
                r = FD + 12*t + 4*cg
                a(f"global_load_dwordx4 v[{r}:{r+3}], v4, s[{sb}:{sb+1}] offset:{128*cg}{NT}")
            if t < 3:
                a(f"s_add_u32 s{sb}, s{sb}, 9216"); a(f"s_addc_u32 s{sb+1}, s{sb+1}, 0")
    def late_gemv():
        for t in range(4):
            a(f"v_cndmask_b32_e64 v{TP}, v{OA+t}, v{OA+4+t}, s[52:53]")
            a(f"v_cndmask_b32_e64 v{TP+2}, v{OA+4+t}, v{OA+t}, s[52:53]")
            a(f"v_mov_b32_dpp v{TP+1}, v{TP+2} row_ror:8 {DPP}")
            gemv_unit([FD + 12*t + 4*cg for cg in range(3)], TP, [(AC + 8*cg, AC + 8*cg + 4) for cg in range(3)], t == 0)
        for cg in range(3): zsel(AC + 8*cg, AC + 8*cg + 4)
    def late_reduce(nW, sj, sslot):
        a("s_mul_i32 s28, s36, 3072"); a(f"s_add_u32 s28, s28, {LDS_R3}"); a("v_add_u32 v6, s28, v18")
        for cg in range(3): a(f"ds_write_b128 v6, v[{AC+8*cg}:{AC+8*cg+3}] offset:{1024*cg}")
        arrive_rtn(C_LATE, "v10", "v11", f"v{TM}", "s49")
        a(f"s_cmp_lg_u32 s49, {nW-1}"); a("s_cbranch_scc1 L_wts_done")
        a(f"v_add_u32 v6, {LDS_R3}, v18")
        for cg in range(3):
            for w in range(nW):
                r = FD + 16*cg + 4*w
                a(f"ds_read_b128 v[{r}:{r+3}], v6 offset:{3072*w+1024*cg}")
        a("v_lshrrev_b32 v7, 3, v1")
        a("v_and_b32 v8, 1, v7")
        a("v_lshrrev_b32 v7, 1, v7")
        a("v_lshl_add_u32 v7, v7, 1, v8")
        a("s_movk_i32 s28, 10240"); a("v_mul_lo_u32 v7, v7, s28")
        a("v_and_b32 v8, 7, v1"); a("v_lshl_add_u32 v7, v8, 4, v7")
        a(f"s_mul_i32 s28, {sj}, {12*10240}"); a(f"s_lshl_b32 s29, {sslot}, 7"); a("s_add_u32 s28, s28, s29"); a(f"s_add_u32 s28, s28, {WS_FIN}")
        a("v_add_u32 v7, s28, v7")
        for cg in range(3):
            a(f"s_waitcnt lgkmcnt({(2-cg)*nW})")
            r = FD + 16*cg
            for e in range(4): a(f"v_add_f32 v{r+e}, v{r+e}, v{r+4+e}")
            if nW == 4:
                for e in range(4): a(f"v_add_f32 v{r+8+e}, v{r+8+e}, v{r+12+e}")
            for e in range(4): a(f"v_add_f32 v{r+e}, v{r+e}, v{r+8+e}")
        r0, r1, r2 = FD, FD + 16, FD + 32
        for e in range(4): a(f"v_mov_b32 v{r2+4+e}, v{r2+e}")
        for e in range(4): a(f"v_permlane32_swap_b32 v{r0+e}, v{r1+e}")
        for e in range(4): a(f"v_permlane32_swap_b32 v{r2+e}, v{r2+4+e}")
        for e in range(4): a(f"v_add_f32 v{r0+e}, v{r0+e}, v{r1+e}")
        for e in range(4): a(f"v_add_f32 v{r2+e}, v{r2+e}, v{r2+4+e}")
        tag_insert(r0, "v17"); tag_insert(r2, "v17")
        a(f"global_store_dwordx4 v7, v[{r0}:{r0+3}], s[26:27] sc1")
        a(f"v_add_u32 v8, {8*10240}, v7")
        set_exec(0xffffffff, 0)
        a(f"global_store_dwordx4 v8, v[{r2}:{r2+3}], s[26:27] sc1")
        a("s_mov_b64 exec, -1")

    a("; ---- O type ----")
    a("s_sub_u32 s28, s98, 160"); a("s_mul_hi_u32 s62, s28, 0x55555556"); a("s_mul_i32 s29, s62, 3"); a("s_sub_u32 s63, s28, s29")
    a("v_and_b32 v6, 7, v1"); a("v_lshlrev_b32 v6, 4, v6"); a("s_lshl_b32 s28, s62, 8"); a(f"s_add_u32 s28, s28, {WS_ML}"); a("v_add_u32 v6, s28, v6")
    G = XR
    def iss():
        a(f"global_load_dwordx4 v[{G}:{G+3}], v6, s[26:27] sc1")
        a(f"global_load_dwordx4 v[{G+4}:{G+7}], v6, s[26:27] offset:128 sc1")
    def chk():
        tag_check(G, "v17", f"v{TM}", f"v{TM+1}", f"v{TM+2}", True)
        tag_check(G + 4, "v17", f"v{TM}", f"v{TM+1}", f"v{TM+2}", False)
    poll_loop(iss, chk, f"v{TM}", sleep=cfg.sl_ml)
    for bb in range(2):
        g = G + 4*bb
        a(f"v_and_b32 v{g}, s46, v{g}"); a(f"v_and_b32 v{g+1}, s46, v{g+1}")
        a(f"v_mov_b32 v{g+2}, v{g}")
    allreduce8("v_max_f32", [f"v{G+2}", f"v{G+6}"])
    a(f"s_mov_b32 s48, {hex(LOG2E)}")
    for bb in range(2):
        g = G + 4*bb
        a(f"v_sub_f32 v{g}, v{g}, v{g+2}"); a(f"v_mul_f32 v{g}, s48, v{g}"); a(f"v_exp_f32 v{g}, v{g}")
    for bb in range(2):
        g = G + 4*bb
        a(f"v_mul_f32 v{g+1}, v{g+1}, v{g}")
    allreduce8("v_add_f32", [f"v{G+1}", f"v{G+5}"])
    for bb in range(2):
        g = G + 4*bb
        a(f"v_rcp_f32 v{g+2}, v{g+1}")
    for bb in range(2):
        g = G + 4*bb
        a(f"v_mul_f32 v{28+bb}, v{g}, v{g+2}")
    a(f"s_mul_i32 s28, s62, {128*1152}"); a("s_mul_i32 s29, s63, 384"); a("s_add_u32 s28, s28, s29"); a(f"s_mul_i32 s29, s36, {32*1152}"); a("s_add_u32 s28, s28, s29")
    a("s_add_u32 s12, s12, s28"); a("s_addc_u32 s13, s13, 0")
    a("s_lshr_b32 s28, s62, 1"); a("s_lshl_b32 s28, s28, 13"); a("s_and_b32 s29, s62, 1"); a("s_lshl_b32 s29, s29, 9"); a("s_add_u32 s28, s28, s29")
    a("s_lshl_b32 s29, s36, 7"); a("s_add_u32 s28, s28, s29"); a(f"s_add_u32 s28, s28, {WS_OB}")
    a("v_and_b32 v6, 7, v1"); a("v_lshlrev_b32 v6, 10, v6"); a("v_lshrrev_b32 v7, 3, v1"); a("v_lshl_add_u32 v6, v7, 4, v6"); a("v_add_u32 v6, s28, v6")
    a(f"v_add_u32 v7, {16*8*1024}, v6")
    spin_lds(C_V, 8, "v10", f"v{TM}")
    a(f"s_setprio {cfg.prio_late}")
    stamp(7)
    late_loads(12)
    def iss():
        a(f"global_load_dwordx4 v[{OA}:{OA+3}], v6, s[26:27] sc1")
        a(f"global_load_dwordx4 v[{OA+4}:{OA+7}], v7, s[26:27] sc1")
    def chk():
        tag_check(OA, "v17", f"v{TM}", f"v{TM+1}", f"v{TM+2}", True)
        tag_check(OA + 4, "v17", f"v{TM}", f"v{TM+1}", f"v{TM+2}", False)
    poll_loop(iss, chk, f"v{TM}")
    stamp(8)
    tag_strip(OA); tag_strip(OA + 4)
    for bb in range(2):
        for e in range(4): a(f"v_mul_f32 v{OA+4*bb+e}, v{OA+4*bb+e}, v{28+bb}")
    allreduce8("v_add_f32", [f"v{OA+e}" for e in range(8)])
    for e in range(8): a(f"v_cvt_pk_bf16_f32 v{OA+e}, v{OA+e}, v{OA+e}")
    late_gemv()
    late_reduce(4, "s63", "s62")
    stamp(9)
    a("s_branch L_wts_done")

    a.label("L_wtype")
    a("; ---- W type ----")
    a("s_cmp_eq_u32 s36, 3"); a("s_cbranch_scc1 L_final")
    a("s_mul_i32 s28, s58, 3"); a("s_add_u32 s28, s28, s36"); a("s_lshr_b32 s29, s28, 1"); a("s_and_b32 s28, s28, 1")
    a("s_mul_i32 s29, s29, 3072"); a("s_lshl_b32 s28, s28, 7"); a("s_add_u32 s28, s28, s29"); a(f"s_add_u32 s28, s28, {WS_GU}")
    a("v_and_b32 v6, 3, v1"); a("v_cmp_ne_u32 s[56:57], 3, v6"); a("v_cndmask_b32_e64 v6, 0, v6, s[56:57]")
    a("v_lshlrev_b32 v6, 10, v6")
    a("v_lshrrev_b32 v7, 2, v1"); a("v_and_b32 v7, 1, v7"); a("v_lshl_add_u32 v6, v7, 9, v6")
    a("v_lshrrev_b32 v7, 3, v1"); a("v_lshl_add_u32 v6, v7, 4, v6"); a("v_add_u32 v6, s28, v6")
    def iss():
        a(f"global_load_dwordx4 v[{OA}:{OA+3}], v6, s[26:27] sc1")
        a(f"global_load_dwordx4 v[{OA+4}:{OA+7}], v6, s[26:27] offset:256 sc1")
    def chk():
        tag_check(OA, "v17", f"v{TM}", f"v{TM+1}", f"v{TM+2}", True)
        tag_check(OA + 4, "v17", f"v{TM}", f"v{TM+1}", f"v{TM+2}", False)
    poll_loop(iss, chk, f"v{TM}", sleep=cfg.sl_gu)
    tag_strip(OA); tag_strip(OA + 4)
    for e in range(8): a(f"v_cndmask_b32_e64 v{OA+e}, 0, v{OA+e}, s[56:57]")
    allreduce_quad("v_add_f32", [f"v{OA+e}" for e in range(8)])
    OB2 = OA + 8
    for e in range(8): a(f"v_mov_b32_dpp v{OB2+e}, v{OA+e} row_half_mirror {DPP}")
    a("s_mov_b32 s56, 0xf0f0f0f0"); a("s_mov_b32 s57, 0xf0f0f0f0")
    a(f"s_mov_b32 s48, {hex(LOG2E)}")
    for e in range(8):
        g, u = TM, TM + 1
        a(f"v_cndmask_b32_e64 v{g}, v{OA+e}, v{OB2+e}, s[56:57]")
        a(f"v_cndmask_b32_e64 v{u}, v{OB2+e}, v{OA+e}, s[56:57]")
        a(f"v_cvt_pk_bf16_f32 v{g}, v{g}, v{u}")
        a(f"v_and_b32 v{u}, 0xffff0000, v{g}"); a(f"v_lshlrev_b32 v{g}, 16, v{g}")
        a(f"v_mul_f32 v{TM+2}, s48, v{g}"); a(f"v_exp_f32 v{TM+2}, -v{TM+2}"); a(f"v_add_f32 v{TM+2}, 1.0, v{TM+2}")
        a(f"v_rcp_f32 v{TM+3}, v{TM+2}")
        a(f"v_mul_f32 v{TM+4}, v{g}, v{TM+3}")
        a(f"v_fma_f32 v{TM+5}, -v{TM+4}, v{TM+2}, v{g}"); a(f"v_fmac_f32 v{TM+4}, v{TM+5}, v{TM+3}")
        a(f"v_cvt_pk_bf16_f32 v{TM+4}, v{TM+4}, v{TM+4}"); a(f"v_and_b32 v{TM+4}, 0xffff0000, v{TM+4}")
        a(f"v_mul_f32 v{TM+4}, v{TM+4}, v{u}")
        a(f"v_cvt_pk_bf16_f32 v{OA+e}, v{TM+4}, v{TM+4}")
    a(f"s_mul_i32 s28, s58, {96*1152}"); a("s_mul_i32 s29, s59, 384"); a("s_add_u32 s28, s28, s29"); a(f"s_mul_i32 s29, s36, {32*1152}"); a("s_add_u32 s28, s28, s29")
    a("s_add_u32 s20, s20, s28"); a("s_addc_u32 s21, s21, 0")
    spin_lds(C_V, 8, "v10", f"v{TM}")
    a(f"s_setprio {cfg.prio_late}")
    stamp(7)
    late_loads(20)
    a("s_waitcnt vmcnt(0)")
    stamp(8)
    late_gemv()
    a("s_add_u32 s62, s58, 32")
    late_reduce(3, "s59", "s62")
    stamp(9)
    a("s_branch L_wts_done")

    a.label("L_final")
    a("s_cmp_ge_u32 s98, 36"); a("s_cbranch_scc1 L_wts_done")
    a("s_mul_i32 s28, s98, 10240"); a(f"s_add_u32 s28, s28, {WS_FIN}"); a("v_add_u32 v6, s28, v18")
    a("v_add_u32 v7, 4096, v6"); a("v_add_u32 v8, 8192, v6")
    a("s_and_b32 s28, s98, 1"); a("s_mul_i32 s28, s28, 576"); a("s_lshr_b32 s29, s98, 1"); a("s_lshl_b32 s29, s29, 5"); a("s_add_u32 s28, s28, s29")
    a("v_and_b32 v9, 31, v1"); a("v_add_u32 v9, s28, v9"); a("v_lshlrev_b32 v9, 1, v9")
    a("global_load_ushort v19, v9, s[4:5]")
    if cfg.fin_wait_v: spin_lds(C_V, 8, "v10", f"v{TM}")
    G = FD
    def iss():
        for t in range(6):
            base, off = (("v7", 1024*t) if t < 4 else ("v8", 1024*(t-4)))
            a(f"global_load_dwordx4 v[{G+4*t}:{G+4*t+3}], {base}, s[26:27] offset:{off} sc1")
    def chk():
        for t in range(6): tag_check(G + 4*t, "v17", f"v{TM}", f"v{TM+1}", f"v{TM+2}", t == 0)
    poll_loop(iss, chk, f"v{TM}", sleep=cfg.sl_fin)
    stamp(7)
    def reduce_slots(n):
        for t in range(n): tag_strip(G + 4*t)
        for t in range(1, n):
            for e in range(4): a(f"v_add_f32 v{G+e}, v{G+e}, v{G+4*t+e}")
        for e in range(4): a(f"v_add_f32_dpp v{G+e}, v{G+e}, v{G+e} row_ror:8 {DPP}")
        allreduce_x16_x32("v_add_f32", [f"v{G+e}" for e in range(4)], [f"v{G+4+e}" for e in range(4)])
        a(f"v_cndmask_b32_e64 v{G}, v{G}, v{G+1}, s[52:53]"); a(f"v_cndmask_b32_e64 v{G+2}, v{G+2}, v{G+3}, s[52:53]")
        a(f"v_cndmask_b32_e64 v{G}, v{G}, v{G+2}, s[54:55]")
    reduce_slots(6)
    a(f"s_mov_b32 s48, {hex(LOG2E)}")
    a(f"v_cvt_pk_bf16_f32 v{G}, v{G}, v{G}"); a(f"v_and_b32 v{G}, 0xffff0000, v{G}")
    a(f"v_mul_f32 v{TM+2}, s48, v{G}"); a(f"v_exp_f32 v{TM+2}, -v{TM+2}"); a(f"v_add_f32 v{TM+2}, 1.0, v{TM+2}")
    a(f"v_rcp_f32 v{TM+3}, v{TM+2}"); a(f"v_mul_f32 v{TM+4}, v{G}, v{TM+3}")
    a(f"v_fma_f32 v{TM+5}, -v{TM+4}, v{TM+2}, v{G}"); a(f"v_fmac_f32 v{TM+4}, v{TM+5}, v{TM+3}")
    a(f"v_cvt_pk_bf16_f32 v{TM+4}, v{TM+4}, v{TM+4}"); a(f"v_and_b32 v20, 0xffff0000, v{TM+4}")
    a("v_lshlrev_b32 v19, 16, v19")
    def iss():
        for t in range(4):
            a(f"global_load_dwordx4 v[{G+4*t}:{G+4*t+3}], v6, s[26:27] offset:{1024*t} sc1")
    def chk():
        for t in range(4): tag_check(G + 4*t, "v17", f"v{TM}", f"v{TM+1}", f"v{TM+2}", t == 0)
    poll_loop(iss, chk, f"v{TM}")
    stamp(8)
    reduce_slots(4)
    a(f"v_cvt_pk_bf16_f32 v{G}, v{G}, v{G}"); a(f"v_and_b32 v{G}, 0xffff0000, v{G}")
    a(f"v_mul_f32 v{G}, v{G}, v20"); a(f"v_cvt_pk_bf16_f32 v{G}, v{G}, v{G}"); a(f"v_and_b32 v{G}, 0xffff0000, v{G}")
    a(f"v_add_f32 v{G}, v19, v{G}"); a(f"v_cvt_pk_bf16_f32 v{G}, v{G}, v{G}")
    set_exec(0xffffffff, 0)
    a(f"global_store_short v9, v{G}, s[22:23]")
    a("s_mov_b64 exec, -1")
    a("s_cmp_lg_u32 s98, 0"); a("s_cbranch_scc1 L_wts_done")
    a(f"v_mov_b32 v{TM}, 0")
    a("s_mov_b64 exec, 1")
    a(f"global_store_dword v{TM}, v16, s[26:27] sc1")
    a("s_mov_b64 exec, -1")
    a.label("L_wts_done")
    stamp(10)
    dump_stamps(12)
    a.label("L_end")
    a("s_endpgm")
    return a

HEADER = """; Kernarg layout (96 bytes, pointers only, base s[0:1]):
; @launch grid=(256,1,1) block=(768,1,1) lds=%d
.amdgcn_target "amdgcn-amd-amdhsa--gfx950"
.text
.globl %s
.p2align 8
.type %s,@function
"""
FOOTER = """.section .rodata,"a"
.p2align 6
.amdhsa_kernel %s
  .amdhsa_next_free_vgpr 168
  .amdhsa_next_free_sgpr 102
  .amdhsa_accum_offset 168
  .amdhsa_group_segment_fixed_size 0
  .amdhsa_kernarg_size 96
  .amdhsa_user_sgpr_count 2
  .amdhsa_user_sgpr_kernarg_segment_ptr 1
  .amdhsa_system_sgpr_workgroup_id_x 1
  .amdhsa_float_denorm_mode_32 3
.end_amdhsa_kernel
"""
def build(cfg):
    a = gen(cfg)
    lds = (LDS_END + 255) // 256 * 256
    return HEADER % (lds, KNAME, KNAME) + a.text() + FOOTER % KNAME

if __name__ == "__main__":
    out = sys.argv[1] if len(sys.argv) > 1 else "k.s"
    kw = eval(sys.argv[2]) if len(sys.argv) > 2 else {}
    open(out, "w").write(build(Cfg(**kw)))
```

```python
import sys, json
sys.path.insert(0, 'work')
from asmb import Asm

KNAME = "recurrent_scan__sliding_block_cached__glu_gated_swiglu__decode_kernel"

LDS_K  = 0
LDS_T  = 131072
LDS_Q  = LDS_T + 4608
LDS_R1 = LDS_Q + 512
LDS_R2 = LDS_K + 16384
LDS_R3 = LDS_K
LDS_M  = LDS_R1 + 12288
LDS_C  = LDS_M + 128
LDS_END = LDS_C + 64
C_WQ, C_GU, C_Q, C_M, C_L, C_V, C_O, C_LATE = [4*i for i in range(8)]

WS_QB  = 0x010000
WS_GU  = 0x060000
WS_ML  = 0x0A0000
WS_OB  = 0x0B0000
WS_FIN = 0x100000
WS_DBG = 0x200000

LOG2E = 0x3fb8aa3b
SCALE = 0x3db504f3
SPIN_MAX = 1 << 22

class Cfg:
    def __init__(self, **kw):
        self.Wk = 4; self.Wv = 4; self.extra = 2; self.trig = 16; self.rot = 1
        self.attmap = 'id'; self.rmap = 'id'; self.emode = 's'; self.dbgout = False; self.masked = True; self.wait_ffn1 = True; self.bar_first = True; self.sl_gu = 4; self.sl_ml = 4; self.sl_fin = 2; self.fin_wait_v = True; self.ffn1 = 3; self.ml_at = 3; self.prio_k = 2; self.prio_v1 = 1; self.prio_v2 = 0; self.v2_at = 8; self.prio_tail = 3; self.prio_w = 3; self.prio_late = 3; self.stamps = False; self.nt = " nt"
        self.spin_max = SPIN_MAX
        self.__dict__.update(kw)

def gen(cfg):
    assert cfg.trig > cfg.Wk + cfg.extra
    a = Asm()
    NT = cfg.nt
    uid = [0]
    def lab(p):
        uid[0] += 1
        return f"L_{p}_{uid[0]}"

    nstamp = [0]
    def stamp(idx):
        if cfg.stamps:
            a(f"s_memrealtime s[{64+2*idx}:{65+2*idx}]")
    def dump_dbg(att):
        L = lab("nodbg")
        a("s_waitcnt vmcnt(0) lgkmcnt(0)")
        if att:
            a("s_cmp_lg_u32 s3, 7"); a(f"s_cbranch_scc1 {L}")
            a("s_cmp_eq_u32 s2, 5"); a("s_cselect_b32 s29, 16, 0")
            a("s_cmp_eq_u32 s2, 0"); a("s_cselect_b32 s28, 1, 0"); a("s_cmp_eq_u32 s2, 5"); a("s_cselect_b32 s28, 1, s28")
            slots = [2, 3, 5, 6]
        else:
            a("s_cmp_lg_u32 s3, 11"); a(f"s_cbranch_scc1 {L}")
            a("s_cmp_eq_u32 s2, 5"); a("s_cselect_b32 s29, 48, 32")
            a("s_cmp_eq_u32 s2, 0"); a("s_cselect_b32 s28, 1, 0"); a("s_cmp_eq_u32 s2, 5"); a("s_cselect_b32 s28, 1, s28")
            slots = [2, 5, 8, 10]
        a("s_cmp_eq_u32 s28, 0"); a(f"s_cbranch_scc1 {L}")
        a("s_mov_b64 exec, 1")
        a("v_mov_b32 v2, s29")
        for k, idx in enumerate(slots):
            a(f"s_sub_u32 s28, s{64+2*idx}, s64"); a(f"v_mov_b32 v{4+k}, s28")
        a("global_store_dwordx4 v2, v[4:7], s[24:25]")
        a.label(L)
    def dump_stamps(n):
        if cfg.dbgout:
            dump_dbg(n == 8)
            return
        if not cfg.stamps: return
        a("s_waitcnt vmcnt(0) lgkmcnt(0)")
        a("s_mov_b64 exec, 1")
        a("s_lshl_b32 s28, s2, 4"); a("s_add_u32 s28, s28, s3"); a("s_lshl_b32 s28, s28, 7")
        a(f"s_add_u32 s28, s28, {WS_DBG}")
        a("v_mov_b32 v2, s28")
        for q in range(0, 16, 4):
            for e in range(4):
                a(f"v_mov_b32 v{4+e}, s{64+2*(q+e)}")
            a(f"global_store_dwordx4 v2, v[4:7], s[26:27] offset:{q*4}")
        a("s_getreg_b32 s28, hwreg(HW_REG_XCC_ID)")
        a("v_mov_b32 v4, s28")
        a("global_store_dword v2, v4, s[26:27] offset:64")

    def spin_lds(cnt_off, target, vaddr, vtmp, stmp="s29", sto="s30"):
        L = lab("spin"); D = lab("spind")
        a(f"s_mov_b32 {sto}, 0")
        a.label(L)
        a(f"ds_read_b32 {vtmp}, {vaddr} offset:{cnt_off}")
        a("s_waitcnt lgkmcnt(0)")
        a(f"v_readfirstlane_b32 {stmp}, {vtmp}")
        a(f"s_cmp_ge_u32 {stmp}, {target}")
        a(f"s_cbranch_scc1 {D}")
        a(f"s_add_u32 {sto}, {sto}, 1")
        a(f"s_cmp_lt_u32 {sto}, {cfg.spin_max}")
        a(f"s_cbranch_scc1 {L}")
        a.label(D)

    def set_exec(lo, hi):
        a(f"s_mov_b32 exec_lo, {hex(lo)}"); a(f"s_mov_b32 exec_hi, {hex(hi)}")

    def arrive_rtn(cnt_off, vaddr, vone, vtmp, sdst):
        a("s_mov_b64 exec, 1")
        a(f"ds_add_rtn_u32 {vtmp}, {vaddr}, {vone} offset:{cnt_off}")
        a("s_waitcnt lgkmcnt(0)")
        a(f"v_readfirstlane_b32 {sdst}, {vtmp}")
        a("s_mov_b64 exec, -1")

    def arrive(cnt_off, vaddr, vone):
        a("s_mov_b64 exec, 1")
        a(f"ds_add_u32 {vaddr}, {vone} offset:{cnt_off}")
        a("s_mov_b64 exec, -1")

    DPP = "row_mask:0xf bank_mask:0xf"
    def allreduce8(op, regs, tmp=None):
        for r in regs: a(f"{op}_dpp {r}, {r}, {r} quad_perm:[1,0,3,2] {DPP}")
        for r in regs: a(f"{op}_dpp {r}, {r}, {r} quad_perm:[2,3,0,1] {DPP}")
        for r in regs: a(f"{op}_dpp {r}, {r}, {r} row_half_mirror {DPP}")
    def allreduce_quad(op, regs):
        for r in regs: a(f"{op}_dpp {r}, {r}, {r} quad_perm:[1,0,3,2] {DPP}")
        for r in regs: a(f"{op}_dpp {r}, {r}, {r} quad_perm:[2,3,0,1] {DPP}")
    def allreduce_x16_x32(op, regs, tmps):
        for r, t in zip(regs, tmps): a(f"v_mov_b32 {t}, {r}")
        for r, t in zip(regs, tmps): a(f"v_permlane16_swap_b32 {r}, {t}")
        for r, t in zip(regs, tmps): a(f"{op} {r}, {r}, {t}")
        for r, t in zip(regs, tmps): a(f"v_mov_b32 {t}, {r}")
        for r, t in zip(regs, tmps): a(f"v_permlane32_swap_b32 {r}, {t}")
        for r, t in zip(regs, tmps): a(f"{op} {r}, {r}, {t}")

    def tag_consts():
        for i in range(4): a(f"s_mov_b32 s{40+i}, {hex(0x07060500+i)}")
        a("s_mov_b32 s44, 0x0c0c0400"); a("s_mov_b32 s45, 0x04000c0c"); a("s_mov_b32 s46, 0xffffff00")
    def make_tag(vE, vT, t1):
        a(f"v_add_u32 {vE}, 1, {vE}")
        a(f"s_mov_b32 s28, 0x9E3779B1")
        a(f"v_mul_lo_u32 {vT}, {vE}, s28")
        a(f"v_not_b32 {t1}, {vT}")
        a(f"v_and_b32 {t1}, 1, {t1}")
        a(f"v_lshlrev_b32 {t1}, 8, {t1}")
        a(f"v_and_b32 {vT}, 0xfffffeff, {vT}")
        a(f"v_or_b32 {vT}, {vT}, {t1}")
    def tag_insert(base, vT):
        for i in range(4): a(f"v_perm_b32 v{base+i}, v{base+i}, {vT}, s{40+i}")
    def tag_check(base, vT, vacc, t1, t2, first):
        a(f"v_perm_b32 {t1}, v{base+1}, v{base}, s44")
        a(f"v_perm_b32 {t2}, v{base+3}, v{base+2}, s45")
        if first:
            a(f"v_bitop3_b32 {vacc}, {t1}, {t2}, {vT} bitop3:0x56")
        else:
            a(f"v_bitop3_b32 {t1}, {t1}, {t2}, {vT} bitop3:0x56")
            a(f"v_or_b32 {vacc}, {vacc}, {t1}")
    def tag_strip(base):
        for i in range(4): a(f"v_and_b32 v{base+i}, s46, v{base+i}")
    def poll_loop(issue, check, vacc, sleep=0):
        L = lab("poll"); D = lab("polld")
        a("s_mov_b32 s30, 0")
        a.label(L)
        issue()
        a("s_waitcnt vmcnt(0)")
        check()
        a(f"v_cmp_ne_u32 vcc, 0, {vacc}")
        a(f"s_cbranch_vccz {D}")
        if cfg.masked: a("s_mov_b64 exec, vcc")
        if sleep: a(f"s_sleep {sleep}")
        a("s_add_u32 s30, s30, 1")
        a(f"s_cmp_lt_u32 s30, {cfg.spin_max}")
        a(f"s_cbranch_scc1 {L}")
        a.label(D)
        if cfg.masked: a("s_mov_b64 exec, -1")

    a.raw(f"{KNAME}:")
    a("s_cmp_ge_u32 s2, 256")
    a("s_cbranch_scc1 L_end")
    if cfg.dbgout:
        for i in range(1, 16): a(f"s_mov_b32 s{64+2*i}, 0")
    stamp(0)
    a("s_load_dwordx16 s[4:19], s[0:1], 0")
    a("s_load_dwordx8 s[20:27], s[0:1], 64")
    a("v_lshrrev_b32 v2, 6, v0")
    a("v_and_b32 v1, 63, v0")
    a("v_readfirstlane_b32 s3, v2")
    if cfg.attmap == "id": a("s_mov_b32 s96, s2")
    elif cfg.attmap == "T":
        a("s_and_b32 s96, s2, 31"); a("s_lshl_b32 s96, s96, 3"); a("s_lshr_b32 s97, s2, 5"); a("s_add_u32 s96, s96, s97")
    a("s_mov_b32 s97, s2")
    if cfg.rmap == "id": a("s_mov_b32 s98, s2")
    elif cfg.rmap == "odd":
        a("s_sub_u32 s98, s2, 176"); a("s_lshr_b32 s98, s98, 1"); a("s_and_b32 s28, s2, 1"); a("s_mul_i32 s28, s28, 40")
        a("s_add_u32 s98, s98, s28"); a("s_add_u32 s98, s98, 176")
        a("s_cmp_lt_u32 s2, 176"); a("s_cselect_b32 s98, s2, s98")
    a("v_and_b32 v3, 7, v1")
    a("v_and_b32 v4, 1, v3"); a("v_lshlrev_b32 v4, 4, v4"); a("v_mov_b32 v5, 0xffff"); a("v_lshlrev_b32 v4, v4, v5")
    a("v_lshrrev_b32 v3, 1, v3")
    for w in range(4):
        a(f"v_cmp_eq_u32 vcc, {w}, v3"); a(f"v_cndmask_b32 v{12+w}, 0, v4, vcc")
    a(f"v_mov_b32 v10, {LDS_C}")
    a("v_mov_b32 v11, 1")
    tag_consts()
    Lni = lab("noinit")
    a("s_cmp_lg_u32 s3, 0"); a(f"s_cbranch_scc1 {Lni}")
    a("v_lshlrev_b32 v3, 2, v1"); a(f"v_add_u32 v3, {LDS_C}, v3"); a("v_mov_b32 v4, 0")
    set_exec(0xffff, 0); a("ds_write_b32 v3, v4"); a("s_mov_b64 exec, -1")
    a.label(Lni)
    a("s_cmp_ge_u32 s3, 8"); a("s_cbranch_scc1 L_wts")

    vE, vT = "v16", "v17"
    vKA = [2, 3, 4, 5]; vVA = 6; vKR = [7, 8, 9, 18]; vQA = 19
    QB = 20; SB = 36; KF = 52; ACC = 84; BT = 88; VB = 96; TM = 160
    a(f"s_setprio {cfg.prio_k}")
    a("v_lshrrev_b32 v20, 4, v1"); a("v_and_b32 v21, 15, v1")
    a("v_lshlrev_b32 v22, 2, v20"); a("v_lshlrev_b32 v23, 8, v20")
    for r in range(4):
        a(f"v_add_u32 v24, {r}, v22"); a("v_xor_b32 v24, v24, v21"); a(f"v_lshl_add_u32 v{vKA[r]}, v24, 4, v23")
    a(f"v_lshlrev_b32 v{vVA}, 4, v1")
    a("v_lshrrev_b32 v22, 2, v21"); a("v_and_b32 v23, 3, v21")
    a("v_lshl_add_u32 v24, v23, 2, v22"); a("v_lshlrev_b32 v24, 8, v24")
    a("v_xor_b32 v25, v23, v20")
    a("s_lshl_b32 s28, s3, 14"); a("v_add_u32 v24, s28, v24")
    a("v_lshl_add_u32 v24, v25, 4, v24")
    for jj in range(4):
        a(f"v_xor_b32 v26, {jj}, v22"); a(f"v_lshl_add_u32 v{vKR[jj]}, v26, 6, v24")
    a("v_lshrrev_b32 v22, 3, v1"); a("v_and_b32 v22, 1, v22"); a("v_lshlrev_b32 v22, 8, v22")
    a(f"v_lshl_add_u32 v{vQA}, v20, 4, v22"); a(f"v_add_u32 v{vQA}, {LDS_Q}, v{vQA}")
    a(f"v_mov_b32 v{TM}, 0")
    a("s_waitcnt lgkmcnt(0)")
    a("s_lshr_b32 s28, s96, 3"); a("s_and_b32 s29, s96, 7")
    a("s_lshl_b32 s28, s28, 23"); a("s_lshl_b32 s29, s29, 17"); a("s_add_u32 s28, s28, s29"); a("s_add_u32 s28, s28, 0x700000")
    a("s_add_u32 s6, s6, s28"); a("s_addc_u32 s7, s7, 0"); a("s_add_u32 s8, s8, s28"); a("s_addc_u32 s9, s9, 0")
    a(f"s_mul_i32 s31, s96, {cfg.rot}"); a("s_add_u32 s31, s31, s3")
    a("s_lshl_b32 s37, s3, 14")
    vmq = []
    def vm_issue(tag): vmq.append(tag)
    def vm_wait(tag):
        idx = max(i for i, t in enumerate(vmq) if t == tag)
        n = len(vmq) - 1 - idx
        a(f"s_waitcnt vmcnt({n})")
    def vm_window(W):
        a(f"s_waitcnt vmcnt({W-1})")
    if cfg.bar_first:
        a("s_barrier")
    if cfg.emode == "s": a("s_load_dword s99, s[26:27], 0")
    else:
        a(f"global_load_dword {vE}, v{TM}, s[26:27]" + (" sc1" if cfg.emode == "sc1" else "")); vm_issue("E")
    def tile_off(u):
        a(f"s_add_u32 s32, s31, {8*u}"); a("s_and_b32 s32, s32, 31"); a("s_lshl_b32 s32, s32, 12")
    nissued = [1]
    def issue_k(u, r):
        if r == 0:
            tile_off(u)
            a("s_add_u32 s34, s6, s32"); a("s_addc_u32 s35, s7, 0")
            a(f"s_add_u32 s33, s37, {4096*u}"); a("s_mov_b32 m0, s33")
        a(f"global_load_lds_dwordx4 v{vKA[r]}, s[34:35] offset:{1024*r}{NT}"); vm_issue(("k", u, r))
    def issue_v(i):
        u, r = divmod(i, 4)
        if r == 0:
            tile_off(u)
            a("s_add_u32 s38, s8, s32"); a("s_addc_u32 s39, s9, 0")
        a(f"global_load_dwordx4 v[{VB+4*i}:{VB+4*i+3}], v{vVA}, s[38:39] offset:{1024*r}{NT}"); vm_issue(("v", i))
        if i == cfg.trig - 1:
            arrive(C_V, "v10", "v11")
        if i == cfg.v2_at:
            a(f"s_setprio {cfg.prio_v2}")
    kops = [(u, r) for u in range(4) for r in range(4)]
    bar_done = False
    for i, (u, r) in enumerate(kops):
        if i >= cfg.Wk: vm_window(cfg.Wk)
        if r == 0 and u > 0: stamp(6 + u)
        issue_k(u, r)
        if i == cfg.Wk - 1 and not cfg.bar_first:
            a("s_waitcnt lgkmcnt(0)"); a("s_barrier")
    stamp(1)
    a(f"s_setprio {cfg.prio_v1}")
    nv = 0
    for i in range(cfg.Wk):
        vm_window(cfg.Wk); issue_v(nv); nv += 1
    vm_wait(("k", 3, 3))
    for i in range(cfg.extra):
        issue_v(nv); nv += 1
    stamp(2)
    if cfg.emode == "s": a("s_waitcnt lgkmcnt(0)"); a(f"v_mov_b32 {vE}, s99")
    make_tag(vE, vT, f"v{TM}")
    spin_lds(C_Q, 4, "v10", f"v{TM}")
    stamp(3)
    for jj in range(4):
        a(f"ds_read_b128 v[{QB+4*jj}:{QB+4*jj+3}], v{vQA} offset:{64*jj}")
    def kread(u):
        b = KF + 16*(u & 1)
        for jj in range(4):
            a(f"ds_read_b128 v[{b+4*jj}:{b+4*jj+3}], v{vKR[jj]} offset:{4096*u}")
    kread(0); kread(1)
    for u in range(4):
        b = KF + 16*(u & 1)
        a("s_waitcnt lgkmcnt(4)" if u < 3 else "s_waitcnt lgkmcnt(0)")
        for jj in range(4):
            c = "0" if jj == 0 else f"v[{SB+4*u}:{SB+4*u+3}]"
            a(f"v_mfma_f32_16x16x32_bf16 v[{SB+4*u}:{SB+4*u+3}], v[{b+4*jj}:{b+4*jj+3}], v[{QB+4*jj}:{QB+4*jj+3}], {c}")
        if u + 2 < 4: kread(u + 2)
    a(f"s_mov_b32 s47, {hex(SCALE)}")
    for u in range(4):
        for h in range(2):
            s0 = SB + 4*u + 2*h
            t = TM + 2*h
            a(f"v_cvt_pk_bf16_f32 v{t}, v{s0}, v{s0+1}")
            a(f"v_lshlrev_b32 v{s0}, 16, v{t}")
            a(f"v_and_b32 v{s0+1}, 0xffff0000, v{t}")
            a(f"v_mul_f32 v{s0}, s47, v{s0}")
            a(f"v_mul_f32 v{s0+1}, s47, v{s0+1}")
            a(f"v_cvt_pk_bf16_f32 v{t+1}, v{s0}, v{s0+1}")
            a(f"v_lshlrev_b32 v{s0}, 16, v{t+1}")
            a(f"v_and_b32 v{s0+1}, 0xffff0000, v{t+1}")
    a(f"v_max3_f32 v{TM}, v{SB}, v{SB+1}, v{SB+2}")
    a(f"v_max3_f32 v{TM+1}, v{SB+3}, v{SB+4}, v{SB+5}")
    a(f"v_max3_f32 v{TM+2}, v{SB+6}, v{SB+7}, v{SB+8}")
    a(f"v_max3_f32 v{TM+3}, v{SB+9}, v{SB+10}, v{SB+11}")
    a(f"v_max3_f32 v{TM}, v{TM}, v{SB+12}, v{SB+13}")
    a(f"v_max3_f32 v{TM+1}, v{TM+1}, v{SB+14}, v{SB+15}")
    a(f"v_max3_f32 v{TM}, v{TM}, v{TM+1}, v{TM+2}")
    a(f"v_max_f32 v{TM}, v{TM}, v{TM+3}")
    allreduce_x16_x32("v_max_f32", [f"v{TM}"], [f"v{TM+1}"])
    a(f"v_mov_b32 v22, v{TM}")
    a("v_lshrrev_b32 v20, 3, v1"); a("v_and_b32 v20, 1, v20"); a("v_lshlrev_b32 v20, 5, v20")
    a(f"v_add_u32 v20, {LDS_M}, v20")
    a("s_lshl_b32 s28, s3, 2"); a("v_add_u32 v21, s28, v20")
    a(f"s_mov_b32 s48, {hex(LOG2E)}")
    a("v_mul_f32 v23, s48, v22")
    for i in range(16):
        a(f"v_fma_f32 v{SB+i}, v{SB+i}, s48, -v23")
    for i in range(16):
        a(f"v_exp_f32 v{SB+i}, v{SB+i}")
    a(f"v_add_f32 v24, v{SB}, v{SB+1}"); a(f"v_add_f32 v25, v{SB+2}, v{SB+3}")
    for i in range(4, 16, 2):
        t = 24 + ((i >> 1) & 1)
        a(f"v_add_f32 v{t}, v{t}, v{SB+i}")
        a(f"v_add_f32 v{t}, v{t}, v{SB+i+1}")
    a(f"v_add_f32 v24, v24, v25")
    for i in range(16):
        a(f"v_cvt_pk_bf16_f32 v{SB+i}, v{SB+i}, v{SB+i}")
    stamp(4)
    def publish_ml():
        allreduce_x16_x32("v_add_f32", ["v24"], ["v25"])
        set_exec(0x101, 0); a("ds_write_b32 v21, v22"); a("ds_write_b32 v21, v24 offset:64"); a("s_mov_b64 exec, -1")
        arrive_rtn(C_L, "v10", "v11", f"v{TM+1}", "s49")
        Lnoml = lab("noml")
        a("s_cmp_lg_u32 s49, 7"); a(f"s_cbranch_scc1 {Lnoml}")
        a(f"ds_read_b128 v[{KF}:{KF+3}], v20"); a(f"ds_read_b128 v[{KF+4}:{KF+7}], v20 offset:16")
        a(f"ds_read_b128 v[{KF+8}:{KF+11}], v20 offset:64"); a(f"ds_read_b128 v[{KF+12}:{KF+15}], v20 offset:80")
        a("s_waitcnt lgkmcnt(0)")
        a(f"v_max3_f32 v26, v{KF}, v{KF+1}, v{KF+2}"); a(f"v_max3_f32 v27, v{KF+3}, v{KF+4}, v{KF+5}")
        a(f"v_max3_f32 v26, v26, v{KF+6}, v{KF+7}"); a("v_max_f32 v26, v26, v27")
        for w in range(8): a(f"v_sub_f32 v{KF+w}, v{KF+w}, v26")
        for w in range(8): a(f"v_mul_f32 v{KF+w}, s48, v{KF+w}")
        for w in range(8): a(f"v_exp_f32 v{KF+w}, v{KF+w}")
        for w in range(8): a(f"v_mul_f32 v{KF+w}, v{KF+w}, v{KF+8+w}")
        a(f"v_add_f32 v{KF}, v{KF}, v{KF+1}"); a(f"v_add_f32 v{KF+2}, v{KF+2}, v{KF+3}")
        a(f"v_add_f32 v{KF+4}, v{KF+4}, v{KF+5}"); a(f"v_add_f32 v{KF+6}, v{KF+6}, v{KF+7}")
        a(f"v_add_f32 v{KF}, v{KF}, v{KF+2}"); a(f"v_add_f32 v{KF+4}, v{KF+4}, v{KF+6}")
        a(f"v_add_f32 v{KF+1}, v{KF}, v{KF+4}")
        a(f"v_mov_b32 v{KF}, v26"); a(f"v_mov_b32 v{KF+2}, 0"); a(f"v_mov_b32 v{KF+3}, 0")
        tag_insert(KF, vT)
        a("s_lshr_b32 s28, s96, 3"); a("s_and_b32 s29, s28, 15"); a("s_lshr_b32 s28, s28, 4")
        a("s_lshl_b32 s29, s29, 9"); a("s_lshl_b32 s28, s28, 7"); a("s_add_u32 s28, s28, s29")
        a("s_and_b32 s29, s96, 7"); a("s_lshl_b32 s29, s29, 4"); a("s_add_u32 s28, s28, s29"); a(f"s_add_u32 s28, s28, {WS_ML}")
        a("v_lshrrev_b32 v27, 3, v1"); a("v_and_b32 v27, 1, v27"); a("v_lshlrev_b32 v27, 8, v27"); a("v_add_u32 v27, s28, v27")
        set_exec(0x101, 0)
        a(f"global_store_dwordx4 v27, v[{KF}:{KF+3}], s[26:27] sc1")
        a("s_mov_b64 exec, -1")
        a.label(Lnoml)
    def wave_factor():
        spin_lds(C_L, 8, "v10", f"v{TM}")
        a(f"ds_read_b128 v[{KF}:{KF+3}], v20"); a(f"ds_read_b128 v[{KF+4}:{KF+7}], v20 offset:16")
        a("v_lshrrev_b32 v28, 4, v1"); a("v_lshlrev_b32 v28, 7, v28")
        a("v_lshrrev_b32 v29, 3, v1"); a("v_and_b32 v29, 1, v29"); a("v_lshl_add_u32 v28, v29, 9, v28")
        a("v_and_b32 v29, 7, v1"); a("v_lshl_add_u32 v28, v29, 4, v28")
        a("s_lshl_b32 s28, s96, 10"); a(f"s_add_u32 s28, s28, {WS_OB}"); a("v_add_u32 v28, s28, v28")
        a("s_lshl_b32 s28, s3, 10"); a(f"s_add_u32 s28, s28, {LDS_R2}"); a(f"v_add_u32 v29, s28, v{vVA}")
        a(f"v_add_u32 v30, {LDS_R2}, v{vVA}")
        a("s_waitcnt lgkmcnt(0)")
        a(f"v_max3_f32 v26, v{KF}, v{KF+1}, v{KF+2}"); a(f"v_max3_f32 v27, v{KF+3}, v{KF+4}, v{KF+5}")
        a(f"v_max3_f32 v26, v26, v{KF+6}, v{KF+7}"); a("v_max_f32 v26, v26, v27")
        a("v_sub_f32 v26, v22, v26"); a("v_mul_f32 v26, s48, v26"); a("v_exp_f32 v26, v26")
    did_factor = False
    for i in range(16):
        bt = BT + 4*(i & 1)
        for w in range(4):
            a(f"v_and_b32 v{bt+w}, v{SB+i}, v{12+w}")
        vm_wait(("v", i))
        c = "0" if i == 0 else f"v[{ACC}:{ACC+3}]"
        a(f"v_mfma_f32_16x16x32_bf16 v[{ACC}:{ACC+3}], v[{VB+4*i}:{VB+4*i+3}], v[{bt}:{bt+3}], {c}")
        if i % 4 == 3 and i < 15: stamp(10 + i // 4)
        while nv < 16 and nv - (i + 1) < cfg.Wv:
            issue_v(nv); nv += 1
        if i == cfg.ml_at:
            publish_ml()
        if nv == 16 and not did_factor and i > cfg.ml_at:
            wave_factor(); did_factor = True
            a(f"s_setprio {cfg.prio_tail}")
    stamp(5)
    for e in range(4): a(f"v_mul_f32 v{ACC+e}, v{ACC+e}, v26")
    a(f"ds_write_b128 v29, v[{ACC}:{ACC+3}]")
    arrive_rtn(C_O, "v10", "v11", f"v{TM}", "s49")
    a("s_cmp_lg_u32 s49, 7"); a("s_cbranch_scc1 L_att_done")
    for w in range(8):
        a(f"ds_read_b128 v[{KF+4*w}:{KF+4*w+3}], v30 offset:{1024*w}")
    def pk(d, x, y): a(f"v_pk_add_f32 v[{d}:{d+1}], v[{x}:{x+1}], v[{y}:{y+1}]")
    a("s_waitcnt lgkmcnt(6)")
    for e in (0, 2): pk(KF+e, KF+e, KF+4+e)
    a("s_waitcnt lgkmcnt(4)")
    for e in (0, 2): pk(KF+8+e, KF+8+e, KF+12+e)
    a("s_waitcnt lgkmcnt(2)")
    for e in (0, 2): pk(KF+16+e, KF+16+e, KF+20+e)
    for e in (0, 2): pk(KF+e, KF+e, KF+8+e)
    a("s_waitcnt lgkmcnt(0)")
    for e in (0, 2): pk(KF+24+e, KF+24+e, KF+28+e)
    for e in (0, 2): pk(KF+16+e, KF+16+e, KF+24+e)
    for e in (0, 2): pk(KF+e, KF+e, KF+16+e)
    tag_insert(KF, vT)
    a(f"global_store_dwordx4 v28, v[{KF}:{KF+3}], s[26:27] sc1")
    a.label("L_att_done")
    stamp(6)
    dump_stamps(8)
    a("s_endpgm")

    a.label("L_wts")
    a(f"s_setprio {cfg.prio_w}")
    a("s_sub_u32 s36, s3, 8")
    XR = 20; EX = 30; WQD = 48; FD = 68; AC = 116; BB = 140; TP = 148; TM = 160
    a("v_lshrrev_b32 v6, 3, v1"); a("v_and_b32 v7, 7, v1"); a("v_lshlrev_b32 v7, 4, v7")
    a("v_lshl_add_u32 v2, v6, 13, v7")
    a("s_movk_i32 s28, 9216"); a("v_mad_u32_u24 v3, v6, s28, v7")
    a("s_movk_i32 s28, 1152"); a("v_mad_u32_u24 v4, v6, s28, v7")
    a("v_lshrrev_b32 v8, 5, v1"); a("v_and_b32 v9, 31, v1")
    a("v_mul_u32_u24 v18, 36, v9"); a("v_mad_u32_u24 v18, v8, s28, v18")
    a(f"v_mov_b32 v{TM}, 0")
    for e in range(4): a(f"v_mov_b32 v{WQD+16+e}, 0")
    a("s_mov_b32 s50, 0x00ff00ff"); a("s_mov_b32 s51, 0xff00ff00")
    a("s_mov_b32 s52, 0xff00ff00"); a("s_mov_b32 s53, 0xff00ff00")
    a("s_mov_b32 s54, 0xffff0000"); a("s_mov_b32 s55, 0xffff0000")
    a("s_waitcnt lgkmcnt(0)")
    if cfg.emode != "s":
        a(f"global_load_dword v16, v{TM}, s[26:27]" + (" sc1" if cfg.emode == "sc1" else ""))
    a(f"global_load_dwordx4 v[{XR}:{XR+3}], v18, s[4:5]")
    a(f"global_load_dwordx4 v[{XR+4}:{XR+7}], v18, s[4:5] offset:16")
    a(f"global_load_dword v{XR+8}, v18, s[4:5] offset:32")
    a("s_and_b32 s56, s97, 3"); a("s_lshr_b32 s57, s97, 2")
    a(f"s_mul_i32 s28, s56, {144*8192}"); a("s_lshl_b32 s29, s57, 7"); a("s_add_u32 s28, s28, s29")
    a("s_add_u32 s10, s10, s28"); a("s_addc_u32 s11, s11, 0")
    a("s_lshl_b32 s28, s36, 16"); a("s_add_u32 s32, s10, s28"); a("s_addc_u32 s33, s11, 0")
    for i in range(4):
        a(f"global_load_dwordx4 v[{WQD+4*i}:{WQD+4*i+3}], v2, s[32:33]{NT}")
        if i < 3:
            a(f"s_add_u32 s32, s32, {32*8192}"); a("s_addc_u32 s33, s33, 0")
    a("s_lshl_b32 s28, s36, 15"); a(f"s_add_u32 s28, s28, {128*8192}")
    a("s_add_u32 s32, s10, s28"); a("s_addc_u32 s33, s11, 0")
    set_exec(0xffffffff, 0)
    a(f"global_load_dwordx4 v[{WQD+16}:{WQD+19}], v2, s[32:33]{NT}")
    a("s_mov_b64 exec, -1")
    a("s_waitcnt lgkmcnt(0)"); a("s_barrier")
    if cfg.emode == "s": a("s_load_dword s99, s[26:27], 0")
    stamp(1)
    a("s_mul_hi_u32 s58, s98, 0x55555556"); a("s_mul_i32 s59, s58, 3"); a("s_sub_u32 s59, s98, s59")
    a(f"s_mul_i32 s28, s59, {192*9216}"); a("s_min_u32 s29, s58, 71"); a("s_lshl_b32 s29, s29, 7"); a("s_add_u32 s28, s28, s29")
    a(f"s_mul_i32 s29, s36, {8*9216}"); a("s_add_u32 s28, s28, s29")
    a("s_add_u32 s16, s16, s28"); a("s_addc_u32 s17, s17, 0"); a("s_add_u32 s18, s18, s28"); a("s_addc_u32 s19, s19, 0")
    def ffn_issue(i0_, i1_):
        for i in range(i0_, i1_):
            a(f"global_load_dwordx4 v[{FD+8*i}:{FD+8*i+3}], v3, s[16:17]{NT}")
            a(f"global_load_dwordx4 v[{FD+8*i+4}:{FD+8*i+7}], v3, s[18:19]{NT}")
            if i < 5:
                a(f"s_add_u32 s16, s16, {32*9216}"); a("s_addc_u32 s17, s17, 0"); a(f"s_add_u32 s18, s18, {32*9216}"); a("s_addc_u32 s19, s19, 0")
    a("v_lshrrev_b32 v6, 3, v1"); a("v_and_b32 v6, 1, v6")
    a("v_lshrrev_b32 v7, 4, v1")
    a("s_movk_i32 s28, 2304"); a("v_mul_u32_u24 v5, 0x900, v6")
    a(f"v_add_u32 v5, {LDS_T}, v5")
    a("v_and_b32 v19, 1, v7"); a("v_lshl_add_u32 v19, v19, 3, v5")
    a("v_lshl_add_u32 v5, v7, 3, v5")
    a("v_mul_u32_u24 v6, 72, v9"); a("v_mul_u32_u24 v7, 0x900, v8"); a("v_add_u32 v6, v6, v7"); a(f"v_add_u32 v6, {LDS_T}, v6")
    a("v_lshl_add_u32 v7, v8, 2, v6")
    a("v_xor_b32 v8, 1, v8"); a("v_lshl_add_u32 v8, v8, 2, v6")
    a("s_waitcnt vmcnt(5)")
    stamp(2)
    for k in range(9):
        a(f"v_lshlrev_b32 v{EX+2*k}, 16, v{XR+k}"); a(f"v_and_b32 v{EX+2*k+1}, 0xffff0000, v{XR+k}")
    a(f"v_add_f32 v{TM}, v{EX}, v{EX+1}"); a(f"v_add_f32 v{TM+1}, v{EX+2}, v{EX+3}")
    for k in range(4, 18, 2):
        t = TM + ((k >> 1) & 1)
        a(f"v_add_f32 v{t}, v{t}, v{EX+k}"); a(f"v_add_f32 v{t}, v{t}, v{EX+k+1}")
    a(f"v_add_f32 v{TM}, v{TM}, v{TM+1}")
    def allreduce32(r, t):
        allreduce8("v_add_f32", [r])
        a(f"v_add_f32_dpp {r}, {r}, {r} row_mirror {DPP}")
        a(f"v_mov_b32 {t}, {r}"); a(f"v_permlane16_swap_b32 {r}, {t}"); a(f"v_add_f32 {r}, {r}, {t}")
    allreduce32(f"v{TM}", f"v{TM+1}")
    a(f"v_mul_f32 v{TM}, 0x3ae38e39, v{TM}")
    a(f"v_sub_f32 v{TM+2}, v{EX}, v{TM}"); a(f"v_mul_f32 v{TM+1}, v{TM+2}, v{TM+2}")
    a(f"v_sub_f32 v{TM+3}, v{EX+1}, v{TM}"); a(f"v_mul_f32 v{TM+4}, v{TM+3}, v{TM+3}")
    for k in range(2, 18, 2):
        a(f"v_sub_f32 v{TM+2}, v{EX+k}, v{TM}"); a(f"v_sub_f32 v{TM+3}, v{EX+k+1}, v{TM}")
        a(f"v_fmac_f32 v{TM+1}, v{TM+2}, v{TM+2}"); a(f"v_fmac_f32 v{TM+4}, v{TM+3}, v{TM+3}")
    a(f"v_add_f32 v{TM+1}, v{TM+1}, v{TM+4}")
    allreduce32(f"v{TM+1}", f"v{TM+2}")
    a(f"v_mul_f32 v{TM+1}, 0x3ae38e39, v{TM+1}")
    a(f"v_cvt_pk_bf16_f32 v{TM}, v{TM}, v{TM+1}")
    a(f"v_and_b32 v{TM+1}, 0xffff0000, v{TM}")
    a(f"v_lshlrev_b32 v{TM}, 16, v{TM}")
    a(f"v_add_f32 v{TM+1}, 0x3727c5ac, v{TM+1}")
    a(f"v_cvt_pk_bf16_f32 v{TM+1}, v{TM+1}, v{TM+1}"); a(f"v_and_b32 v{TM+1}, 0xffff0000, v{TM+1}")
    a(f"v_sqrt_f32 v{TM+1}, v{TM+1}")
    a(f"v_cvt_pk_bf16_f32 v{TM+1}, v{TM+1}, v{TM+1}"); a(f"v_and_b32 v{TM+1}, 0xffff0000, v{TM+1}")
    a(f"v_rcp_f32 v{TM+2}, v{TM+1}")
    for k in range(9):
        e0, e1 = EX + 2*k, EX + 2*k + 1
        a(f"v_sub_f32 v{e0}, v{e0}, v{TM}"); a(f"v_sub_f32 v{e1}, v{e1}, v{TM}")
        a(f"v_cvt_pk_bf16_f32 v{TM+3}, v{e0}, v{e1}")
        a(f"v_lshlrev_b32 v{e0}, 16, v{TM+3}"); a(f"v_and_b32 v{e1}, 0xffff0000, v{TM+3}")
        a(f"v_mul_f32 v{TM+4}, v{e0}, v{TM+2}"); a(f"v_mul_f32 v{TM+5}, v{e1}, v{TM+2}")
        a(f"v_fma_f32 v{e0}, -v{TM+4}, v{TM+1}, v{e0}"); a(f"v_fma_f32 v{e1}, -v{TM+5}, v{TM+1}, v{e1}")
        a(f"v_fmac_f32 v{TM+4}, v{e0}, v{TM+2}"); a(f"v_fmac_f32 v{TM+5}, v{e1}, v{TM+2}")
        a(f"v_cvt_pk_bf16_f32 v{e0}, v{TM+4}, v{TM+4}"); a(f"v_cvt_pk_bf16_f32 v{e1}, v{TM+5}, v{TM+5}")
        a(f"ds_write_b32 v7, v{e0} offset:{8*k}"); a(f"ds_write_b32 v8, v{e1} offset:{8*k}")
    if cfg.emode == "s": a("s_waitcnt lgkmcnt(0)"); a("v_mov_b32 v16, s99")
    make_tag("v16", "v17", f"v{TM}")
    stamp(3)
    def gemv_unit(dreg_list, pair, accs, first):
        for w in range(4): a(f"v_and_b32 v{BB+w}, v{pair}, v{12+w}")
        for w in range(4): a(f"v_and_b32 v{BB+4+w}, v{pair+1}, v{12+w}")
        for d, (d1, d2) in zip(dreg_list, accs):
            c1 = "0" if first else f"v[{d1}:{d1+3}]"; c2 = "0" if first else f"v[{d2}:{d2+3}]"
            a(f"v_mfma_f32_16x16x32_bf16 v[{d1}:{d1+3}], v[{d}:{d+3}], v[{BB}:{BB+3}], {c1}")
            a(f"v_mfma_f32_16x16x32_bf16 v[{d2}:{d2+3}], v[{d}:{d+3}], v[{BB+4}:{BB+7}], {c2}")
    def zsel(d1, d2):
        for e in range(4): a(f"v_cndmask_b32_e64 v{d1+e}, v{d2+e}, v{d1+e}, s[50:51]")
    a("s_mul_i32 s28, s56, 576"); a("s_lshl_b32 s29, s36, 5"); a("s_add_u32 s28, s28, s29"); a("v_add_u32 v6, s28, v5")
    for i in range(4): a(f"ds_read_b64 v[{TP+2*i}:{TP+2*i+1}], v6 offset:{128*i}")
    a("s_mul_i32 s28, s56, 576"); a("s_lshl_b32 s29, s36, 4"); a("s_add_u32 s28, s28, s29"); a("s_add_u32 s28, s28, 512"); a("v_add_u32 v6, s28, v19")
    a(f"ds_read_b64 v[{TP+8}:{TP+9}], v6")
    a("s_waitcnt vmcnt(0)")
    a("s_waitcnt lgkmcnt(0)")
    for i in range(5):
        gemv_unit([WQD + 4*i], TP + 2*i, [(AC, AC + 4)], i == 0)
    zsel(AC, AC + 4)
    a("v_lshlrev_b32 v18, 4, v1")
    a("s_lshl_b32 s28, s36, 10"); a(f"s_add_u32 s28, s28, {LDS_R1}"); a("v_add_u32 v6, s28, v18")
    a(f"ds_write_b128 v6, v[{AC}:{AC+3}]")
    arrive_rtn(C_WQ, "v10", "v11", f"v{TM}", "s49")
    Lnq = lab("noqpub")
    a("s_cmp_lg_u32 s49, 3"); a(f"s_cbranch_scc1 {Lnq}")
    a("v_and_b32 v6, 31, v1"); a("v_lshlrev_b32 v6, 4, v6"); a("v_lshrrev_b32 v7, 5, v1"); a("v_lshl_add_u32 v6, v7, 3, v6"); a(f"v_add_u32 v6, {LDS_R1}, v6")
    for w in range(4):
        for e in range(2):
            a(f"ds_read_b64 v[{EX+4*w+2*e}:{EX+4*w+2*e+1}], v6 offset:{1024*w+512*e}")
    a("v_lshrrev_b32 v8, 3, v1"); a("v_and_b32 v8, 1, v8"); a("v_lshlrev_b32 v8, 9, v8"); a("v_lshl_add_u32 v8, v7, 8, v8")
    a("v_lshrrev_b32 v9, 4, v1"); a("v_and_b32 v9, 1, v9"); a("v_lshl_add_u32 v8, v9, 7, v8")
    a("v_and_b32 v9, 7, v1"); a("v_lshl_add_u32 v8, v9, 4, v8")
    a("s_lshl_b32 s28, s97, 10"); a(f"s_add_u32 s28, s28, {WS_QB}"); a("v_add_u32 v8, s28, v8")
    a("s_waitcnt lgkmcnt(0)")
    for st in range(4):
        a(f"v_add_f32 v{EX+4*st}, v{EX+4*st}, v{EX+4*st+2}"); a(f"v_add_f32 v{EX+4*st+1}, v{EX+4*st+1}, v{EX+4*st+3}")
    for st in (0, 8):
        a(f"v_add_f32 v{EX+st}, v{EX+st}, v{EX+st+4}"); a(f"v_add_f32 v{EX+st+1}, v{EX+st+1}, v{EX+st+5}")
    a(f"v_add_f32 v{EX}, v{EX}, v{EX+8}"); a(f"v_add_f32 v{EX+2}, v{EX+1}, v{EX+9}")
    a(f"v_mov_b32 v{EX+1}, v16"); a(f"v_mov_b32 v{EX+3}, v16")
    a(f"global_store_dwordx4 v8, v[{EX}:{EX+3}], s[26:27] sc1")
    a.label(Lnq)
    stamp(4)
    Lnf1 = lab("noffn1")
    a("s_cmp_ge_u32 s98, 216"); a(f"s_cbranch_scc1 {Lnf1}")
    ffn_issue(0, cfg.ffn1)
    a("s_mul_i32 s28, s59, 768"); a("s_lshl_b32 s29, s36, 5"); a("s_add_u32 s28, s28, s29"); a("v_add_u32 v6, s28, v5")
    for i in range(6): a(f"ds_read_b64 v[{TP+2*i}:{TP+2*i+1}], v6 offset:{128*i}")
    a("s_waitcnt lgkmcnt(0)")
    if cfg.wait_ffn1: a("s_waitcnt vmcnt(0)")
    a.label(Lnf1)
    a("s_lshr_b32 s28, s96, 3"); a("s_lshr_b32 s60, s28, 4"); a("s_and_b32 s61, s28, 15")
    a("s_lshl_b32 s28, s61, 2"); a("s_add_u32 s28, s28, s36"); a("s_lshl_b32 s28, s28, 12")
    a("s_lshl_b32 s29, s60, 9"); a("s_add_u32 s28, s28, s29"); a(f"s_add_u32 s28, s28, {WS_QB}")
    a("v_and_b32 v6, 3, v1"); a("v_lshlrev_b32 v6, 10, v6")
    a("v_lshrrev_b32 v7, 2, v1"); a("v_and_b32 v7, 7, v7"); a("v_lshl_add_u32 v6, v7, 4, v6")
    a("v_lshrrev_b32 v8, 5, v1"); a("v_lshl_add_u32 v6, v8, 7, v6"); a("v_add_u32 v6, s28, v6")
    G = EX
    def iss():
        a(f"global_load_dwordx4 v[{G}:{G+3}], v6, s[26:27] sc1")
        a(f"global_load_dwordx4 v[{G+4}:{G+7}], v6, s[26:27] offset:256 sc1")
    def chk():
        a(f"v_bitop3_b32 v{TM}, v{G+1}, v{G+3}, v16 bitop3:0x7e")
        a(f"v_bitop3_b32 v{TM+1}, v{G+5}, v{G+7}, v16 bitop3:0x7e")
        a(f"v_or_b32 v{TM}, v{TM}, v{TM+1}")
    poll_loop(iss, chk, f"v{TM}")
    qv = [G, G + 2, G + 4, G + 6]
    allreduce_quad("v_add_f32", [f"v{r}" for r in qv])
    for r in qv: a(f"v_cvt_pk_bf16_f32 v{r}, v{r}, v{r}")
    a("s_lshr_b32 s28, s36, 1"); a("s_lshl_b32 s28, s28, 8"); a("s_and_b32 s29, s36, 1"); a("s_lshl_b32 s29, s29, 7")
    a("s_add_u32 s28, s28, s29"); a(f"s_add_u32 s28, s28, {LDS_Q}")
    a("v_lshlrev_b32 v8, 6, v8"); a("v_lshl_add_u32 v8, v7, 1, v8"); a("v_add_u32 v8, s28, v8")
    a("s_mov_b32 exec_lo, 0x11111111"); a("s_mov_b32 exec_hi, 0x11111111")
    for r in range(4): a(f"ds_write_b16 v8, v{qv[r]} offset:{16*r}")
    a("s_mov_b64 exec, -1")
    arrive(C_Q, "v10", "v11")
    stamp(5)

    Lnf2 = lab("noffn2")
    a("s_cmp_ge_u32 s98, 216"); a(f"s_cbranch_scc1 {Lnf2}")
    ffn_issue(cfg.ffn1, 6)
    for i in range(6):
        if i >= cfg.ffn1: a(f"s_waitcnt vmcnt({10-2*i})")
        gemv_unit([FD + 8*i, FD + 8*i + 4], TP + 2*i, [(AC, AC + 4), (AC + 8, AC + 12)], i == 0)
    zsel(AC, AC + 4); zsel(AC + 8, AC + 12)
    a("s_lshl_b32 s28, s36, 11"); a(f"s_add_u32 s28, s28, {LDS_R1+4096}"); a("v_add_u32 v6, s28, v18")
    a(f"ds_write_b128 v6, v[{AC}:{AC+3}]"); a(f"ds_write_b128 v6, v[{AC+8}:{AC+11}] offset:1024")
    arrive_rtn(C_GU, "v10", "v11", f"v{TM}", "s49")
    a("s_cmp_lg_u32 s49, 3"); a(f"s_cbranch_scc1 {Lnf2}")
    a("v_and_b32 v6, 31, v1"); a("v_lshlrev_b32 v6, 4, v6"); a("v_lshrrev_b32 v7, 5, v1"); a("v_lshl_add_u32 v6, v7, 10, v6"); a(f"v_add_u32 v6, {LDS_R1+4096}, v6")
    for w in range(4):
        for e in range(2):
            r = FD + 8*w + 4*e
            a(f"ds_read_b128 v[{r}:{r+3}], v6 offset:{2048*w+512*e}")
    a("v_lshrrev_b32 v8, 3, v1"); a("v_and_b32 v8, 1, v8"); a("v_lshlrev_b32 v8, 8, v8"); a("v_lshl_add_u32 v8, v7, 9, v8")
    a("v_lshrrev_b32 v9, 4, v1"); a("v_and_b32 v9, 1, v9"); a("v_lshl_add_u32 v8, v9, 7, v8")
    a("v_and_b32 v9, 7, v1"); a("v_lshl_add_u32 v8, v9, 4, v8")
    a("s_lshl_b32 s28, s98, 10"); a(f"s_add_u32 s28, s28, {WS_GU}"); a("v_add_u32 v8, s28, v8")
    a("s_waitcnt lgkmcnt(0)")
    for w in range(4):
        for e in range(4): a(f"v_add_f32 v{FD+8*w+e}, v{FD+8*w+e}, v{FD+8*w+4+e}")
    for w in (0, 2):
        for e in range(4): a(f"v_add_f32 v{FD+8*w+e}, v{FD+8*w+e}, v{FD+8*w+8+e}")
    for e in range(4): a(f"v_add_f32 v{FD+e}, v{FD+e}, v{FD+16+e}")
    tag_insert(FD, "v17")
    a(f"global_store_dwordx4 v8, v[{FD}:{FD+3}], s[26:27] sc1")
    a.label(Lnf2)
    stamp(6)
    a("s_cmp_lt_u32 s98, 144"); a("s_cbranch_scc1 L_wtype")
    a("s_cmp_lt_u32 s98, 160"); a("s_cbranch_scc1 L_wts_done")

    OA = EX
    def late_loads(sb):
        for t in range(4):
            for cg in range(3):
                r = FD + 12*t + 4*cg
                a(f"global_load_dwordx4 v[{r}:{r+3}], v4, s[{sb}:{sb+1}] offset:{128*cg}{NT}")
            if t < 3:
                a(f"s_add_u32 s{sb}, s{sb}, 9216"); a(f"s_addc_u32 s{sb+1}, s{sb+1}, 0")
    def late_gemv():
        for t in range(4):
            a(f"v_cndmask_b32_e64 v{TP}, v{OA+t}, v{OA+4+t}, s[52:53]")
            a(f"v_cndmask_b32_e64 v{TP+2}, v{OA+4+t}, v{OA+t}, s[52:53]")
            a(f"v_mov_b32_dpp v{TP+1}, v{TP+2} row_ror:8 {DPP}")
            gemv_unit([FD + 12*t + 4*cg for cg in range(3)], TP, [(AC + 8*cg, AC + 8*cg + 4) for cg in range(3)], t == 0)
        for cg in range(3): zsel(AC + 8*cg, AC + 8*cg + 4)
    def late_reduce(nW, sj, sslot):
        a("s_mul_i32 s28, s36, 3072"); a(f"s_add_u32 s28, s28, {LDS_R3}"); a("v_add_u32 v6, s28, v18")
        for cg in range(3): a(f"ds_write_b128 v6, v[{AC+8*cg}:{AC+8*cg+3}] offset:{1024*cg}")
        arrive_rtn(C_LATE, "v10", "v11", f"v{TM}", "s49")
        a(f"s_cmp_lg_u32 s49, {nW-1}"); a("s_cbranch_scc1 L_wts_done")
        a(f"v_add_u32 v6, {LDS_R3}, v18")
        for cg in range(3):
            for w in range(nW):
                r = FD + 16*cg + 4*w
                a(f"ds_read_b128 v[{r}:{r+3}], v6 offset:{3072*w+1024*cg}")
        a("v_lshrrev_b32 v7, 3, v1")
        a("v_and_b32 v8, 1, v7")
        a("v_lshrrev_b32 v7, 1, v7")
        a("v_lshl_add_u32 v7, v7, 1, v8")
        a("s_movk_i32 s28, 10240"); a("v_mul_lo_u32 v7, v7, s28")
        a("v_and_b32 v8, 7, v1"); a("v_lshl_add_u32 v7, v8, 4, v7")
        a(f"s_mul_i32 s28, {sj}, {12*10240}"); a(f"s_lshl_b32 s29, {sslot}, 7"); a("s_add_u32 s28, s28, s29"); a(f"s_add_u32 s28, s28, {WS_FIN}")
        a("v_add_u32 v7, s28, v7")
        for cg in range(3):
            a(f"s_waitcnt lgkmcnt({(2-cg)*nW})")
            r = FD + 16*cg
            for e in range(4): a(f"v_add_f32 v{r+e}, v{r+e}, v{r+4+e}")
            if nW == 4:
                for e in range(4): a(f"v_add_f32 v{r+8+e}, v{r+8+e}, v{r+12+e}")
            for e in range(4): a(f"v_add_f32 v{r+e}, v{r+e}, v{r+8+e}")
        r0, r1, r2 = FD, FD + 16, FD + 32
        for e in range(4): a(f"v_mov_b32 v{r2+4+e}, v{r2+e}")
        for e in range(4): a(f"v_permlane32_swap_b32 v{r0+e}, v{r1+e}")
        for e in range(4): a(f"v_permlane32_swap_b32 v{r2+e}, v{r2+4+e}")
        for e in range(4): a(f"v_add_f32 v{r0+e}, v{r0+e}, v{r1+e}")
        for e in range(4): a(f"v_add_f32 v{r2+e}, v{r2+e}, v{r2+4+e}")
        tag_insert(r0, "v17"); tag_insert(r2, "v17")
        a(f"global_store_dwordx4 v7, v[{r0}:{r0+3}], s[26:27] sc1")
        a(f"v_add_u32 v8, {8*10240}, v7")
        set_exec(0xffffffff, 0)
        a(f"global_store_dwordx4 v8, v[{r2}:{r2+3}], s[26:27] sc1")
        a("s_mov_b64 exec, -1")

    a("; ---- O type ----")
    a("s_sub_u32 s28, s98, 160"); a("s_mul_hi_u32 s62, s28, 0x55555556"); a("s_mul_i32 s29, s62, 3"); a("s_sub_u32 s63, s28, s29")
    a("v_and_b32 v6, 7, v1"); a("v_lshlrev_b32 v6, 4, v6"); a("s_lshl_b32 s28, s62, 8"); a(f"s_add_u32 s28, s28, {WS_ML}"); a("v_add_u32 v6, s28, v6")
    G = XR
    def iss():
        a(f"global_load_dwordx4 v[{G}:{G+3}], v6, s[26:27] sc1")
        a(f"global_load_dwordx4 v[{G+4}:{G+7}], v6, s[26:27] offset:128 sc1")
    def chk():
        tag_check(G, "v17", f"v{TM}", f"v{TM+1}", f"v{TM+2}", True)
        tag_check(G + 4, "v17", f"v{TM}", f"v{TM+1}", f"v{TM+2}", False)
    poll_loop(iss, chk, f"v{TM}", sleep=cfg.sl_ml)
    for bb in range(2):
        g = G + 4*bb
        a(f"v_and_b32 v{g}, s46, v{g}"); a(f"v_and_b32 v{g+1}, s46, v{g+1}")
        a(f"v_mov_b32 v{g+2}, v{g}")
    allreduce8("v_max_f32", [f"v{G+2}", f"v{G+6}"])
    a(f"s_mov_b32 s48, {hex(LOG2E)}")
    for bb in range(2):
        g = G + 4*bb
        a(f"v_sub_f32 v{g}, v{g}, v{g+2}"); a(f"v_mul_f32 v{g}, s48, v{g}"); a(f"v_exp_f32 v{g}, v{g}")
    for bb in range(2):
        g = G + 4*bb
        a(f"v_mul_f32 v{g+1}, v{g+1}, v{g}")
    allreduce8("v_add_f32", [f"v{G+1}", f"v{G+5}"])
    for bb in range(2):
        g = G + 4*bb
        a(f"v_rcp_f32 v{g+2}, v{g+1}")
    for bb in range(2):
        g = G + 4*bb
        a(f"v_mul_f32 v{28+bb}, v{g}, v{g+2}")
    a(f"s_mul_i32 s28, s62, {128*1152}"); a("s_mul_i32 s29, s63, 384"); a("s_add_u32 s28, s28, s29"); a(f"s_mul_i32 s29, s36, {32*1152}"); a("s_add_u32 s28, s28, s29")
    a("s_add_u32 s12, s12, s28"); a("s_addc_u32 s13, s13, 0")
    a("s_lshr_b32 s28, s62, 1"); a("s_lshl_b32 s28, s28, 13"); a("s_and_b32 s29, s62, 1"); a("s_lshl_b32 s29, s29, 9"); a("s_add_u32 s28, s28, s29")
    a("s_lshl_b32 s29, s36, 7"); a("s_add_u32 s28, s28, s29"); a(f"s_add_u32 s28, s28, {WS_OB}")
    a("v_and_b32 v6, 7, v1"); a("v_lshlrev_b32 v6, 10, v6"); a("v_lshrrev_b32 v7, 3, v1"); a("v_lshl_add_u32 v6, v7, 4, v6"); a("v_add_u32 v6, s28, v6")
    a(f"v_add_u32 v7, {16*8*1024}, v6")
    spin_lds(C_V, 8, "v10", f"v{TM}")
    a(f"s_setprio {cfg.prio_late}")
    stamp(7)
    late_loads(12)
    def iss():
        a(f"global_load_dwordx4 v[{OA}:{OA+3}], v6, s[26:27] sc1")
        a(f"global_load_dwordx4 v[{OA+4}:{OA+7}], v7, s[26:27] sc1")
    def chk():
        tag_check(OA, "v17", f"v{TM}", f"v{TM+1}", f"v{TM+2}", True)
        tag_check(OA + 4, "v17", f"v{TM}", f"v{TM+1}", f"v{TM+2}", False)
    poll_loop(iss, chk, f"v{TM}")
    stamp(8)
    tag_strip(OA); tag_strip(OA + 4)
    for bb in range(2):
        for e in range(4): a(f"v_mul_f32 v{OA+4*bb+e}, v{OA+4*bb+e}, v{28+bb}")
    allreduce8("v_add_f32", [f"v{OA+e}" for e in range(8)])
    for e in range(8): a(f"v_cvt_pk_bf16_f32 v{OA+e}, v{OA+e}, v{OA+e}")
    late_gemv()
    late_reduce(4, "s63", "s62")
    stamp(9)
    a("s_branch L_wts_done")

    a.label("L_wtype")
    a("; ---- W type ----")
    a("s_cmp_eq_u32 s36, 3"); a("s_cbranch_scc1 L_final")
    a("s_mul_i32 s28, s58, 3"); a("s_add_u32 s28, s28, s36"); a("s_lshr_b32 s29, s28, 1"); a("s_and_b32 s28, s28, 1")
    a("s_mul_i32 s29, s29, 3072"); a("s_lshl_b32 s28, s28, 7"); a("s_add_u32 s28, s28, s29"); a(f"s_add_u32 s28, s28, {WS_GU}")
    a("v_and_b32 v6, 3, v1"); a("v_cmp_ne_u32 s[56:57], 3, v6"); a("v_cndmask_b32_e64 v6, 0, v6, s[56:57]")
    a("v_lshlrev_b32 v6, 10, v6")
    a("v_lshrrev_b32 v7, 2, v1"); a("v_and_b32 v7, 1, v7"); a("v_lshl_add_u32 v6, v7, 9, v6")
    a("v_lshrrev_b32 v7, 3, v1"); a("v_lshl_add_u32 v6, v7, 4, v6"); a("v_add_u32 v6, s28, v6")
    def iss():
        a(f"global_load_dwordx4 v[{OA}:{OA+3}], v6, s[26:27] sc1")
        a(f"global_load_dwordx4 v[{OA+4}:{OA+7}], v6, s[26:27] offset:256 sc1")
    def chk():
        tag_check(OA, "v17", f"v{TM}", f"v{TM+1}", f"v{TM+2}", True)
        tag_check(OA + 4, "v17", f"v{TM}", f"v{TM+1}", f"v{TM+2}", False)
    poll_loop(iss, chk, f"v{TM}", sleep=cfg.sl_gu)
    tag_strip(OA); tag_strip(OA + 4)
    for e in range(8): a(f"v_cndmask_b32_e64 v{OA+e}, 0, v{OA+e}, s[56:57]")
    allreduce_quad("v_add_f32", [f"v{OA+e}" for e in range(8)])
    OB2 = OA + 8
    for e in range(8): a(f"v_mov_b32_dpp v{OB2+e}, v{OA+e} row_half_mirror {DPP}")
    a("s_mov_b32 s56, 0xf0f0f0f0"); a("s_mov_b32 s57, 0xf0f0f0f0")
    a(f"s_mov_b32 s48, {hex(LOG2E)}")
    for e in range(8):
        g, u = TM, TM + 1
        a(f"v_cndmask_b32_e64 v{g}, v{OA+e}, v{OB2+e}, s[56:57]")
        a(f"v_cndmask_b32_e64 v{u}, v{OB2+e}, v{OA+e}, s[56:57]")
        a(f"v_cvt_pk_bf16_f32 v{g}, v{g}, v{u}")
        a(f"v_and_b32 v{u}, 0xffff0000, v{g}"); a(f"v_lshlrev_b32 v{g}, 16, v{g}")
        a(f"v_mul_f32 v{TM+2}, s48, v{g}"); a(f"v_exp_f32 v{TM+2}, -v{TM+2}"); a(f"v_add_f32 v{TM+2}, 1.0, v{TM+2}")
        a(f"v_rcp_f32 v{TM+3}, v{TM+2}")
        a(f"v_mul_f32 v{TM+4}, v{g}, v{TM+3}")
        a(f"v_fma_f32 v{TM+5}, -v{TM+4}, v{TM+2}, v{g}"); a(f"v_fmac_f32 v{TM+4}, v{TM+5}, v{TM+3}")
        a(f"v_cvt_pk_bf16_f32 v{TM+4}, v{TM+4}, v{TM+4}"); a(f"v_and_b32 v{TM+4}, 0xffff0000, v{TM+4}")
        a(f"v_mul_f32 v{TM+4}, v{TM+4}, v{u}")
        a(f"v_cvt_pk_bf16_f32 v{OA+e}, v{TM+4}, v{TM+4}")
    a(f"s_mul_i32 s28, s58, {96*1152}"); a("s_mul_i32 s29, s59, 384"); a("s_add_u32 s28, s28, s29"); a(f"s_mul_i32 s29, s36, {32*1152}"); a("s_add_u32 s28, s28, s29")
    a("s_add_u32 s20, s20, s28"); a("s_addc_u32 s21, s21, 0")
    spin_lds(C_V, 8, "v10", f"v{TM}")
    a(f"s_setprio {cfg.prio_late}")
    stamp(7)
    late_loads(20)
    a("s_waitcnt vmcnt(0)")
    stamp(8)
    late_gemv()
    a("s_add_u32 s62, s58, 32")
    late_reduce(3, "s59", "s62")
    stamp(9)
    a("s_branch L_wts_done")

    a.label("L_final")
    a("s_cmp_ge_u32 s98, 36"); a("s_cbranch_scc1 L_wts_done")
    a("s_mul_i32 s28, s98, 10240"); a(f"s_add_u32 s28, s28, {WS_FIN}"); a("v_add_u32 v6, s28, v18")
    a("v_add_u32 v7, 4096, v6"); a("v_add_u32 v8, 8192, v6")
    a("s_and_b32 s28, s98, 1"); a("s_mul_i32 s28, s28, 576"); a("s_lshr_b32 s29, s98, 1"); a("s_lshl_b32 s29, s29, 5"); a("s_add_u32 s28, s28, s29")
    a("v_and_b32 v9, 31, v1"); a("v_add_u32 v9, s28, v9"); a("v_lshlrev_b32 v9, 1, v9")
    a("global_load_ushort v19, v9, s[4:5]")
    if cfg.fin_wait_v: spin_lds(C_V, 8, "v10", f"v{TM}")
    G = FD
    def iss():
        for t in range(6):
            base, off = (("v7", 1024*t) if t < 4 else ("v8", 1024*(t-4)))
            a(f"global_load_dwordx4 v[{G+4*t}:{G+4*t+3}], {base}, s[26:27] offset:{off} sc1")
    def chk():
        for t in range(6): tag_check(G + 4*t, "v17", f"v{TM}", f"v{TM+1}", f"v{TM+2}", t == 0)
    poll_loop(iss, chk, f"v{TM}", sleep=cfg.sl_fin)
    stamp(7)
    def reduce_slots(n):
        for t in range(n): tag_strip(G + 4*t)
        for t in range(1, n):
            for e in range(4): a(f"v_add_f32 v{G+e}, v{G+e}, v{G+4*t+e}")
        for e in range(4): a(f"v_add_f32_dpp v{G+e}, v{G+e}, v{G+e} row_ror:8 {DPP}")
        allreduce_x16_x32("v_add_f32", [f"v{G+e}" for e in range(4)], [f"v{G+4+e}" for e in range(4)])
        a(f"v_cndmask_b32_e64 v{G}, v{G}, v{G+1}, s[52:53]"); a(f"v_cndmask_b32_e64 v{G+2}, v{G+2}, v{G+3}, s[52:53]")
        a(f"v_cndmask_b32_e64 v{G}, v{G}, v{G+2}, s[54:55]")
    reduce_slots(6)
    a(f"s_mov_b32 s48, {hex(LOG2E)}")
    a(f"v_cvt_pk_bf16_f32 v{G}, v{G}, v{G}"); a(f"v_and_b32 v{G}, 0xffff0000, v{G}")
    a(f"v_mul_f32 v{TM+2}, s48, v{G}"); a(f"v_exp_f32 v{TM+2}, -v{TM+2}"); a(f"v_add_f32 v{TM+2}, 1.0, v{TM+2}")
    a(f"v_rcp_f32 v{TM+3}, v{TM+2}"); a(f"v_mul_f32 v{TM+4}, v{G}, v{TM+3}")
    a(f"v_fma_f32 v{TM+5}, -v{TM+4}, v{TM+2}, v{G}"); a(f"v_fmac_f32 v{TM+4}, v{TM+5}, v{TM+3}")
    a(f"v_cvt_pk_bf16_f32 v{TM+4}, v{TM+4}, v{TM+4}"); a(f"v_and_b32 v20, 0xffff0000, v{TM+4}")
    a("v_lshlrev_b32 v19, 16, v19")
    def iss():
        for t in range(4):
            a(f"global_load_dwordx4 v[{G+4*t}:{G+4*t+3}], v6, s[26:27] offset:{1024*t} sc1")
    def chk():
        for t in range(4): tag_check(G + 4*t, "v17", f"v{TM}", f"v{TM+1}", f"v{TM+2}", t == 0)
    poll_loop(iss, chk, f"v{TM}")
    stamp(8)
    reduce_slots(4)
    a(f"v_cvt_pk_bf16_f32 v{G}, v{G}, v{G}"); a(f"v_and_b32 v{G}, 0xffff0000, v{G}")
    a(f"v_mul_f32 v{G}, v{G}, v20"); a(f"v_cvt_pk_bf16_f32 v{G}, v{G}, v{G}"); a(f"v_and_b32 v{G}, 0xffff0000, v{G}")
    a(f"v_add_f32 v{G}, v19, v{G}"); a(f"v_cvt_pk_bf16_f32 v{G}, v{G}, v{G}")
    set_exec(0xffffffff, 0)
    a(f"global_store_short v9, v{G}, s[22:23]")
    a("s_mov_b64 exec, -1")
    a("s_cmp_lg_u32 s98, 0"); a("s_cbranch_scc1 L_wts_done")
    a(f"v_mov_b32 v{TM}, 0")
    a("s_mov_b64 exec, 1")
    a(f"global_store_dword v{TM}, v16, s[26:27] sc1")
    a("s_mov_b64 exec, -1")
    a.label("L_wts_done")
    stamp(10)
    dump_stamps(12)
    a.label("L_end")
    a("s_endpgm")
    return a

HEADER = """; Kernarg layout (96 bytes, pointers only, base s[0:1]):
; @launch grid=(256,1,1) block=(768,1,1) lds=%d
.amdgcn_target "amdgcn-amd-amdhsa--gfx950"
.text
.globl %s
.p2align 8
.type %s,@function
"""
FOOTER = """.section .rodata,"a"
.p2align 6
.amdhsa_kernel %s
  .amdhsa_next_free_vgpr 168
  .amdhsa_next_free_sgpr 102
  .amdhsa_accum_offset 168
  .amdhsa_group_segment_fixed_size 0
  .amdhsa_kernarg_size 96
  .amdhsa_user_sgpr_count 2
  .amdhsa_user_sgpr_kernarg_segment_ptr 1
  .amdhsa_system_sgpr_workgroup_id_x 1
  .amdhsa_float_denorm_mode_32 3
.end_amdhsa_kernel
"""
def build(cfg):
    a = gen(cfg)
    lds = (LDS_END + 255) // 256 * 256
    return HEADER % (lds, KNAME, KNAME) + a.text() + FOOTER % KNAME

if __name__ == "__main__":
    out = sys.argv[1] if len(sys.argv) > 1 else "k.s"
    kw = eval(sys.argv[2]) if len(sys.argv) > 2 else {}
    open(out, "w").write(build(Cfg(**kw)))
```

```python
import sys, json
sys.path.insert(0, 'work')
from asmb import Asm

KNAME = "recurrent_scan__sliding_block_cached__glu_gated_swiglu__decode_kernel"

LDS_K  = 0
LDS_T  = 131072
LDS_Q  = LDS_T + 4608
LDS_R1 = LDS_Q + 512
LDS_R2 = LDS_K + 16384
LDS_R3 = LDS_R1 + 12288
LDS_M  = LDS_R3 + 12288
LDS_C  = LDS_M + 128
LDS_END = LDS_C + 64
C_WQ, C_GU, C_Q, C_M, C_L, C_V, C_O, C_LATE = [4*i for i in range(8)]

WS_QB  = 0x010000
WS_QF  = 0x050000
WS_GU  = 0x060000
WS_ML  = 0x0A0000
WS_OB  = 0x0B0000
WS_OBL = 0x180000
WS_FIN = 0x100000
WS_DBG = 0x200000

LOG2E = 0x3fb8aa3b
SCALE = 0x3db504f3
SPIN_MAX = 1 << 22

class Cfg:
    def __init__(self, **kw):
        self.Wk = 4; self.Wv = 4; self.extra = 2; self.trig = 16; self.rot = 1
        self.attmap = 'id'; self.rmap = 'id'; self.emode = 's'; self.dbgout = False; self.sl_v = 0; self.late_gather = 0; self.qk_at = 12; self.fac_at = 8; self.Wl = 12; self.tilemap = 'cu'; self.wtab = None; self.plan = None; self.b2_early = True; self.sl_q = 0; self.trig_c = None; self.pmax_q = None; self.pmax_gu = None; self.local_o = False; self.stamp_set = None; self.skip_qk = False; self.code_pf = 0; self.code_pf_wave = 11; self.sl_o = 0; self.x_noq = False; self.x_nogu = False; self.q2 = False; self.sl_q2 = 2; self.masked = True; self.wait_ffn1 = True; self.bar_first = True; self.sl_gu = 4; self.sl_ml = 4; self.sl_fin = 2; self.fin_wait_v = True; self.ffn1 = 3; self.ml_at = 3; self.prio_k = 2; self.prio_v1 = 1; self.prio_v2 = 0; self.v2_at = 8; self.prio_tail = 3; self.prio_w = 3; self.prio_late = 3; self.stamps = False; self.nt = " nt"
        self.spin_max = SPIN_MAX
        self.__dict__.update(kw)

def make_roles(cfg):
    ids = list(range(256))
    def att_of(c):
        x, i = c & 7, c >> 3
        if cfg.attmap == "id": return c
        if cfg.attmap == "T": return (c & 31) * 8 + (c >> 5)
        if cfg.attmap == "X":
            return (((i >> 3) & 1) * 16 + 2 * x + (i >> 4)) * 8 + (i & 7)
    att = [att_of(c) for c in ids]
    if cfg.plan is None:
        if cfg.rmap == "odd":
            R = [c if c < 176 else (176 + ((c - 176) >> 1) + 40 * (c & 1)) for c in ids]
        else: R = list(ids)
        return [(att[c], c, R[c], R[c]) for c in ids]
    p = cfg.plan
    nlight = p["nlight"]
    assert sum(nlight) == 40
    light = [c for c in ids if (c >> 3) >= 32 - nlight[c & 7]]
    heavy = [c for c in ids if c not in light]
    slowR = [r for r in range(216) if (r // 3) % 8 == 3]
    normR = [r for r in range(216) if r not in slowR]
    R = {}
    pref = p.get("slow_dies", [0, 2, 6])
    cand = sorted([c for c in heavy if (c & 7) in pref], key=lambda c: (c >> 3, pref.index(c & 7)))
    for c, r in zip(cand, slowR): R[c] = r
    rest = [c for c in heavy if c not in R]
    for c, r in zip(rest, normR): R[c] = r
    for k, c in enumerate(light): R[c] = 216 + k
    slowQ = [w for w in range(256) if (w >> 2) % 8 == 3]
    normQ = [w for w in range(256) if w not in slowQ]
    Q = {}
    if p.get("slowq_light", True):
        for c, w in zip(light, slowQ): Q[c] = w
    else:
        cand = [c for c in heavy if (c & 7) in pref and R[c] not in slowR]
        for c, w in zip(cand, slowQ): Q[c] = w
    rest = [c for c in ids if c not in Q]
    used = set(Q.values())
    for c, w in zip(rest, [w for w in range(256) if w not in used]): Q[c] = w
    nO = p.get("nO", [12]*8); nS = p.get("nS", [2]*8)
    assert sum(nO) == 96 and sum(nS) == 16
    L = {}
    Os, Ss, Ws = [], [], []
    for x in range(8):
        cs = [c for c in ids if (c & 7) == x]
        cs.sort(key=lambda c: (0 if c in light else 1, 1 if R[c] in slowR else 0, c))
        if p.get("o_heavy_first"): cs = cs[::-1]
        Os += cs[:nO[x]]; rem = cs[nO[x]:]
        Ss += rem[len(rem)-nS[x]:] if nS[x] else []
        Ws += rem[:len(rem)-nS[x]]
    Ws.sort(key=lambda c: (c >> 3, c & 7))
    Os.sort(key=lambda c: (c >> 3, c & 7))
    for k, c in enumerate(Ws): L[c] = k
    for k, c in enumerate(Ss): L[c] = 144 + k
    if cfg.attmap == "X":
        assert nO == [12]*8
        for x in range(8):
            cs = sorted(c for c in Os if (c & 7) == x)
            for k, c in enumerate(cs): L[c] = 160 + 12 * x + k
    else:
        for k, c in enumerate(Os): L[c] = 160 + k
    out = [(att[c], Q[c], R[c], L[c]) for c in ids]
    for k in range(4): assert sorted(o[k] for o in out) == ids
    return out

def gen(cfg):
    a = Asm()
    NT = cfg.nt
    uid = [0]
    def lab(p):
        uid[0] += 1
        return f"L_{p}_{uid[0]}"

    nstamp = [0]
    def stamp(idx):
        if cfg.stamps and (cfg.stamp_set is None or idx in cfg.stamp_set):
            a(f"s_memrealtime s[{64+2*idx}:{65+2*idx}]")
    def dump_dbg(att):
        if att: return
        L = lab("nodbg")
        a("s_waitcnt vmcnt(0) lgkmcnt(0)")
        a("s_cmp_lg_u32 s3, 11"); a(f"s_cbranch_scc1 {L}")
        a("s_cmp_ge_u32 s2, 8"); a(f"s_cbranch_scc1 {L}")
        a("s_mov_b64 exec, 1")
        a("s_lshl_b32 s29, s2, 2"); a("v_mov_b32 v2, s29")
        a("v_mov_b32 v4, s64"); a("v_mov_b32 v5, s84")
        a("global_store_dword v2, v4, s[24:25]"); a("global_store_dword v2, v5, s[24:25] offset:32")
        a.label(L)
    def dump_stamps(n):
        if cfg.dbgout:
            dump_dbg(n == 8)
            return
        if not cfg.stamps: return
        a("s_waitcnt vmcnt(0) lgkmcnt(0)")
        a("s_mov_b64 exec, 1")
        a("s_lshl_b32 s28, s2, 4"); a("s_add_u32 s28, s28, s3"); a("s_lshl_b32 s28, s28, 7")
        a(f"s_add_u32 s28, s28, {WS_DBG}")
        a("v_mov_b32 v2, s28")
        for q in range(0, 16, 4):
            for e in range(4):
                a(f"v_mov_b32 v{4+e}, s{64+2*(q+e)}")
            a(f"global_store_dwordx4 v2, v[4:7], s[26:27] offset:{q*4}")
        a("s_getreg_b32 s28, hwreg(HW_REG_XCC_ID)")
        a("v_mov_b32 v4, s28")
        a("global_store_dword v2, v4, s[26:27] offset:64")

    def spin_lds(cnt_off, target, vaddr, vtmp, stmp="s29", sto="s30", sleep=0):
        L = lab("spin"); D = lab("spind")
        a(f"s_mov_b32 {sto}, 0")
        a.label(L)
        a(f"ds_read_b32 {vtmp}, {vaddr} offset:{cnt_off}")
        a("s_waitcnt lgkmcnt(0)")
        a(f"v_readfirstlane_b32 {stmp}, {vtmp}")
        a(f"s_cmp_ge_u32 {stmp}, {target}")
        a(f"s_cbranch_scc1 {D}")
        if sleep: a(f"s_sleep {sleep}")
        a(f"s_add_u32 {sto}, {sto}, 1")
        a(f"s_cmp_lt_u32 {sto}, {cfg.spin_max}")
        a(f"s_cbranch_scc1 {L}")
        a.label(D)

    def set_exec(lo, hi):
        a(f"s_mov_b32 exec_lo, {hex(lo)}"); a(f"s_mov_b32 exec_hi, {hex(hi)}")

    def arrive_rtn(cnt_off, vaddr, vone, vtmp, sdst):
        a("s_mov_b64 exec, 1")
        a(f"ds_add_rtn_u32 {vtmp}, {vaddr}, {vone} offset:{cnt_off}")
        a("s_waitcnt lgkmcnt(0)")
        a(f"v_readfirstlane_b32 {sdst}, {vtmp}")
        a("s_mov_b64 exec, -1")

    def arrive(cnt_off, vaddr, vone):
        a("s_mov_b64 exec, 1")
        a(f"ds_add_u32 {vaddr}, {vone} offset:{cnt_off}")
        a("s_mov_b64 exec, -1")

    DPP = "row_mask:0xf bank_mask:0xf"
    def allreduce8(op, regs, tmp=None):
        for r in regs: a(f"{op}_dpp {r}, {r}, {r} quad_perm:[1,0,3,2] {DPP}")
        for r in regs: a(f"{op}_dpp {r}, {r}, {r} quad_perm:[2,3,0,1] {DPP}")
        for r in regs: a(f"{op}_dpp {r}, {r}, {r} row_half_mirror {DPP}")
    def allreduce_quad(op, regs):
        for r in regs: a(f"{op}_dpp {r}, {r}, {r} quad_perm:[1,0,3,2] {DPP}")
        for r in regs: a(f"{op}_dpp {r}, {r}, {r} quad_perm:[2,3,0,1] {DPP}")
    def allreduce_x16_x32(op, regs, tmps):
        for r, t in zip(regs, tmps): a(f"v_mov_b32 {t}, {r}")
        for r, t in zip(regs, tmps): a(f"v_permlane16_swap_b32 {r}, {t}")
        for r, t in zip(regs, tmps): a(f"{op} {r}, {r}, {t}")
        for r, t in zip(regs, tmps): a(f"v_mov_b32 {t}, {r}")
        for r, t in zip(regs, tmps): a(f"v_permlane32_swap_b32 {r}, {t}")
        for r, t in zip(regs, tmps): a(f"{op} {r}, {r}, {t}")

    def tag_consts():
        for i in range(4): a(f"s_mov_b32 s{40+i}, {hex(0x07060500+i)}")
        a("s_mov_b32 s44, 0x0c0c0400"); a("s_mov_b32 s45, 0x04000c0c"); a("s_mov_b32 s46, 0xffffff00")
    def make_tag(vE, vT, t1):
        a(f"v_add_u32 {vE}, 1, {vE}")
        a(f"s_mov_b32 s28, 0x9E3779B1")
        a(f"v_mul_lo_u32 {vT}, {vE}, s28")
        a(f"v_not_b32 {t1}, {vT}")
        a(f"v_and_b32 {t1}, 1, {t1}")
        a(f"v_lshlrev_b32 {t1}, 8, {t1}")
        a(f"v_and_b32 {vT}, 0xfffffeff, {vT}")
        a(f"v_or_b32 {vT}, {vT}, {t1}")
    def tag_insert(base, vT):
        for i in range(4): a(f"v_perm_b32 v{base+i}, v{base+i}, {vT}, s{40+i}")
    def tag_check(base, vT, vacc, t1, t2, first):
        a(f"v_perm_b32 {t1}, v{base+1}, v{base}, s44")
        a(f"v_perm_b32 {t2}, v{base+3}, v{base+2}, s45")
        if first:
            a(f"v_bitop3_b32 {vacc}, {t1}, {t2}, {vT} bitop3:0x56")
        else:
            a(f"v_bitop3_b32 {t1}, {t1}, {t2}, {vT} bitop3:0x56")
            a(f"v_or_b32 {vacc}, {vacc}, {t1}")
    def tag_strip(base):
        for i in range(4): a(f"v_and_b32 v{base+i}, s46, v{base+i}")
    def poll_loop(issue, check, vacc, sleep=0, pmax=None):
        L = lab("poll"); D = lab("polld")
        a("s_mov_b32 s30, 0")
        a.label(L)
        issue()
        a("s_waitcnt vmcnt(0)")
        check()
        a(f"v_cmp_ne_u32 vcc, 0, {vacc}")
        a(f"s_cbranch_vccz {D}")
        if cfg.masked: a("s_mov_b64 exec, vcc")
        if sleep: a(f"s_sleep {sleep}")
        a("s_add_u32 s30, s30, 1")
        a(f"s_cmp_lt_u32 s30, {pmax if pmax else cfg.spin_max}")
        a(f"s_cbranch_scc1 {L}")
        a.label(D)
        if cfg.masked: a("s_mov_b64 exec, -1")

    a.raw(f"{KNAME}:")
    a("s_cmp_ge_u32 s2, 256")
    a("s_cbranch_scc1 L_end")
    if cfg.dbgout or cfg.stamps:
        for i in range(1, 16): a(f"s_mov_b32 s{64+2*i}, 0")
    stamp(0)
    a("s_load_dwordx16 s[4:19], s[0:1], 0")
    a("s_load_dwordx8 s[20:27], s[0:1], 64")
    a("v_lshrrev_b32 v2, 6, v0")
    a("v_and_b32 v1, 63, v0")
    a("v_readfirstlane_b32 s3, v2")
    a("s_getpc_b64 s[28:29]")
    a.label("L_pc")
    a("s_add_u32 s28, s28, L_roles-L_pc"); a("s_addc_u32 s29, s29, 0")
    a("s_lshl_b32 s30, s2, 2")
    a("s_load_dword s101, s[28:29], s30")
    if cfg.code_pf:
        Lpf = lab("nopf")
        a(f"s_cmp_lg_u32 s3, {cfg.code_pf_wave}"); a(f"s_cbranch_scc1 {Lpf}")
        a("s_getpc_b64 s[30:31]")
        a.label("L_pf")
        a("v_lshlrev_b32 v3, 7, v1")
        for k in range(cfg.code_pf):
            a("v_min_u32 v4, L_roles+1020-L_pf, v3")
            a(f"global_load_dword v167, v4, s[30:31]")
            if k < cfg.code_pf - 1: a("v_add_u32 v3, 0x2000, v3")
        a.label(Lpf)
    a("v_and_b32 v3, 7, v1")
    a("v_and_b32 v4, 1, v3"); a("v_lshlrev_b32 v4, 4, v4"); a("v_mov_b32 v5, 0xffff"); a("v_lshlrev_b32 v4, v4, v5")
    a("v_lshrrev_b32 v3, 1, v3")
    for w in range(4):
        a(f"v_cmp_eq_u32 vcc, {w}, v3"); a(f"v_cndmask_b32 v{12+w}, 0, v4, vcc")
    a(f"v_mov_b32 v10, {LDS_C}")
    a("v_mov_b32 v11, 1")
    tag_consts()
    Lni = lab("noinit")
    a("s_cmp_lg_u32 s3, 0"); a(f"s_cbranch_scc1 {Lni}")
    a("v_lshlrev_b32 v3, 2, v1"); a(f"v_add_u32 v3, {LDS_C}, v3"); a("v_mov_b32 v4, 0")
    set_exec(0xffff, 0); a("ds_write_b32 v3, v4"); a("s_mov_b64 exec, -1")
    a.label(Lni)
    a("s_cmp_ge_u32 s3, 8"); a("s_cbranch_scc1 L_wts")

    vE, vT = "v16", "v17"
    vKA = [2, 3, 4, 5]; vVA = 6; vKR = [7, 8, 9, 18]; vQA = 19
    QB = 20; SB = 36; KF = 52; ACC = 84; BT = 88; VB = 96; TM = 160
    a(f"s_setprio {cfg.prio_k}")
    a("v_lshrrev_b32 v20, 4, v1"); a("v_and_b32 v21, 15, v1")
    a("v_lshlrev_b32 v22, 2, v20"); a("v_lshlrev_b32 v23, 8, v20")
    for r in range(4):
        a(f"v_add_u32 v24, {r}, v22"); a("v_xor_b32 v24, v24, v21"); a(f"v_lshl_add_u32 v{vKA[r]}, v24, 4, v23")
    a(f"v_lshlrev_b32 v{vVA}, 4, v1")
    a("v_lshrrev_b32 v22, 2, v21"); a("v_and_b32 v23, 3, v21")
    a("v_lshl_add_u32 v24, v23, 2, v22"); a("v_lshlrev_b32 v24, 8, v24")
    a("v_xor_b32 v25, v23, v20")
    a("s_lshl_b32 s28, s3, 14"); a("v_add_u32 v24, s28, v24")
    a("v_lshl_add_u32 v24, v25, 4, v24")
    for jj in range(4):
        a(f"v_xor_b32 v26, {jj}, v22"); a(f"v_lshl_add_u32 v{vKR[jj]}, v26, 6, v24")
    a("v_lshrrev_b32 v22, 3, v1"); a("v_and_b32 v22, 1, v22"); a("v_lshlrev_b32 v22, 8, v22")
    a(f"v_lshl_add_u32 v{vQA}, v20, 4, v22"); a(f"v_add_u32 v{vQA}, {LDS_Q}, v{vQA}")
    a(f"v_mov_b32 v{TM}, 0")
    a("s_waitcnt lgkmcnt(0)")
    a("s_and_b32 s96, s101, 0xff"); a("s_bfe_u32 s97, s101, 0x80008"); a("s_bfe_u32 s98, s101, 0x80010"); a("s_lshr_b32 s101, s101, 24")
    if cfg.tilemap == "cu":
        a("s_lshr_b32 s28, s96, 3"); a("s_and_b32 s29, s96, 7")
        a("s_lshl_b32 s28, s28, 23"); a("s_lshl_b32 s29, s29, 17"); a("s_add_u32 s28, s28, s29"); a("s_add_u32 s28, s28, 0x700000")
        a(f"s_mul_i32 s31, s96, {cfg.rot}"); a("s_add_u32 s31, s31, s3")
    else:
        a("s_lshr_b32 s29, s96, 3"); a("s_lshl_b32 s28, s29, 23"); a("s_add_u32 s28, s28, 0x700000")
        a(f"s_mul_i32 s31, s29, {cfg.rot}"); a("s_and_b32 s29, s96, 7")
        if cfg.tilemap == "pair":
            a("s_lshl_b32 s29, s29, 3"); a("s_add_u32 s31, s31, s29"); a("s_add_u32 s31, s31, s3")
        elif cfg.tilemap == "pair2":
            a("s_add_u32 s31, s31, s29"); a("s_lshl_b32 s29, s3, 3"); a("s_add_u32 s31, s31, s29")
    a("s_add_u32 s6, s6, s28"); a("s_addc_u32 s7, s7, 0"); a("s_add_u32 s8, s8, s28"); a("s_addc_u32 s9, s9, 0")
    a("s_lshl_b32 s37, s3, 14")
    if cfg.wtab:
        packed = sum(w << (4*i) for i, w in enumerate(cfg.wtab))
        a("s_getreg_b32 s100, hwreg(HW_REG_XCC_ID, 0, 3)"); a("s_lshl_b32 s100, s100, 2")
        a(f"s_lshr_b32 s100, {hex(packed)}, s100"); a("s_and_b32 s100, s100, 15")
    vmq = []
    def vm_issue(tag): vmq.append(tag)
    def vm_wait(tag):
        idx = max(i for i, t in enumerate(vmq) if t == tag)
        n = len(vmq) - 1 - idx
        a(f"s_waitcnt vmcnt({n})")
    def vm_window(W):
        if not cfg.wtab:
            a(f"s_waitcnt vmcnt({W-1})"); return
        lo, hi = min(cfg.wtab), max(cfg.wtab)
        D = lab("win")
        for w in range(hi, lo - 1, -1):
            a(f"s_waitcnt vmcnt({w-1})")
            if w > lo:
                a(f"s_cmp_ge_u32 s100, {w}"); a(f"s_cbranch_scc1 {D}")
        a.label(D)
    if cfg.bar_first:
        a("s_barrier")
    if cfg.emode == "s": a("s_load_dword s99, s[26:27], 0")
    else:
        a(f"global_load_dword {vE}, v{TM}, s[26:27]" + (" sc1" if cfg.emode == "sc1" else "")); vm_issue("E")
    def tile_off(u):
        if cfg.tilemap == "cu":
            a(f"s_add_u32 s32, s31, {8*u}"); a("s_and_b32 s32, s32, 31"); a("s_lshl_b32 s32, s32, 12")
        else:
            a(f"s_add_u32 s32, s31, {64*u}"); a("s_and_b32 s32, s32, 255"); a("s_lshl_b32 s32, s32, 12")
    nissued = [1]
    def issue_k(u, r):
        if r == 0:
            tile_off(u)
            a("s_add_u32 s34, s6, s32"); a("s_addc_u32 s35, s7, 0")
            a(f"s_add_u32 s33, s37, {4096*u}"); a("s_mov_b32 m0, s33")
        a(f"global_load_lds_dwordx4 v{vKA[r]}, s[34:35] offset:{1024*r}{NT}"); vm_issue(("k", u, r))
    def issue_v(i):
        u, r = divmod(i, 4)
        if r == 0:
            tile_off(u)
            a("s_add_u32 s38, s8, s32"); a("s_addc_u32 s39, s9, 0")
        a(f"global_load_dwordx4 v[{VB+4*i}:{VB+4*i+3}], v{vVA}, s[38:39] offset:{1024*r}{NT}"); vm_issue(("v", i))
        if cfg.trig_c is None and i == cfg.trig - 1:
            arrive(C_V, "v10", "v11")
        if i == cfg.v2_at:
            a(f"s_setprio {cfg.prio_v2}")
    kops = [(u, r) for u in range(4) for r in range(4)]
    bar_done = False
    for i, (u, r) in enumerate(kops):
        if i >= (min(cfg.wtab) if cfg.wtab else cfg.Wk): vm_window(cfg.Wk)
        if r == 0 and u > 0: stamp(6 + u)
        issue_k(u, r)
        if i == (min(cfg.wtab) if cfg.wtab else cfg.Wk) - 1 and not cfg.bar_first:
            a("s_waitcnt lgkmcnt(0)"); a("s_barrier")
    stamp(1)
    a(f"s_setprio {cfg.prio_v1}")
    nv = 0
    while nv < cfg.qk_at:
        vm_window(cfg.Wk if nv < cfg.Wk else cfg.Wv); issue_v(nv); nv += 1
    vm_wait(("k", 3, 3))
    for i in range(cfg.extra):
        if nv < 16: issue_v(nv); nv += 1
    stamp(2)
    if cfg.emode == "s": a("s_waitcnt lgkmcnt(0)"); a(f"v_mov_b32 {vE}, s99")
    make_tag(vE, vT, f"v{TM}")
    if not cfg.skip_qk:
        spin_lds(C_Q, 1 if cfg.q2 else 4, "v10", f"v{TM}")
        stamp(3)
        for jj in range(4):
            a(f"ds_read_b128 v[{QB+4*jj}:{QB+4*jj+3}], v{vQA} offset:{64*jj}")
        def kread(u):
            b = KF + 16*(u & 1)
            for jj in range(4):
                a(f"ds_read_b128 v[{b+4*jj}:{b+4*jj+3}], v{vKR[jj]} offset:{4096*u}")
        kread(0); kread(1)
        for u in range(4):
            b = KF + 16*(u & 1)
            a("s_waitcnt lgkmcnt(4)" if u < 3 else "s_waitcnt lgkmcnt(0)")
            for jj in range(4):
                c = "0" if jj == 0 else f"v[{SB+4*u}:{SB+4*u+3}]"
                a(f"v_mfma_f32_16x16x32_bf16 v[{SB+4*u}:{SB+4*u+3}], v[{b+4*jj}:{b+4*jj+3}], v[{QB+4*jj}:{QB+4*jj+3}], {c}")
            if u + 2 < 4: kread(u + 2)
        a(f"s_mov_b32 s47, {hex(SCALE)}")
        for u in range(4):
            for h in range(2):
                s0 = SB + 4*u + 2*h
                t = TM + 2*h
                a(f"v_cvt_pk_bf16_f32 v{t}, v{s0}, v{s0+1}")
                a(f"v_lshlrev_b32 v{s0}, 16, v{t}")
                a(f"v_and_b32 v{s0+1}, 0xffff0000, v{t}")
                a(f"v_mul_f32 v{s0}, s47, v{s0}")
                a(f"v_mul_f32 v{s0+1}, s47, v{s0+1}")
                a(f"v_cvt_pk_bf16_f32 v{t+1}, v{s0}, v{s0+1}")
                a(f"v_lshlrev_b32 v{s0}, 16, v{t+1}")
                a(f"v_and_b32 v{s0+1}, 0xffff0000, v{t+1}")
        a(f"v_max3_f32 v{TM}, v{SB}, v{SB+1}, v{SB+2}")
        a(f"v_max3_f32 v{TM+1}, v{SB+3}, v{SB+4}, v{SB+5}")
        a(f"v_max3_f32 v{TM+2}, v{SB+6}, v{SB+7}, v{SB+8}")
        a(f"v_max3_f32 v{TM+3}, v{SB+9}, v{SB+10}, v{SB+11}")
        a(f"v_max3_f32 v{TM}, v{TM}, v{SB+12}, v{SB+13}")
        a(f"v_max3_f32 v{TM+1}, v{TM+1}, v{SB+14}, v{SB+15}")
        a(f"v_max3_f32 v{TM}, v{TM}, v{TM+1}, v{TM+2}")
        a(f"v_max_f32 v{TM}, v{TM}, v{TM+3}")
        allreduce_x16_x32("v_max_f32", [f"v{TM}"], [f"v{TM+1}"])
        a(f"v_mov_b32 v22, v{TM}")
        a("v_lshrrev_b32 v20, 3, v1"); a("v_and_b32 v20, 1, v20"); a("v_lshlrev_b32 v20, 5, v20")
        a(f"v_add_u32 v20, {LDS_M}, v20")
        a("s_lshl_b32 s28, s3, 2"); a("v_add_u32 v21, s28, v20")
        a(f"s_mov_b32 s48, {hex(LOG2E)}")
        a("v_mul_f32 v23, s48, v22")
        for i in range(16):
            a(f"v_fma_f32 v{SB+i}, v{SB+i}, s48, -v23")
        for i in range(16):
            a(f"v_exp_f32 v{SB+i}, v{SB+i}")
        a(f"v_add_f32 v24, v{SB}, v{SB+1}"); a(f"v_add_f32 v25, v{SB+2}, v{SB+3}")
        for i in range(4, 16, 2):
            t = 24 + ((i >> 1) & 1)
            a(f"v_add_f32 v{t}, v{t}, v{SB+i}")
            a(f"v_add_f32 v{t}, v{t}, v{SB+i+1}")
        a(f"v_add_f32 v24, v24, v25")
        for i in range(16):
            a(f"v_cvt_pk_bf16_f32 v{SB+i}, v{SB+i}, v{SB+i}")
        stamp(4)
    else:
        a("v_mov_b32 v22, 0"); a("v_mov_b32 v24, 0"); a(f"s_mov_b32 s48, {hex(LOG2E)}")
        a("v_lshrrev_b32 v20, 3, v1"); a("v_and_b32 v20, 1, v20"); a("v_lshlrev_b32 v20, 5, v20")
        a(f"v_add_u32 v20, {LDS_M}, v20"); a("s_lshl_b32 s28, s3, 2"); a("v_add_u32 v21, s28, v20")
    def publish_ml():
        allreduce_x16_x32("v_add_f32", ["v24"], ["v25"])
        set_exec(0x101, 0); a("ds_write_b32 v21, v22"); a("ds_write_b32 v21, v24 offset:64"); a("s_mov_b64 exec, -1")
        arrive_rtn(C_L, "v10", "v11", f"v{TM+1}", "s49")
        Lnoml = lab("noml")
        a("s_cmp_lg_u32 s49, 7"); a(f"s_cbranch_scc1 {Lnoml}")
        a(f"ds_read_b128 v[{KF}:{KF+3}], v20"); a(f"ds_read_b128 v[{KF+4}:{KF+7}], v20 offset:16")
        a(f"ds_read_b128 v[{KF+8}:{KF+11}], v20 offset:64"); a(f"ds_read_b128 v[{KF+12}:{KF+15}], v20 offset:80")
        a("s_waitcnt lgkmcnt(0)")
        a(f"v_max3_f32 v26, v{KF}, v{KF+1}, v{KF+2}"); a(f"v_max3_f32 v27, v{KF+3}, v{KF+4}, v{KF+5}")
        a(f"v_max3_f32 v26, v26, v{KF+6}, v{KF+7}"); a("v_max_f32 v26, v26, v27")
        for w in range(8): a(f"v_sub_f32 v{KF+w}, v{KF+w}, v26")
        for w in range(8): a(f"v_mul_f32 v{KF+w}, s48, v{KF+w}")
        for w in range(8): a(f"v_exp_f32 v{KF+w}, v{KF+w}")
        for w in range(8): a(f"v_mul_f32 v{KF+w}, v{KF+w}, v{KF+8+w}")
        a(f"v_add_f32 v{KF}, v{KF}, v{KF+1}"); a(f"v_add_f32 v{KF+2}, v{KF+2}, v{KF+3}")
        a(f"v_add_f32 v{KF+4}, v{KF+4}, v{KF+5}"); a(f"v_add_f32 v{KF+6}, v{KF+6}, v{KF+7}")
        a(f"v_add_f32 v{KF}, v{KF}, v{KF+2}"); a(f"v_add_f32 v{KF+4}, v{KF+4}, v{KF+6}")
        a(f"v_add_f32 v{KF+1}, v{KF}, v{KF+4}")
        a("s_getreg_b32 s50, hwreg(HW_REG_XCC_ID, 0, 4)"); a("s_lshl_b32 s50, s50, 8")
        a(f"v_mov_b32 v{KF}, v26"); a(f"v_mov_b32 v{KF+2}, s50"); a(f"v_mov_b32 v{KF+3}, 0")
        tag_insert(KF, vT)
        a("s_lshr_b32 s28, s96, 3"); a("s_and_b32 s29, s28, 15"); a("s_lshr_b32 s28, s28, 4")
        a("s_lshl_b32 s29, s29, 9"); a("s_lshl_b32 s28, s28, 7"); a("s_add_u32 s28, s28, s29")
        a("s_and_b32 s29, s96, 7"); a("s_lshl_b32 s29, s29, 4"); a("s_add_u32 s28, s28, s29"); a(f"s_add_u32 s28, s28, {WS_ML}")
        a("v_lshrrev_b32 v27, 3, v1"); a("v_and_b32 v27, 1, v27"); a("v_lshlrev_b32 v27, 8, v27"); a("v_add_u32 v27, s28, v27")
        set_exec(0x101, 0)
        a(f"global_store_dwordx4 v27, v[{KF}:{KF+3}], s[26:27] sc1")
        a("s_mov_b64 exec, -1")
        a.label(Lnoml)
    def wave_factor():
        spin_lds(C_L, 8, "v10", f"v{TM}")
        a(f"ds_read_b128 v[{KF}:{KF+3}], v20"); a(f"ds_read_b128 v[{KF+4}:{KF+7}], v20 offset:16")
        a("v_lshrrev_b32 v28, 4, v1"); a("v_lshlrev_b32 v28, 7, v28")
        a("v_lshrrev_b32 v29, 3, v1"); a("v_and_b32 v29, 1, v29"); a("v_lshl_add_u32 v28, v29, 9, v28")
        a("v_and_b32 v29, 7, v1"); a("v_lshl_add_u32 v28, v29, 4, v28")
        a("s_lshl_b32 s28, s96, 10"); a(f"s_add_u32 s28, s28, {WS_OB}"); a("v_add_u32 v28, s28, v28")
        a("s_lshl_b32 s28, s3, 10"); a(f"s_add_u32 s28, s28, {LDS_R2}"); a(f"v_add_u32 v29, s28, v{vVA}")
        a(f"v_add_u32 v30, {LDS_R2}, v{vVA}")
        a(f"v_add_u32 v31, {WS_OBL-WS_OB}, v28")
        a("s_waitcnt lgkmcnt(0)")
        a(f"v_max3_f32 v26, v{KF}, v{KF+1}, v{KF+2}"); a(f"v_max3_f32 v27, v{KF+3}, v{KF+4}, v{KF+5}")
        a(f"v_max3_f32 v26, v26, v{KF+6}, v{KF+7}"); a("v_max_f32 v26, v26, v27")
        a("v_sub_f32 v26, v22, v26"); a("v_mul_f32 v26, s48, v26"); a("v_exp_f32 v26, v26")
    did_factor = False
    for i in range(16):
        bt = BT + 4*(i & 1)
        for w in range(4):
            a(f"v_and_b32 v{bt+w}, v{SB+i}, v{12+w}")
        vm_wait(("v", i))
        c = "0" if i == 0 else f"v[{ACC}:{ACC+3}]"
        a(f"v_mfma_f32_16x16x32_bf16 v[{ACC}:{ACC+3}], v[{VB+4*i}:{VB+4*i+3}], v[{bt}:{bt+3}], {c}")
        if i % 4 == 3 and i < 15: stamp(10 + i // 4)
        while nv < 16 and nv - (i + 1) < cfg.Wv:
            issue_v(nv); nv += 1
        if cfg.trig_c is not None and i == cfg.trig_c:
            arrive(C_V, "v10", "v11")
        if i == cfg.ml_at:
            publish_ml()
        if nv == 16 and not did_factor and i > cfg.ml_at and i >= cfg.fac_at:
            wave_factor(); did_factor = True
            a(f"s_setprio {cfg.prio_tail}")
    stamp(5)
    for e in range(4): a(f"v_mul_f32 v{ACC+e}, v{ACC+e}, v26")
    a(f"ds_write_b128 v29, v[{ACC}:{ACC+3}]")
    arrive_rtn(C_O, "v10", "v11", f"v{TM}", "s49")
    a("s_cmp_lg_u32 s49, 7"); a("s_cbranch_scc1 L_att_done")
    for w in range(8):
        a(f"ds_read_b128 v[{KF+4*w}:{KF+4*w+3}], v30 offset:{1024*w}")
    def pk(d, x, y): a(f"v_pk_add_f32 v[{d}:{d+1}], v[{x}:{x+1}], v[{y}:{y+1}]")
    a("s_waitcnt lgkmcnt(6)")
    for e in (0, 2): pk(KF+e, KF+e, KF+4+e)
    a("s_waitcnt lgkmcnt(4)")
    for e in (0, 2): pk(KF+8+e, KF+8+e, KF+12+e)
    a("s_waitcnt lgkmcnt(2)")
    for e in (0, 2): pk(KF+16+e, KF+16+e, KF+20+e)
    for e in (0, 2): pk(KF+e, KF+e, KF+8+e)
    a("s_waitcnt lgkmcnt(0)")
    for e in (0, 2): pk(KF+24+e, KF+24+e, KF+28+e)
    for e in (0, 2): pk(KF+16+e, KF+16+e, KF+24+e)
    for e in (0, 2): pk(KF+e, KF+e, KF+16+e)
    tag_insert(KF, vT)
    if cfg.local_o:
        a(f"global_store_dwordx4 v31, v[{KF}:{KF+3}], s[26:27]")
    a(f"global_store_dwordx4 v28, v[{KF}:{KF+3}], s[26:27] sc1")
    a.label("L_att_done")
    stamp(6)
    dump_stamps(8)
    a("s_endpgm")

    a.label("L_wts")
    a(f"s_setprio {cfg.prio_w}")
    a("s_sub_u32 s36, s3, 8")
    XR = 20; EX = 30; WQD = 48; FD = 68; AC = 116; BB = 140; TP = 148; TM = 160
    a("v_lshrrev_b32 v6, 3, v1"); a("v_and_b32 v7, 7, v1"); a("v_lshlrev_b32 v7, 4, v7")
    a("v_lshl_add_u32 v2, v6, 13, v7")
    a("s_movk_i32 s28, 9216"); a("v_mad_u32_u24 v3, v6, s28, v7")
    a("s_movk_i32 s28, 1152"); a("v_mad_u32_u24 v4, v6, s28, v7")
    a("v_lshrrev_b32 v8, 5, v1"); a("v_and_b32 v9, 31, v1")
    a("v_mul_u32_u24 v18, 36, v9"); a("v_mad_u32_u24 v18, v8, s28, v18")
    a(f"v_mov_b32 v{TM}, 0")
    for e in range(4): a(f"v_mov_b32 v{WQD+16+e}, 0")
    a("s_mov_b32 s50, 0x00ff00ff"); a("s_mov_b32 s51, 0xff00ff00")
    a("s_mov_b32 s52, 0xff00ff00"); a("s_mov_b32 s53, 0xff00ff00")
    a("s_mov_b32 s54, 0xffff0000"); a("s_mov_b32 s55, 0xffff0000")
    stamp(11)
    a("s_waitcnt lgkmcnt(0)")
    a("s_and_b32 s96, s101, 0xff"); a("s_bfe_u32 s97, s101, 0x80008"); a("s_bfe_u32 s98, s101, 0x80010"); a("s_lshr_b32 s101, s101, 24")
    stamp(12)
    if cfg.emode != "s":
        a(f"global_load_dword v16, v{TM}, s[26:27]" + (" sc1" if cfg.emode == "sc1" else ""))
    a(f"global_load_dwordx4 v[{XR}:{XR+3}], v18, s[4:5]")
    a(f"global_load_dwordx4 v[{XR+4}:{XR+7}], v18, s[4:5] offset:16")
    a(f"global_load_dword v{XR+8}, v18, s[4:5] offset:32")
    a("s_and_b32 s56, s97, 3"); a("s_lshr_b32 s57, s97, 2")
    a(f"s_mul_i32 s28, s56, {144*8192}"); a("s_lshl_b32 s29, s57, 7"); a("s_add_u32 s28, s28, s29")
    a("s_add_u32 s10, s10, s28"); a("s_addc_u32 s11, s11, 0")
    a("s_lshl_b32 s28, s36, 16"); a("s_add_u32 s32, s10, s28"); a("s_addc_u32 s33, s11, 0")
    for i in range(4):
        a(f"global_load_dwordx4 v[{WQD+4*i}:{WQD+4*i+3}], v2, s[32:33]{NT}")
        if i < 3:
            a(f"s_add_u32 s32, s32, {32*8192}"); a("s_addc_u32 s33, s33, 0")
    a("s_lshl_b32 s28, s36, 15"); a(f"s_add_u32 s28, s28, {128*8192}")
    a("s_add_u32 s32, s10, s28"); a("s_addc_u32 s33, s11, 0")
    set_exec(0xffffffff, 0)
    a(f"global_load_dwordx4 v[{WQD+16}:{WQD+19}], v2, s[32:33]{NT}")
    a("s_mov_b64 exec, -1")
    stamp(13)
    a("s_waitcnt lgkmcnt(0)"); a("s_barrier")
    if cfg.emode == "s": a("s_load_dword s99, s[26:27], 0")
    stamp(1)
    a("s_mul_hi_u32 s58, s98, 0x55555556"); a("s_mul_i32 s59, s58, 3"); a("s_sub_u32 s59, s98, s59")
    a(f"s_mul_i32 s28, s59, {192*9216}"); a("s_min_u32 s29, s58, 71"); a("s_lshl_b32 s29, s29, 7"); a("s_add_u32 s28, s28, s29")
    a(f"s_mul_i32 s29, s36, {8*9216}"); a("s_add_u32 s28, s28, s29")
    a("s_add_u32 s16, s16, s28"); a("s_addc_u32 s17, s17, 0"); a("s_add_u32 s18, s18, s28"); a("s_addc_u32 s19, s19, 0")
    def ffn_issue(i0_, i1_):
        for i in range(i0_, i1_):
            a(f"global_load_dwordx4 v[{FD+8*i}:{FD+8*i+3}], v3, s[16:17]{NT}")
            a(f"global_load_dwordx4 v[{FD+8*i+4}:{FD+8*i+7}], v3, s[18:19]{NT}")
            if i < 5:
                a(f"s_add_u32 s16, s16, {32*9216}"); a("s_addc_u32 s17, s17, 0"); a(f"s_add_u32 s18, s18, {32*9216}"); a("s_addc_u32 s19, s19, 0")
    a("v_lshrrev_b32 v6, 3, v1"); a("v_and_b32 v6, 1, v6")
    a("v_lshrrev_b32 v7, 4, v1")
    a("s_movk_i32 s28, 2304"); a("v_mul_u32_u24 v5, 0x900, v6")
    a(f"v_add_u32 v5, {LDS_T}, v5")
    a("v_and_b32 v19, 1, v7"); a("v_lshl_add_u32 v19, v19, 3, v5")
    a("v_lshl_add_u32 v5, v7, 3, v5")
    a("v_mul_u32_u24 v6, 72, v9"); a("v_mul_u32_u24 v7, 0x900, v8"); a("v_add_u32 v6, v6, v7"); a(f"v_add_u32 v6, {LDS_T}, v6")
    a("v_lshl_add_u32 v7, v8, 2, v6")
    a("v_xor_b32 v8, 1, v8"); a("v_lshl_add_u32 v8, v8, 2, v6")
    a("s_waitcnt vmcnt(5)")
    stamp(2)
    for k in range(9):
        a(f"v_lshlrev_b32 v{EX+2*k}, 16, v{XR+k}"); a(f"v_and_b32 v{EX+2*k+1}, 0xffff0000, v{XR+k}")
    a(f"v_add_f32 v{TM}, v{EX}, v{EX+1}"); a(f"v_add_f32 v{TM+1}, v{EX+2}, v{EX+3}")
    for k in range(4, 18, 2):
        t = TM + ((k >> 1) & 1)
        a(f"v_add_f32 v{t}, v{t}, v{EX+k}"); a(f"v_add_f32 v{t}, v{t}, v{EX+k+1}")
    a(f"v_add_f32 v{TM}, v{TM}, v{TM+1}")
    def allreduce32(r, t):
        allreduce8("v_add_f32", [r])
        a(f"v_add_f32_dpp {r}, {r}, {r} row_mirror {DPP}")
        a(f"v_mov_b32 {t}, {r}"); a(f"v_permlane16_swap_b32 {r}, {t}"); a(f"v_add_f32 {r}, {r}, {t}")
    allreduce32(f"v{TM}", f"v{TM+1}")
    a(f"v_mul_f32 v{TM}, 0x3ae38e39, v{TM}")
    a(f"v_sub_f32 v{TM+2}, v{EX}, v{TM}"); a(f"v_mul_f32 v{TM+1}, v{TM+2}, v{TM+2}")
    a(f"v_sub_f32 v{TM+3}, v{EX+1}, v{TM}"); a(f"v_mul_f32 v{TM+4}, v{TM+3}, v{TM+3}")
    for k in range(2, 18, 2):
        a(f"v_sub_f32 v{TM+2}, v{EX+k}, v{TM}"); a(f"v_sub_f32 v{TM+3}, v{EX+k+1}, v{TM}")
        a(f"v_fmac_f32 v{TM+1}, v{TM+2}, v{TM+2}"); a(f"v_fmac_f32 v{TM+4}, v{TM+3}, v{TM+3}")
    a(f"v_add_f32 v{TM+1}, v{TM+1}, v{TM+4}")
    allreduce32(f"v{TM+1}", f"v{TM+2}")
    a(f"v_mul_f32 v{TM+1}, 0x3ae38e39, v{TM+1}")
    a(f"v_cvt_pk_bf16_f32 v{TM}, v{TM}, v{TM+1}")
    a(f"v_and_b32 v{TM+1}, 0xffff0000, v{TM}")
    a(f"v_lshlrev_b32 v{TM}, 16, v{TM}")
    a(f"v_add_f32 v{TM+1}, 0x3727c5ac, v{TM+1}")
    a(f"v_cvt_pk_bf16_f32 v{TM+1}, v{TM+1}, v{TM+1}"); a(f"v_and_b32 v{TM+1}, 0xffff0000, v{TM+1}")
    a(f"v_sqrt_f32 v{TM+1}, v{TM+1}")
    a(f"v_cvt_pk_bf16_f32 v{TM+1}, v{TM+1}, v{TM+1}"); a(f"v_and_b32 v{TM+1}, 0xffff0000, v{TM+1}")
    a(f"v_rcp_f32 v{TM+2}, v{TM+1}")
    for k in range(9):
        e0, e1 = EX + 2*k, EX + 2*k + 1
        a(f"v_sub_f32 v{e0}, v{e0}, v{TM}"); a(f"v_sub_f32 v{e1}, v{e1}, v{TM}")
        a(f"v_cvt_pk_bf16_f32 v{TM+3}, v{e0}, v{e1}")
        a(f"v_lshlrev_b32 v{e0}, 16, v{TM+3}"); a(f"v_and_b32 v{e1}, 0xffff0000, v{TM+3}")
        a(f"v_mul_f32 v{TM+4}, v{e0}, v{TM+2}"); a(f"v_mul_f32 v{TM+5}, v{e1}, v{TM+2}")
        a(f"v_fma_f32 v{e0}, -v{TM+4}, v{TM+1}, v{e0}"); a(f"v_fma_f32 v{e1}, -v{TM+5}, v{TM+1}, v{e1}")
        a(f"v_fmac_f32 v{TM+4}, v{e0}, v{TM+2}"); a(f"v_fmac_f32 v{TM+5}, v{e1}, v{TM+2}")
        a(f"v_cvt_pk_bf16_f32 v{e0}, v{TM+4}, v{TM+4}"); a(f"v_cvt_pk_bf16_f32 v{e1}, v{TM+5}, v{TM+5}")
        a(f"ds_write_b32 v7, v{e0} offset:{8*k}"); a(f"ds_write_b32 v8, v{e1} offset:{8*k}")
    if cfg.emode == "s": a("s_waitcnt lgkmcnt(0)"); a("v_mov_b32 v16, s99")
    make_tag("v16", "v17", f"v{TM}")
    stamp(3)
    def gemv_unit(dreg_list, pair, accs, first):
        for w in range(4): a(f"v_and_b32 v{BB+w}, v{pair}, v{12+w}")
        for w in range(4): a(f"v_and_b32 v{BB+4+w}, v{pair+1}, v{12+w}")
        for d, (d1, d2) in zip(dreg_list, accs):
            c1 = "0" if first else f"v[{d1}:{d1+3}]"; c2 = "0" if first else f"v[{d2}:{d2+3}]"
            a(f"v_mfma_f32_16x16x32_bf16 v[{d1}:{d1+3}], v[{d}:{d+3}], v[{BB}:{BB+3}], {c1}")
            a(f"v_mfma_f32_16x16x32_bf16 v[{d2}:{d2+3}], v[{d}:{d+3}], v[{BB+4}:{BB+7}], {c2}")
    def zsel(d1, d2):
        for e in range(4): a(f"v_cndmask_b32_e64 v{d1+e}, v{d2+e}, v{d1+e}, s[50:51]")
    a("s_mul_i32 s28, s56, 576"); a("s_lshl_b32 s29, s36, 5"); a("s_add_u32 s28, s28, s29"); a("v_add_u32 v6, s28, v5")
    for i in range(4): a(f"ds_read_b64 v[{TP+2*i}:{TP+2*i+1}], v6 offset:{128*i}")
    a("s_mul_i32 s28, s56, 576"); a("s_lshl_b32 s29, s36, 4"); a("s_add_u32 s28, s28, s29"); a("s_add_u32 s28, s28, 512"); a("v_add_u32 v6, s28, v19")
    a(f"ds_read_b64 v[{TP+8}:{TP+9}], v6")
    a("s_waitcnt vmcnt(0)")
    a("s_waitcnt lgkmcnt(0)")
    for i in range(5):
        gemv_unit([WQD + 4*i], TP + 2*i, [(AC, AC + 4)], i == 0)
    zsel(AC, AC + 4)
    a("v_lshlrev_b32 v18, 4, v1")
    a("s_lshl_b32 s28, s36, 10"); a(f"s_add_u32 s28, s28, {LDS_R1}"); a("v_add_u32 v6, s28, v18")
    a(f"ds_write_b128 v6, v[{AC}:{AC+3}]")
    arrive_rtn(C_WQ, "v10", "v11", f"v{TM}", "s49")
    Lnq = lab("noqpub")
    a("s_cmp_lg_u32 s49, 3"); a(f"s_cbranch_scc1 {Lnq}")
    a("v_and_b32 v6, 31, v1"); a("v_lshlrev_b32 v6, 4, v6"); a("v_lshrrev_b32 v7, 5, v1"); a("v_lshl_add_u32 v6, v7, 3, v6"); a(f"v_add_u32 v6, {LDS_R1}, v6")
    for w in range(4):
        for e in range(2):
            a(f"ds_read_b64 v[{EX+4*w+2*e}:{EX+4*w+2*e+1}], v6 offset:{1024*w+512*e}")
    a("v_lshrrev_b32 v8, 3, v1"); a("v_and_b32 v8, 1, v8"); a("v_lshlrev_b32 v8, 9, v8"); a("v_lshl_add_u32 v8, v7, 8, v8")
    a("v_lshrrev_b32 v9, 4, v1"); a("v_and_b32 v9, 1, v9"); a("v_lshl_add_u32 v8, v9, 7, v8")
    a("v_and_b32 v9, 7, v1"); a("v_lshl_add_u32 v8, v9, 4, v8")
    a("s_lshl_b32 s28, s97, 10"); a(f"s_add_u32 s28, s28, {WS_QB}"); a("v_add_u32 v8, s28, v8")
    a("s_waitcnt lgkmcnt(0)")
    for st in range(4):
        a(f"v_add_f32 v{EX+4*st}, v{EX+4*st}, v{EX+4*st+2}"); a(f"v_add_f32 v{EX+4*st+1}, v{EX+4*st+1}, v{EX+4*st+3}")
    for st in (0, 8):
        a(f"v_add_f32 v{EX+st}, v{EX+st}, v{EX+st+4}"); a(f"v_add_f32 v{EX+st+1}, v{EX+st+1}, v{EX+st+5}")
    a(f"v_add_f32 v{EX}, v{EX}, v{EX+8}"); a(f"v_add_f32 v{EX+2}, v{EX+1}, v{EX+9}")
    a(f"v_mov_b32 v{EX+1}, v16"); a(f"v_mov_b32 v{EX+3}, v16")
    a(f"global_store_dwordx4 v8, v[{EX}:{EX+3}], s[26:27] sc1")
    a.label(Lnq)
    stamp(4)
    Lnf1 = lab("noffn1")
    a("s_cmp_ge_u32 s98, 216"); a(f"s_cbranch_scc1 {Lnf1}")
    ffn_issue(0, cfg.ffn1)
    a("s_mul_i32 s28, s59, 768"); a("s_lshl_b32 s29, s36, 5"); a("s_add_u32 s28, s28, s29"); a("v_add_u32 v6, s28, v5")
    for i in range(6): a(f"ds_read_b64 v[{TP+2*i}:{TP+2*i+1}], v6 offset:{128*i}")
    a("s_waitcnt lgkmcnt(0)")
    if cfg.wait_ffn1: a("s_waitcnt vmcnt(0)")
    a.label(Lnf1)
    a("s_lshr_b32 s28, s96, 3"); a("s_lshr_b32 s60, s28, 4"); a("s_and_b32 s61, s28, 15")
    if cfg.q2:
        Lo = lab("q1o"); Lj = lab("q1j")
        a("s_cmp_lg_u32 s36, 0"); a(f"s_cbranch_scc1 {Lo}")
        a("s_lshl_b32 s28, s57, 12"); a("s_lshr_b32 s29, s56, 1"); a("s_lshl_b32 s29, s29, 9"); a("s_add_u32 s28, s28, s29")
        a("s_and_b32 s29, s56, 1"); a("s_lshl_b32 s29, s29, 7"); a("s_add_u32 s28, s28, s29"); a(f"s_add_u32 s28, s28, {WS_QB}")
        a("v_and_b32 v6, 3, v1"); a("v_lshlrev_b32 v6, 10, v6")
        a("v_lshrrev_b32 v7, 2, v1"); a("v_and_b32 v7, 7, v7"); a("v_lshl_add_u32 v6, v7, 4, v6")
        a("v_lshrrev_b32 v8, 5, v1"); a("v_lshl_add_u32 v6, v8, 8, v6"); a("v_add_u32 v6, s28, v6")
        a("s_lshl_b32 s28, s57, 9"); a("s_lshl_b32 s29, s56, 7"); a("s_add_u32 s28, s28, s29"); a(f"s_add_u32 s28, s28, {WS_QF}")
        a("v_lshl_add_u32 v8, v7, 4, s28")
        G = EX
        def iss():
            a(f"global_load_dwordx4 v[{G}:{G+3}], v6, s[26:27] sc1")
        def chk():
            a(f"v_bitop3_b32 v{TM}, v{G+1}, v{G+3}, v16 bitop3:0x7e")
        Lq0 = lab("q0"); Lq1 = lab("q1"); Lq2 = lab("q2")
        iss()
        a("s_cmp_ge_u32 s98, 216"); a(f"s_cbranch_scc1 {Lq0}")
        ffn_issue(cfg.ffn1, 6)
        a(f"s_waitcnt vmcnt({2*(6-cfg.ffn1)})"); a(f"s_branch {Lq1}")
        a.label(Lq0); a("s_waitcnt vmcnt(0)"); a.label(Lq1)
        chk()
        a(f"v_cmp_ne_u32 vcc, 0, v{TM}")
        a(f"s_cbranch_vccz {Lq2}")
        if cfg.masked: a("s_mov_b64 exec, vcc")
        poll_loop(iss, chk, f"v{TM}", sleep=cfg.sl_q, pmax=cfg.pmax_q)
        a.label(Lq2)
        allreduce_quad("v_add_f32", [f"v{G}", f"v{G+2}"])
        a(f"v_mov_b32 v{G+1}, v{G}"); a(f"v_mov_b32 v{G+3}, v{G+2}")
        a(f"v_permlane32_swap_b32 v{G}, v{G+1}"); a(f"v_permlane32_swap_b32 v{G+2}, v{G+3}")
        for k, r in enumerate((G, G + 2, G + 1, G + 3)):
            a(f"v_cvt_pk_bf16_f32 v{G+4+k}, v{r}, v{r}")
        tag_insert(G + 4, "v17")
        set_exec(0x11111111, 0)
        a(f"global_store_dwordx4 v8, v[{G+4}:{G+7}], s[26:27] sc1")
        a("s_mov_b64 exec, -1")
        a(f"s_branch {Lj}")
        a.label(Lo)
        a("s_cmp_ge_u32 s98, 216"); a(f"s_cbranch_scc1 {Lj}")
        ffn_issue(cfg.ffn1, 6)
        a.label(Lj)
    else:
        a("s_lshr_b32 s28, s96, 3"); a("s_lshr_b32 s60, s28, 4"); a("s_and_b32 s61, s28, 15")
        a("s_lshl_b32 s28, s61, 2"); a("s_add_u32 s28, s28, s36"); a("s_lshl_b32 s28, s28, 12")
        a("s_lshl_b32 s29, s60, 9"); a("s_add_u32 s28, s28, s29"); a(f"s_add_u32 s28, s28, {WS_QB}")
        a("v_and_b32 v6, 3, v1"); a("v_lshlrev_b32 v6, 10, v6")
        a("v_lshrrev_b32 v7, 2, v1"); a("v_and_b32 v7, 7, v7"); a("v_lshl_add_u32 v6, v7, 4, v6")
        a("v_lshrrev_b32 v8, 5, v1"); a("v_lshl_add_u32 v6, v8, 7, v6"); a("v_add_u32 v6, s28, v6")
        G = EX
        def iss():
            a(f"global_load_dwordx4 v[{G}:{G+3}], v6, s[26:27] sc1")
            a(f"global_load_dwordx4 v[{G+4}:{G+7}], v6, s[26:27] offset:256 sc1")
        def chk():
            a(f"v_bitop3_b32 v{TM}, v{G+1}, v{G+3}, v16 bitop3:0x7e")
            a(f"v_bitop3_b32 v{TM+1}, v{G+5}, v{G+7}, v16 bitop3:0x7e")
            a(f"v_or_b32 v{TM}, v{TM}, v{TM+1}")
        if cfg.x_noq:
            Lx = lab("xq")
            a("s_cmp_ge_u32 s98, 216"); a(f"s_cbranch_scc1 {Lx}")
            if cfg.ffn1 < 6: ffn_issue(cfg.ffn1, 6)
            a.label(Lx)
        elif cfg.b2_early and cfg.ffn1 < 6:
            Lq0 = lab("q0"); Lq1 = lab("q1"); Lq2 = lab("q2")
            iss()
            a("s_cmp_ge_u32 s98, 216"); a(f"s_cbranch_scc1 {Lq0}")
            ffn_issue(cfg.ffn1, 6)
            a(f"s_waitcnt vmcnt({2*(6-cfg.ffn1)})"); a(f"s_branch {Lq1}")
            a.label(Lq0); a("s_waitcnt vmcnt(0)"); a.label(Lq1)
            chk()
            a(f"v_cmp_ne_u32 vcc, 0, v{TM}")
            a(f"s_cbranch_vccz {Lq2}")
            if cfg.masked: a("s_mov_b64 exec, vcc")
            poll_loop(iss, chk, f"v{TM}", sleep=cfg.sl_q, pmax=cfg.pmax_q)
            a.label(Lq2)
        else:
            poll_loop(iss, chk, f"v{TM}", sleep=cfg.sl_q, pmax=cfg.pmax_q)
        qv = [G, G + 2, G + 4, G + 6]
        allreduce_quad("v_add_f32", [f"v{r}" for r in qv])
        for r in qv: a(f"v_cvt_pk_bf16_f32 v{r}, v{r}, v{r}")
        a("s_lshr_b32 s28, s36, 1"); a("s_lshl_b32 s28, s28, 8"); a("s_and_b32 s29, s36, 1"); a("s_lshl_b32 s29, s29, 7")
        a("s_add_u32 s28, s28, s29"); a(f"s_add_u32 s28, s28, {LDS_Q}")
        a("v_lshlrev_b32 v8, 6, v8"); a("v_lshl_add_u32 v8, v7, 1, v8"); a("v_add_u32 v8, s28, v8")
        a("s_mov_b32 exec_lo, 0x11111111"); a("s_mov_b32 exec_hi, 0x11111111")
        for r in range(4): a(f"ds_write_b16 v8, v{qv[r]} offset:{16*r}")
        a("s_mov_b64 exec, -1")
        arrive(C_Q, "v10", "v11")
        stamp(5)


    Lnf2 = lab("noffn2")
    a("s_cmp_ge_u32 s98, 216"); a(f"s_cbranch_scc1 {Lnf2}")
    if not (cfg.q2 or (cfg.b2_early and cfg.ffn1 < 6)): ffn_issue(cfg.ffn1, 6)
    for i in range(6):
        if i >= cfg.ffn1: a(f"s_waitcnt vmcnt({10-2*i})")
        gemv_unit([FD + 8*i, FD + 8*i + 4], TP + 2*i, [(AC, AC + 4), (AC + 8, AC + 12)], i == 0)
    zsel(AC, AC + 4); zsel(AC + 8, AC + 12)
    a("s_lshl_b32 s28, s36, 11"); a(f"s_add_u32 s28, s28, {LDS_R1+4096}"); a("v_add_u32 v6, s28, v18")
    a(f"ds_write_b128 v6, v[{AC}:{AC+3}]"); a(f"ds_write_b128 v6, v[{AC+8}:{AC+11}] offset:1024")
    arrive_rtn(C_GU, "v10", "v11", f"v{TM}", "s49")
    a("s_cmp_lg_u32 s49, 3"); a(f"s_cbranch_scc1 {Lnf2}")
    a("v_and_b32 v6, 31, v1"); a("v_lshlrev_b32 v6, 4, v6"); a("v_lshrrev_b32 v7, 5, v1"); a("v_lshl_add_u32 v6, v7, 10, v6"); a(f"v_add_u32 v6, {LDS_R1+4096}, v6")
    for w in range(4):
        for e in range(2):
            r = FD + 8*w + 4*e
            a(f"ds_read_b128 v[{r}:{r+3}], v6 offset:{2048*w+512*e}")
    a("v_lshrrev_b32 v8, 3, v1"); a("v_and_b32 v8, 1, v8"); a("v_lshlrev_b32 v8, 8, v8"); a("v_lshl_add_u32 v8, v7, 9, v8")
    a("v_lshrrev_b32 v9, 4, v1"); a("v_and_b32 v9, 1, v9"); a("v_lshl_add_u32 v8, v9, 7, v8")
    a("v_and_b32 v9, 7, v1"); a("v_lshl_add_u32 v8, v9, 4, v8")
    a("s_lshl_b32 s28, s98, 10"); a(f"s_add_u32 s28, s28, {WS_GU}"); a("v_add_u32 v8, s28, v8")
    a("s_waitcnt lgkmcnt(0)")
    for w in range(4):
        for e in range(4): a(f"v_add_f32 v{FD+8*w+e}, v{FD+8*w+e}, v{FD+8*w+4+e}")
    for w in (0, 2):
        for e in range(4): a(f"v_add_f32 v{FD+8*w+e}, v{FD+8*w+e}, v{FD+8*w+8+e}")
    for e in range(4): a(f"v_add_f32 v{FD+e}, v{FD+e}, v{FD+16+e}")
    tag_insert(FD, "v17")
    a(f"global_store_dwordx4 v8, v[{FD}:{FD+3}], s[26:27] sc1")
    a.label(Lnf2)
    stamp(6)
    if cfg.q2:
        Lq3 = lab("q3")
        a("s_cmp_lg_u32 s36, 1"); a(f"s_cbranch_scc1 {Lq3}")
        a("s_lshl_b32 s28, s61, 11"); a("s_lshl_b32 s29, s60, 8"); a("s_add_u32 s28, s28, s29"); a(f"s_add_u32 s28, s28, {WS_QF}")
        a("v_lshrrev_b32 v7, 4, v1"); a("v_lshlrev_b32 v6, 9, v7")
        a("v_lshrrev_b32 v8, 3, v1"); a("v_and_b32 v8, 1, v8"); a("v_lshl_add_u32 v6, v8, 7, v6")
        a("v_and_b32 v9, 7, v1"); a("v_lshl_add_u32 v6, v9, 4, v6"); a("v_add_u32 v6, s28, v6")
        a("v_lshlrev_b32 v7, 7, v7"); a("v_lshl_add_u32 v7, v8, 6, v7"); a("v_lshl_add_u32 v7, v9, 1, v7"); a(f"v_add_u32 v7, {LDS_Q}, v7")
        G = EX
        def iss():
            a(f"global_load_dwordx4 v[{G}:{G+3}], v6, s[26:27] sc1")
        def chk():
            tag_check(G, "v17", f"v{TM}", f"v{TM+1}", f"v{TM+2}", True)
        poll_loop(iss, chk, f"v{TM}", sleep=cfg.sl_q2)
        for r in range(4): a(f"ds_write_b16_d16_hi v7, v{G+r} offset:{16*r}")
        arrive(C_Q, "v10", "v11")
        stamp(5)
        a.label(Lq3)
    a("s_cmp_lt_u32 s101, 144"); a("s_cbranch_scc1 L_wtype")
    a("s_cmp_lt_u32 s101, 160"); a("s_cbranch_scc1 L_wts_done")

    OA = EX
    def late_loads(sb):
        n = 0
        for t in range(4):
            for cg in range(3):
                r = FD + 12*t + 4*cg
                if n >= cfg.Wl: a(f"s_waitcnt vmcnt({cfg.Wl-1})")
                a(f"global_load_dwordx4 v[{r}:{r+3}], v4, s[{sb}:{sb+1}] offset:{128*cg}{NT}")
                n += 1
            if t < 3:
                a(f"s_add_u32 s{sb}, s{sb}, 9216"); a(f"s_addc_u32 s{sb+1}, s{sb+1}, 0")
    BBUF = [BB, 152]
    def late_bops(t):
        b = BBUF[t & 1]
        L = [f"v_cndmask_b32_e64 v{TP}, v{OA+t}, v{OA+4+t}, s[52:53]",
             f"v_cndmask_b32_e64 v{TP+2}, v{OA+4+t}, v{OA+t}, s[52:53]"]
        L += [f"v_and_b32 v{b+w}, v{TP}, v{12+w}" for w in range(2)]
        L += [f"v_mov_b32_dpp v{TP+1}, v{TP+2} row_ror:8 {DPP}"]
        L += [f"v_and_b32 v{b+w}, v{TP}, v{12+w}" for w in range(2, 4)]
        L += [f"v_and_b32 v{b+4+w}, v{TP+1}, v{12+w}" for w in range(4)]
        return L
    def late_gemv():
        for ins in late_bops(0): a(ins)
        for t in range(4):
            b = BBUF[t & 1]
            nxt = late_bops(t + 1) if t < 3 else []
            k = 0
            for cg in range(3):
                d = FD + 12*t + 4*cg
                for half in range(2):
                    acc = AC + 8*cg + 4*half
                    c = "0" if t == 0 else f"v[{acc}:{acc+3}]"
                    a(f"v_mfma_f32_16x16x32_bf16 v[{acc}:{acc+3}], v[{d}:{d+3}], v[{b+4*half}:{b+4*half+3}], {c}")
                    for ins in nxt[k:k+2]: a(ins)
                    k += 2
            for ins in nxt[k:]: a(ins)
    def late_addr(sj, sslot):
        a("v_lshrrev_b32 v9, 3, v1"); a("v_and_b32 v9, 3, v9"); a("s_movk_i32 s28, 10240"); a("v_mul_u32_u24 v9, s28, v9")
        a("v_and_b32 v8, 7, v1"); a("v_lshl_add_u32 v9, v8, 4, v9")
        a(f"s_mul_i32 s28, {sj}, 12"); a("s_lshl_b32 s29, s36, 2"); a("s_add_u32 s28, s28, s29"); a("s_mul_i32 s28, s28, 10240")
        a(f"s_lshl_b32 s29, {sslot}, 7"); a("s_add_u32 s28, s28, s29"); a(f"s_add_u32 s28, s28, {WS_FIN}"); a("v_add_u32 v9, s28, v9")
        a("s_mul_i32 s28, s36, 3072"); a(f"s_add_u32 s28, s28, {LDS_R3}"); a("v_add_u32 v8, s28, v18")
        a("s_lshl_b32 s28, s36, 10"); a(f"s_add_u32 s28, s28, {LDS_R3}"); a("v_add_u32 v19, s28, v18")
    def late_reduce(nW):
        for cg in range(3):
            zsel(AC + 8*cg, AC + 8*cg + 4)
            a(f"ds_write_b128 v8, v[{AC+8*cg}:{AC+8*cg+3}] offset:{1024*cg}")
        arrive(C_LATE, "v10", "v11")
        if nW == 4:
            a("s_cmp_eq_u32 s36, 3"); a("s_cbranch_scc1 L_wts_done")
        spin_lds(C_LATE, nW, "v10", f"v{TM}")
        r = FD
        for w in range(nW):
            a(f"ds_read_b128 v[{r+4*w}:{r+4*w+3}], v19 offset:{3072*w}")
        def pk(d, x, y): a(f"v_pk_add_f32 v[{d}:{d+1}], v[{x}:{x+1}], v[{y}:{y+1}]")
        a(f"s_waitcnt lgkmcnt({nW-2})")
        for e in (0, 2): pk(r+e, r+e, r+4+e)
        a("s_waitcnt lgkmcnt(0)")
        if nW == 4:
            for e in (0, 2): pk(r+8+e, r+8+e, r+12+e)
        for e in (0, 2): pk(r+e, r+e, r+8+e)
        for e in range(4): a(f"v_mov_b32 v{r+4+e}, v{r+e}")
        for e in range(4): a(f"v_permlane32_swap_b32 v{r+e}, v{r+4+e}")
        for e in (0, 2): pk(r+e, r+e, r+4+e)
        tag_insert(r, "v17")
        set_exec(0xffffffff, 0)
        a(f"global_store_dwordx4 v9, v[{r}:{r+3}], s[26:27] sc1")
        a("s_mov_b64 exec, -1")

    a("; ---- O type ----")
    a("s_sub_u32 s28, s101, 160"); a("s_mul_hi_u32 s62, s28, 0x55555556"); a("s_mul_i32 s29, s62, 3"); a("s_sub_u32 s63, s28, s29")
    a("v_and_b32 v5, 7, v1"); a("v_lshlrev_b32 v5, 4, v5"); a("s_lshl_b32 s28, s62, 8"); a(f"s_add_u32 s28, s28, {WS_ML}"); a("v_add_u32 v5, s28, v5")
    a(f"s_mul_i32 s28, s62, {128*1152}"); a("s_mul_i32 s29, s63, 384"); a("s_add_u32 s28, s28, s29"); a(f"s_mul_i32 s29, s36, {32*1152}"); a("s_add_u32 s28, s28, s29")
    a("s_add_u32 s12, s12, s28"); a("s_addc_u32 s13, s13, 0")
    a("s_lshr_b32 s28, s62, 1"); a("s_lshl_b32 s28, s28, 13"); a("s_and_b32 s29, s62, 1"); a("s_lshl_b32 s29, s29, 9"); a("s_add_u32 s28, s28, s29")
    a("s_lshl_b32 s29, s36, 7"); a("s_add_u32 s28, s28, s29"); a(f"s_add_u32 s28, s28, {WS_OB}")
    a("v_and_b32 v6, 7, v1"); a("v_lshlrev_b32 v6, 10, v6"); a("v_lshrrev_b32 v7, 3, v1"); a("v_lshl_add_u32 v6, v7, 4, v6"); a("v_add_u32 v6, s28, v6")
    a(f"v_add_u32 v7, {16*8*1024}, v6")
    late_addr("s63", "s62")
    a(f"s_mov_b32 s48, {hex(LOG2E)}")
    spin_lds(C_V, 8, "v10", f"v{TM}", sleep=cfg.sl_v)
    a(f"s_setprio {cfg.prio_late}")
    stamp(7)
    late_loads(12)
    G = XR
    def ml_factor():
        for bb in range(2):
            g = G + 4*bb
            a(f"v_and_b32 v{g}, s46, v{g}"); a(f"v_and_b32 v{g+1}, s46, v{g+1}")
            a(f"v_mov_b32 v{g+3}, v{g+2}")
            a(f"v_mov_b32 v{g+2}, v{g}")
        allreduce8("v_max_f32", [f"v{G+2}", f"v{G+6}"])
        for bb in range(2):
            g = G + 4*bb
            a(f"v_sub_f32 v{g}, v{g}, v{g+2}"); a(f"v_mul_f32 v{g}, s48, v{g}"); a(f"v_exp_f32 v{g}, v{g}")
        for bb in range(2):
            g = G + 4*bb
            a(f"v_mul_f32 v{g+1}, v{g+1}, v{g}")
        allreduce8("v_add_f32", [f"v{G+1}", f"v{G+5}"])
        for bb in range(2):
            g = G + 4*bb
            a(f"v_rcp_f32 v{g+2}, v{g+1}")
        for bb in range(2):
            g = G + 4*bb
            a(f"v_mul_f32 v{28+bb}, v{g}, v{g+2}")
        if cfg.local_o:
            a("s_getreg_b32 s28, hwreg(HW_REG_XCC_ID, 0, 4)")
            for bb, va in ((0, "v6"), (1, "v7")):
                a(f"v_lshrrev_b32 v{TM}, 8, v{G+4*bb+3}")
                a(f"v_cmp_eq_u32 vcc, s28, v{TM}")
                a(f"v_add_u32 v{TM+1}, {WS_OBL-WS_OB}, {va}")
                a(f"v_cndmask_b32 {va}, {va}, v{TM+1}, vcc")
    Lp = lab("opoll"); Lf = lab("opollf"); Ld = lab("opolld"); Lr = lab("opollr")
    a("s_mov_b32 s30, 0"); a("s_mov_b32 s31, 0")
    a("s_mov_b64 s[32:33], -1"); a("s_mov_b64 s[34:35], -1")
    a.label(Lp)
    for bb, va in ((0, "v6"), (1, "v7")):
        Ls = lab("oskip"); Lm = lab("oskipm")
        a(f"s_mov_b64 exec, s[{32+2*bb}:{33+2*bb}]")
        a(f"s_cbranch_execz {Ls}")
        a("s_cmp_lg_u32 s31, 0"); a(f"s_cbranch_scc1 {Lm}")
        a(f"global_load_dwordx4 v[{G+4*bb}:{G+4*bb+3}], v5, s[26:27] offset:{128*bb} sc1")
        a.label(Lm)
        a(f"global_load_dwordx4 v[{OA+4*bb}:{OA+4*bb+3}], {va}, s[26:27] sc1")
        a.label(Ls)
    a("s_mov_b64 exec, -1")
    a("s_waitcnt vmcnt(0)")
    a("s_mov_b64 s[38:39], 0"); a("s_mov_b64 s[56:57], 0")
    a("s_cmp_lg_u32 s31, 0"); a(f"s_cbranch_scc1 {Lf}")
    tag_check(G, "v17", f"v{TM}", f"v{TM+1}", f"v{TM+2}", True)
    tag_check(G + 4, "v17", f"v{TM+3}", f"v{TM+1}", f"v{TM+2}", True)
    a(f"v_cmp_ne_u32 s[38:39], 0, v{TM}")
    a(f"v_cmp_ne_u32 s[56:57], 0, v{TM+3}")
    a("s_or_b64 s[58:59], s[38:39], s[56:57]")
    a(f"s_cbranch_scc1 {Lf}")
    ml_factor()
    a("s_mov_b32 s31, 1")
    a.label(Lf)
    tag_check(OA, "v17", f"v{TM}", f"v{TM+1}", f"v{TM+2}", True)
    tag_check(OA + 4, "v17", f"v{TM+3}", f"v{TM+1}", f"v{TM+2}", True)
    a(f"v_cmp_ne_u32 s[32:33], 0, v{TM}")
    a(f"v_cmp_ne_u32 s[34:35], 0, v{TM+3}")
    a("s_or_b64 s[32:33], s[32:33], s[38:39]")
    a("s_or_b64 s[34:35], s[34:35], s[56:57]")
    a("s_or_b64 s[58:59], s[32:33], s[34:35]")
    a(f"s_cbranch_scc0 {Ld}")
    if cfg.sl_o: a(f"s_sleep {cfg.sl_o}")
    a("s_add_u32 s30, s30, 1"); a(f"s_cmp_lt_u32 s30, {cfg.spin_max}"); a(f"s_cbranch_scc1 {Lp}")
    a.label(Ld)
    stamp(8)
    tag_strip(OA); tag_strip(OA + 4)
    for e in (0, 2): a(f"v_pk_mul_f32 v[{OA+e}:{OA+e+1}], v[{OA+e}:{OA+e+1}], v[28:29] op_sel_hi:[1,0]")
    for e in (4, 6): a(f"v_pk_mul_f32 v[{OA+e}:{OA+e+1}], v[{OA+e}:{OA+e+1}], v[28:29] op_sel:[0,1] op_sel_hi:[1,1]")
    allreduce8("v_add_f32", [f"v{OA+e}" for e in range(8)])
    for e in range(8): a(f"v_cvt_pk_bf16_f32 v{OA+e}, v{OA+e}, v{OA+e}")
    late_gemv()
    late_reduce(4)
    stamp(9)
    a("s_branch L_wts_done")

    a.label("L_wtype")
    a("; ---- W type ----")
    a("s_cmp_eq_u32 s36, 3"); a("s_cbranch_scc1 L_final")
    a("s_mul_hi_u32 s58, s101, 0x55555556"); a("s_mul_i32 s59, s58, 3"); a("s_sub_u32 s59, s101, s59")
    if cfg.late_gather: spin_lds(C_V, cfg.late_gather, "v10", f"v{TM}", sleep=cfg.sl_v)
    a("s_mul_i32 s28, s58, 3"); a("s_add_u32 s28, s28, s36"); a("s_lshr_b32 s29, s28, 1"); a("s_and_b32 s28, s28, 1")
    a("s_mul_i32 s29, s29, 3072"); a("s_lshl_b32 s28, s28, 7"); a("s_add_u32 s28, s28, s29"); a(f"s_add_u32 s28, s28, {WS_GU}")
    a("v_and_b32 v6, 3, v1"); a("v_cmp_ne_u32 s[56:57], 3, v6"); a("v_cndmask_b32_e64 v6, 0, v6, s[56:57]")
    a("v_lshlrev_b32 v6, 10, v6")
    a("v_lshrrev_b32 v7, 2, v1"); a("v_and_b32 v7, 1, v7"); a("v_lshl_add_u32 v6, v7, 9, v6")
    a("v_lshrrev_b32 v7, 3, v1"); a("v_lshl_add_u32 v6, v7, 4, v6"); a("v_add_u32 v6, s28, v6")
    def iss():
        a(f"global_load_dwordx4 v[{OA}:{OA+3}], v6, s[26:27] sc1")
        a(f"global_load_dwordx4 v[{OA+4}:{OA+7}], v6, s[26:27] offset:256 sc1")
    def chk():
        tag_check(OA, "v17", f"v{TM}", f"v{TM+1}", f"v{TM+2}", True)
        tag_check(OA + 4, "v17", f"v{TM}", f"v{TM+1}", f"v{TM+2}", False)
    if not cfg.x_nogu: poll_loop(iss, chk, f"v{TM}", sleep=cfg.sl_gu, pmax=cfg.pmax_gu)
    tag_strip(OA); tag_strip(OA + 4)
    for e in range(8): a(f"v_cndmask_b32_e64 v{OA+e}, 0, v{OA+e}, s[56:57]")
    allreduce_quad("v_add_f32", [f"v{OA+e}" for e in range(8)])
    OB2 = OA + 8
    for e in range(8): a(f"v_mov_b32_dpp v{OB2+e}, v{OA+e} row_half_mirror {DPP}")
    a("s_mov_b32 s56, 0xf0f0f0f0"); a("s_mov_b32 s57, 0xf0f0f0f0")
    a(f"s_mov_b32 s48, {hex(LOG2E)}")
    for e in range(8):
        g, u = TM, TM + 1
        a(f"v_cndmask_b32_e64 v{g}, v{OA+e}, v{OB2+e}, s[56:57]")
        a(f"v_cndmask_b32_e64 v{u}, v{OB2+e}, v{OA+e}, s[56:57]")
        a(f"v_cvt_pk_bf16_f32 v{g}, v{g}, v{u}")
        a(f"v_and_b32 v{u}, 0xffff0000, v{g}"); a(f"v_lshlrev_b32 v{g}, 16, v{g}")
        a(f"v_mul_f32 v{TM+2}, s48, v{g}"); a(f"v_exp_f32 v{TM+2}, -v{TM+2}"); a(f"v_add_f32 v{TM+2}, 1.0, v{TM+2}")
        a(f"v_rcp_f32 v{TM+3}, v{TM+2}")
        a(f"v_mul_f32 v{TM+4}, v{g}, v{TM+3}")
        a(f"v_fma_f32 v{TM+5}, -v{TM+4}, v{TM+2}, v{g}"); a(f"v_fmac_f32 v{TM+4}, v{TM+5}, v{TM+3}")
        a(f"v_cvt_pk_bf16_f32 v{TM+4}, v{TM+4}, v{TM+4}"); a(f"v_and_b32 v{TM+4}, 0xffff0000, v{TM+4}")
        a(f"v_mul_f32 v{TM+4}, v{TM+4}, v{u}")
        a(f"v_cvt_pk_bf16_f32 v{OA+e}, v{TM+4}, v{TM+4}")
    a(f"s_mul_i32 s28, s58, {96*1152}"); a("s_mul_i32 s29, s59, 384"); a("s_add_u32 s28, s28, s29"); a(f"s_mul_i32 s29, s36, {32*1152}"); a("s_add_u32 s28, s28, s29")
    a("s_add_u32 s20, s20, s28"); a("s_addc_u32 s21, s21, 0")
    a("s_add_u32 s62, s58, 32")
    late_addr("s59", "s62")
    spin_lds(C_V, 8, "v10", f"v{TM}", sleep=cfg.sl_v)
    a(f"s_setprio {cfg.prio_late}")
    stamp(7)
    late_loads(20)
    a("s_waitcnt vmcnt(0)")
    stamp(8)
    late_gemv()
    late_reduce(3)
    stamp(9)
    a("s_branch L_wts_done")

    a.label("L_final")
    a("s_cmp_ge_u32 s101, 36"); a("s_cbranch_scc1 L_wts_done")
    a("s_mul_i32 s28, s101, 10240"); a(f"s_add_u32 s28, s28, {WS_FIN}"); a("v_add_u32 v6, s28, v18")
    a("v_add_u32 v7, 4096, v6"); a("v_add_u32 v8, 8192, v6")
    a("s_and_b32 s28, s101, 1"); a("s_mul_i32 s28, s28, 576"); a("s_lshr_b32 s29, s101, 1"); a("s_lshl_b32 s29, s29, 5"); a("s_add_u32 s28, s28, s29")
    a("v_and_b32 v9, 31, v1"); a("v_add_u32 v9, s28, v9"); a("v_lshlrev_b32 v9, 1, v9")
    a("global_load_ushort v19, v9, s[4:5]")
    if cfg.fin_wait_v: spin_lds(C_V, 8, "v10", f"v{TM}", sleep=cfg.sl_v)
    G = FD
    def iss():
        for t in range(6):
            base, off = (("v7", 1024*t) if t < 4 else ("v8", 1024*(t-4)))
            a(f"global_load_dwordx4 v[{G+4*t}:{G+4*t+3}], {base}, s[26:27] offset:{off} sc1")
    def chk():
        for t in range(6): tag_check(G + 4*t, "v17", f"v{TM}", f"v{TM+1}", f"v{TM+2}", t == 0)
    poll_loop(iss, chk, f"v{TM}", sleep=cfg.sl_fin)
    stamp(7)
    def reduce_slots(n):
        for t in range(n): tag_strip(G + 4*t)
        for t in range(1, n):
            for e in range(4): a(f"v_add_f32 v{G+e}, v{G+e}, v{G+4*t+e}")
        for e in range(4): a(f"v_add_f32_dpp v{G+e}, v{G+e}, v{G+e} row_ror:8 {DPP}")
        allreduce_x16_x32("v_add_f32", [f"v{G+e}" for e in range(4)], [f"v{G+4+e}" for e in range(4)])
        a(f"v_cndmask_b32_e64 v{G}, v{G}, v{G+1}, s[52:53]"); a(f"v_cndmask_b32_e64 v{G+2}, v{G+2}, v{G+3}, s[52:53]")
        a(f"v_cndmask_b32_e64 v{G}, v{G}, v{G+2}, s[54:55]")
    reduce_slots(6)
    a(f"s_mov_b32 s48, {hex(LOG2E)}")
    a(f"v_cvt_pk_bf16_f32 v{G}, v{G}, v{G}"); a(f"v_and_b32 v{G}, 0xffff0000, v{G}")
    a(f"v_mul_f32 v{TM+2}, s48, v{G}"); a(f"v_exp_f32 v{TM+2}, -v{TM+2}"); a(f"v_add_f32 v{TM+2}, 1.0, v{TM+2}")
    a(f"v_rcp_f32 v{TM+3}, v{TM+2}"); a(f"v_mul_f32 v{TM+4}, v{G}, v{TM+3}")
    a(f"v_fma_f32 v{TM+5}, -v{TM+4}, v{TM+2}, v{G}"); a(f"v_fmac_f32 v{TM+4}, v{TM+5}, v{TM+3}")
    a(f"v_cvt_pk_bf16_f32 v{TM+4}, v{TM+4}, v{TM+4}"); a(f"v_and_b32 v20, 0xffff0000, v{TM+4}")
    a("v_lshlrev_b32 v19, 16, v19")
    def iss():
        for t in range(4):
            a(f"global_load_dwordx4 v[{G+4*t}:{G+4*t+3}], v6, s[26:27] offset:{1024*t} sc1")
    def chk():
        for t in range(4): tag_check(G + 4*t, "v17", f"v{TM}", f"v{TM+1}", f"v{TM+2}", t == 0)
    poll_loop(iss, chk, f"v{TM}")
    stamp(8)
    reduce_slots(4)
    a(f"v_cvt_pk_bf16_f32 v{G}, v{G}, v{G}"); a(f"v_and_b32 v{G}, 0xffff0000, v{G}")
    a(f"v_mul_f32 v{G}, v{G}, v20"); a(f"v_cvt_pk_bf16_f32 v{G}, v{G}, v{G}"); a(f"v_and_b32 v{G}, 0xffff0000, v{G}")
    a(f"v_add_f32 v{G}, v19, v{G}"); a(f"v_cvt_pk_bf16_f32 v{G}, v{G}, v{G}")
    set_exec(0xffffffff, 0)
    a(f"global_store_short v9, v{G}, s[22:23]")
    a("s_mov_b64 exec, -1")
    a("s_cmp_lg_u32 s101, 0"); a("s_cbranch_scc1 L_wts_done")
    a(f"v_mov_b32 v{TM}, 0")
    a("s_mov_b64 exec, 1")
    a(f"global_store_dword v{TM}, v16, s[26:27] sc1")
    a("s_mov_b64 exec, -1")
    a.label("L_wts_done")
    stamp(10)
    dump_stamps(12)
    a.label("L_end")
    a("s_endpgm")
    a.raw(".p2align 6")
    a.raw(".type L_roles,@object")
    a.label("L_roles")
    roles = make_roles(cfg)
    for c0 in range(0, 256, 8):
        a.raw("    .long " + ", ".join(hex(r[0] | r[1] << 8 | r[2] << 16 | r[3] << 24) for r in roles[c0:c0+8]))
    a.raw(".size L_roles, 1024")
    return a

HEADER = """; Kernarg layout (96 bytes, pointers only, base s[0:1]):
; @launch grid=(256,1,1) block=(768,1,1) lds=%d
.amdgcn_target "amdgcn-amd-amdhsa--gfx950"
.text
.globl %s
.p2align 8
.type %s,@function
"""
FOOTER = """.section .rodata,"a"
.p2align 6
.amdhsa_kernel %s
  .amdhsa_next_free_vgpr 168
  .amdhsa_next_free_sgpr 102
  .amdhsa_accum_offset 168
  .amdhsa_group_segment_fixed_size 0
  .amdhsa_kernarg_size 96
  .amdhsa_user_sgpr_count 2
  .amdhsa_user_sgpr_kernarg_segment_ptr 1
  .amdhsa_system_sgpr_workgroup_id_x 1
  .amdhsa_float_denorm_mode_32 3
.end_amdhsa_kernel
"""
def build(cfg):
    a = gen(cfg)
    lds = (LDS_END + 255) // 256 * 256
    return HEADER % (lds, KNAME, KNAME) + a.text() + FOOTER % KNAME

if __name__ == "__main__":
    out = sys.argv[1] if len(sys.argv) > 1 else "k.s"
    kw = eval(sys.argv[2]) if len(sys.argv) > 2 else {}
    open(out, "w").write(build(Cfg(**kw)))
```

```python
import sys, json
sys.path.insert(0, 'work')
from asmb import Asm

KNAME = "recurrent_scan__sliding_block_cached__glu_gated_swiglu__decode_kernel"

LDS_K  = 0
LDS_T  = 131072
LDS_Q  = LDS_T + 4608
LDS_R1 = LDS_Q + 512
LDS_R2 = LDS_K + 16384
LDS_R3 = LDS_R1 + 12288
LDS_M  = LDS_R3 + 12288
LDS_C  = LDS_M + 128
LDS_END = LDS_C + 64
C_WQ, C_GU, C_Q, C_M, C_L, C_V, C_O, C_LATE = [4*i for i in range(8)]

WS_QB  = 0x010000
WS_QF  = 0x050000
WS_GU  = 0x060000
WS_ML  = 0x0A0000
WS_OB  = 0x0B0000
WS_OBL = 0x180000
WS_FIN = 0x100000
WS_DBG = 0x200000

LOG2E = 0x3fb8aa3b
SCALE = 0x3db504f3
SPIN_MAX = 1 << 22

class Cfg:
    def __init__(self, **kw):
        self.Wk = 4; self.Wv = 4; self.extra = 2; self.trig = 16; self.rot = 1
        self.attmap = 'id'; self.rmap = 'id'; self.emode = 's'; self.dbgout = False; self.sl_v = 0; self.late_gather = 0; self.qk_at = 12; self.fac_at = 8; self.Wl = 12; self.tilemap = 'cu'; self.wtab = None; self.plan = None; self.b2_early = True; self.sl_q = 0; self.trig_c = None; self.pmax_q = None; self.pmax_gu = None; self.local_o = False; self.stamp_set = None; self.skip_qk = False; self.code_pf = 0; self.code_pf_wave = 11; self.sl_o = 0; self.x_noq = False; self.x_nogu = False; self.q2 = False; self.sl_q2 = 2; self.f256 = False; self.ffn_pos = 'q'; self.spin_prio = None; self.bar_at = None; self.masked = True; self.wait_ffn1 = True; self.bar_first = True; self.sl_gu = 4; self.sl_ml = 4; self.sl_fin = 2; self.fin_wait_v = True; self.ffn1 = 3; self.ml_at = 3; self.prio_k = 2; self.prio_v1 = 1; self.prio_v2 = 0; self.v2_at = 8; self.prio_tail = 3; self.prio_w = 3; self.prio_late = 3; self.stamps = False; self.nt = " nt"
        self.spin_max = SPIN_MAX
        self.__dict__.update(kw)

def make_roles(cfg):
    ids = list(range(256))
    def att_of(c):
        x, i = c & 7, c >> 3
        if cfg.attmap == "id": return c
        if cfg.attmap == "T": return (c & 31) * 8 + (c >> 5)
        if cfg.attmap == "X":
            return (((i >> 3) & 1) * 16 + 2 * x + (i >> 4)) * 8 + (i & 7)
    att = [att_of(c) for c in ids]
    if cfg.plan is None:
        if cfg.rmap == "odd":
            R = [c if c < 176 else (176 + ((c - 176) >> 1) + 40 * (c & 1)) for c in ids]
        else: R = list(ids)
        return [(att[c], c, R[c], R[c]) for c in ids]
    p = cfg.plan
    nlight = p["nlight"]
    assert sum(nlight) == 40
    light = [c for c in ids if (c >> 3) >= 32 - nlight[c & 7]]
    heavy = [c for c in ids if c not in light]
    slowR = [] if cfg.f256 else [r for r in range(216) if (r // 3) % 8 == 3]
    normR = [r for r in range(216) if r not in slowR]
    R = {}
    pref = p.get("slow_dies", [0, 2, 6])
    cand = sorted([c for c in heavy if (c & 7) in pref], key=lambda c: (c >> 3, pref.index(c & 7)))
    for c, r in zip(cand, slowR): R[c] = r
    rest = [c for c in heavy if c not in R]
    for c, r in zip(rest, normR): R[c] = r
    for k, c in enumerate(light): R[c] = 216 + k
    slowQ = [w for w in range(256) if (w >> 2) % 8 == 3]
    normQ = [w for w in range(256) if w not in slowQ]
    Q = {}
    if p.get("slowq_light", True):
        for c, w in zip(light, slowQ): Q[c] = w
    else:
        cand = [c for c in heavy if (c & 7) in pref and R[c] not in slowR]
        for c, w in zip(cand, slowQ): Q[c] = w
    rest = [c for c in ids if c not in Q]
    used = set(Q.values())
    for c, w in zip(rest, [w for w in range(256) if w not in used]): Q[c] = w
    nO = p.get("nO", [12]*8); nS = p.get("nS", [2]*8)
    assert sum(nO) == 96 and sum(nS) == 16
    L = {}
    Os, Ss, Ws = [], [], []
    for x in range(8):
        cs = [c for c in ids if (c & 7) == x]
        cs.sort(key=lambda c: (0 if c in light else 1, 1 if R[c] in slowR else 0, c))
        if p.get("o_heavy_first"): cs = cs[::-1]
        Os += cs[:nO[x]]; rem = cs[nO[x]:]
        Ss += rem[len(rem)-nS[x]:] if nS[x] else []
        Ws += rem[:len(rem)-nS[x]]
    Ws.sort(key=lambda c: (c >> 3, c & 7))
    Os.sort(key=lambda c: (c >> 3, c & 7))
    for k, c in enumerate(Ws): L[c] = k
    for k, c in enumerate(Ss): L[c] = 144 + k
    if cfg.attmap == "X":
        assert nO == [12]*8
        for x in range(8):
            cs = sorted(c for c in Os if (c & 7) == x)
            for k, c in enumerate(cs): L[c] = 160 + 12 * x + k
    else:
        for k, c in enumerate(Os): L[c] = 160 + k
    out = [(att[c], Q[c], R[c], L[c]) for c in ids]
    for k in range(4): assert sorted(o[k] for o in out) == ids
    return out

def gen(cfg):
    a = Asm()
    NT = cfg.nt
    uid = [0]
    def lab(p):
        uid[0] += 1
        return f"L_{p}_{uid[0]}"

    nstamp = [0]
    def stamp(idx):
        if cfg.stamps and (cfg.stamp_set is None or idx in cfg.stamp_set):
            a(f"s_memrealtime s[{64+2*idx}:{65+2*idx}]")
    def dump_dbg(att):
        if att: return
        L = lab("nodbg")
        a("s_waitcnt vmcnt(0) lgkmcnt(0)")
        a("s_cmp_lg_u32 s3, 11"); a(f"s_cbranch_scc1 {L}")
        a("s_cmp_ge_u32 s2, 8"); a(f"s_cbranch_scc1 {L}")
        a("s_mov_b64 exec, 1")
        a("s_lshl_b32 s29, s2, 2"); a("v_mov_b32 v2, s29")
        a("v_mov_b32 v4, s64"); a("v_mov_b32 v5, s84")
        a("global_store_dword v2, v4, s[24:25]"); a("global_store_dword v2, v5, s[24:25] offset:32")
        a.label(L)
    def dump_stamps(n):
        if cfg.dbgout:
            dump_dbg(n == 8)
            return
        if not cfg.stamps: return
        a("s_waitcnt vmcnt(0) lgkmcnt(0)")
        a("s_mov_b64 exec, 1")
        a("s_lshl_b32 s28, s2, 4"); a("s_add_u32 s28, s28, s3"); a("s_lshl_b32 s28, s28, 7")
        a(f"s_add_u32 s28, s28, {WS_DBG}")
        a("v_mov_b32 v2, s28")
        for q in range(0, 16, 4):
            for e in range(4):
                a(f"v_mov_b32 v{4+e}, s{64+2*(q+e)}")
            a(f"global_store_dwordx4 v2, v[4:7], s[26:27] offset:{q*4}")
        a("s_getreg_b32 s28, hwreg(HW_REG_XCC_ID)")
        a("v_mov_b32 v4, s28")
        a("global_store_dword v2, v4, s[26:27] offset:64")

    def spin_lds(cnt_off, target, vaddr, vtmp, stmp="s29", sto="s30", sleep=0):
        L = lab("spin"); D = lab("spind")
        a(f"s_mov_b32 {sto}, 0")
        a.label(L)
        a(f"ds_read_b32 {vtmp}, {vaddr} offset:{cnt_off}")
        a("s_waitcnt lgkmcnt(0)")
        a(f"v_readfirstlane_b32 {stmp}, {vtmp}")
        a(f"s_cmp_ge_u32 {stmp}, {target}")
        a(f"s_cbranch_scc1 {D}")
        if sleep: a(f"s_sleep {sleep}")
        a(f"s_add_u32 {sto}, {sto}, 1")
        a(f"s_cmp_lt_u32 {sto}, {cfg.spin_max}")
        a(f"s_cbranch_scc1 {L}")
        a.label(D)

    def set_exec(lo, hi):
        a(f"s_mov_b32 exec_lo, {hex(lo)}"); a(f"s_mov_b32 exec_hi, {hex(hi)}")

    def spin_v():
        if cfg.spin_prio is not None: a(f"s_setprio {cfg.spin_prio}")
        spin_lds(C_V, 8, "v10", f"v{TM}" if False else "v160", sleep=cfg.sl_v)
        if cfg.spin_prio is not None: a(f"s_setprio {cfg.prio_late}")

    def arrive_rtn(cnt_off, vaddr, vone, vtmp, sdst):
        a("s_mov_b64 exec, 1")
        a(f"ds_add_rtn_u32 {vtmp}, {vaddr}, {vone} offset:{cnt_off}")
        a("s_waitcnt lgkmcnt(0)")
        a(f"v_readfirstlane_b32 {sdst}, {vtmp}")
        a("s_mov_b64 exec, -1")

    def arrive(cnt_off, vaddr, vone):
        a("s_mov_b64 exec, 1")
        a(f"ds_add_u32 {vaddr}, {vone} offset:{cnt_off}")
        a("s_mov_b64 exec, -1")

    DPP = "row_mask:0xf bank_mask:0xf"
    def allreduce8(op, regs, tmp=None):
        for r in regs: a(f"{op}_dpp {r}, {r}, {r} quad_perm:[1,0,3,2] {DPP}")
        for r in regs: a(f"{op}_dpp {r}, {r}, {r} quad_perm:[2,3,0,1] {DPP}")
        for r in regs: a(f"{op}_dpp {r}, {r}, {r} row_half_mirror {DPP}")
    def allreduce_quad(op, regs):
        for r in regs: a(f"{op}_dpp {r}, {r}, {r} quad_perm:[1,0,3,2] {DPP}")
        for r in regs: a(f"{op}_dpp {r}, {r}, {r} quad_perm:[2,3,0,1] {DPP}")
    def allreduce_x16_x32(op, regs, tmps):
        for r, t in zip(regs, tmps): a(f"v_mov_b32 {t}, {r}")
        for r, t in zip(regs, tmps): a(f"v_permlane16_swap_b32 {r}, {t}")
        for r, t in zip(regs, tmps): a(f"{op} {r}, {r}, {t}")
        for r, t in zip(regs, tmps): a(f"v_mov_b32 {t}, {r}")
        for r, t in zip(regs, tmps): a(f"v_permlane32_swap_b32 {r}, {t}")
        for r, t in zip(regs, tmps): a(f"{op} {r}, {r}, {t}")

    def tag_consts():
        for i in range(4): a(f"s_mov_b32 s{40+i}, {hex(0x07060500+i)}")
        a("s_mov_b32 s44, 0x0c0c0400"); a("s_mov_b32 s45, 0x04000c0c"); a("s_mov_b32 s46, 0xffffff00")
    def make_tag(vE, vT, t1):
        a(f"v_add_u32 {vE}, 1, {vE}")
        a(f"s_mov_b32 s28, 0x9E3779B1")
        a(f"v_mul_lo_u32 {vT}, {vE}, s28")
        a(f"v_not_b32 {t1}, {vT}")
        a(f"v_and_b32 {t1}, 1, {t1}")
        a(f"v_lshlrev_b32 {t1}, 8, {t1}")
        a(f"v_and_b32 {vT}, 0xfffffeff, {vT}")
        a(f"v_or_b32 {vT}, {vT}, {t1}")
    def tag_insert(base, vT):
        for i in range(4): a(f"v_perm_b32 v{base+i}, v{base+i}, {vT}, s{40+i}")
    def tag_check(base, vT, vacc, t1, t2, first):
        a(f"v_perm_b32 {t1}, v{base+1}, v{base}, s44")
        a(f"v_perm_b32 {t2}, v{base+3}, v{base+2}, s45")
        if first:
            a(f"v_bitop3_b32 {vacc}, {t1}, {t2}, {vT} bitop3:0x56")
        else:
            a(f"v_bitop3_b32 {t1}, {t1}, {t2}, {vT} bitop3:0x56")
            a(f"v_or_b32 {vacc}, {vacc}, {t1}")
    def tag_strip(base):
        for i in range(4): a(f"v_and_b32 v{base+i}, s46, v{base+i}")
    def poll_loop(issue, check, vacc, sleep=0, pmax=None):
        L = lab("poll"); D = lab("polld")
        a("s_mov_b32 s30, 0")
        a.label(L)
        issue()
        a("s_waitcnt vmcnt(0)")
        check()
        a(f"v_cmp_ne_u32 vcc, 0, {vacc}")
        a(f"s_cbranch_vccz {D}")
        if cfg.masked: a("s_mov_b64 exec, vcc")
        if sleep: a(f"s_sleep {sleep}")
        a("s_add_u32 s30, s30, 1")
        a(f"s_cmp_lt_u32 s30, {pmax if pmax else cfg.spin_max}")
        a(f"s_cbranch_scc1 {L}")
        a.label(D)
        if cfg.masked: a("s_mov_b64 exec, -1")

    a.raw(f"{KNAME}:")
    a("s_cmp_ge_u32 s2, 256")
    a("s_cbranch_scc1 L_end")
    if cfg.dbgout or cfg.stamps:
        for i in range(1, 16): a(f"s_mov_b32 s{64+2*i}, 0")
    stamp(0)
    a("s_load_dwordx16 s[4:19], s[0:1], 0")
    a("s_load_dwordx8 s[20:27], s[0:1], 64")
    a("v_lshrrev_b32 v2, 6, v0")
    a("v_and_b32 v1, 63, v0")
    a("v_readfirstlane_b32 s3, v2")
    a("s_getpc_b64 s[28:29]")
    a.label("L_pc")
    a("s_add_u32 s28, s28, L_roles-L_pc"); a("s_addc_u32 s29, s29, 0")
    a("s_lshl_b32 s30, s2, 2")
    a("s_load_dword s101, s[28:29], s30")
    if cfg.code_pf:
        Lpf = lab("nopf")
        a(f"s_cmp_lg_u32 s3, {cfg.code_pf_wave}"); a(f"s_cbranch_scc1 {Lpf}")
        a("s_getpc_b64 s[30:31]")
        a.label("L_pf")
        a("v_lshlrev_b32 v3, 7, v1")
        for k in range(cfg.code_pf):
            a("v_min_u32 v4, L_roles+1020-L_pf, v3")
            a(f"global_load_dword v167, v4, s[30:31]")
            if k < cfg.code_pf - 1: a("v_add_u32 v3, 0x2000, v3")
        a.label(Lpf)
    a("v_and_b32 v3, 7, v1")
    a("v_and_b32 v4, 1, v3"); a("v_lshlrev_b32 v4, 4, v4"); a("v_mov_b32 v5, 0xffff"); a("v_lshlrev_b32 v4, v4, v5")
    a("v_lshrrev_b32 v3, 1, v3")
    for w in range(4):
        a(f"v_cmp_eq_u32 vcc, {w}, v3"); a(f"v_cndmask_b32 v{12+w}, 0, v4, vcc")
    a(f"v_mov_b32 v10, {LDS_C}")
    a("v_mov_b32 v11, 1")
    tag_consts()
    Lni = lab("noinit")
    a("s_cmp_lg_u32 s3, 0"); a(f"s_cbranch_scc1 {Lni}")
    a("v_lshlrev_b32 v3, 2, v1"); a(f"v_add_u32 v3, {LDS_C}, v3"); a("v_mov_b32 v4, 0")
    set_exec(0xffff, 0); a("ds_write_b32 v3, v4"); a("s_mov_b64 exec, -1")
    a.label(Lni)
    a("s_cmp_ge_u32 s3, 8"); a("s_cbranch_scc1 L_wts")

    vE, vT = "v16", "v17"
    vKA = [2, 3, 4, 5]; vVA = 6; vKR = [7, 8, 9, 18]; vQA = 19
    QB = 20; SB = 36; KF = 52; ACC = 84; BT = 88; VB = 96; TM = 160
    a(f"s_setprio {cfg.prio_k}")
    a("v_lshrrev_b32 v20, 4, v1"); a("v_and_b32 v21, 15, v1")
    a("v_lshlrev_b32 v22, 2, v20"); a("v_lshlrev_b32 v23, 8, v20")
    for r in range(4):
        a(f"v_add_u32 v24, {r}, v22"); a("v_xor_b32 v24, v24, v21"); a(f"v_lshl_add_u32 v{vKA[r]}, v24, 4, v23")
    a(f"v_lshlrev_b32 v{vVA}, 4, v1")
    a("v_lshrrev_b32 v22, 2, v21"); a("v_and_b32 v23, 3, v21")
    a("v_lshl_add_u32 v24, v23, 2, v22"); a("v_lshlrev_b32 v24, 8, v24")
    a("v_xor_b32 v25, v23, v20")
    a("s_lshl_b32 s28, s3, 14"); a("v_add_u32 v24, s28, v24")
    a("v_lshl_add_u32 v24, v25, 4, v24")
    for jj in range(4):
        a(f"v_xor_b32 v26, {jj}, v22"); a(f"v_lshl_add_u32 v{vKR[jj]}, v26, 6, v24")
    a("v_lshrrev_b32 v22, 3, v1"); a("v_and_b32 v22, 1, v22"); a("v_lshlrev_b32 v22, 8, v22")
    a(f"v_lshl_add_u32 v{vQA}, v20, 4, v22"); a(f"v_add_u32 v{vQA}, {LDS_Q}, v{vQA}")
    a(f"v_mov_b32 v{TM}, 0")
    a("s_waitcnt lgkmcnt(0)")
    a("s_and_b32 s96, s101, 0xff"); a("s_bfe_u32 s97, s101, 0x80008"); a("s_bfe_u32 s98, s101, 0x80010"); a("s_lshr_b32 s101, s101, 24")
    if cfg.tilemap == "cu":
        a("s_lshr_b32 s28, s96, 3"); a("s_and_b32 s29, s96, 7")
        a("s_lshl_b32 s28, s28, 23"); a("s_lshl_b32 s29, s29, 17"); a("s_add_u32 s28, s28, s29"); a("s_add_u32 s28, s28, 0x700000")
        a(f"s_mul_i32 s31, s96, {cfg.rot}"); a("s_add_u32 s31, s31, s3")
    else:
        a("s_lshr_b32 s29, s96, 3"); a("s_lshl_b32 s28, s29, 23"); a("s_add_u32 s28, s28, 0x700000")
        a(f"s_mul_i32 s31, s29, {cfg.rot}"); a("s_and_b32 s29, s96, 7")
        if cfg.tilemap == "pair":
            a("s_lshl_b32 s29, s29, 3"); a("s_add_u32 s31, s31, s29"); a("s_add_u32 s31, s31, s3")
        elif cfg.tilemap == "pair2":
            a("s_add_u32 s31, s31, s29"); a("s_lshl_b32 s29, s3, 3"); a("s_add_u32 s31, s31, s29")
    a("s_add_u32 s6, s6, s28"); a("s_addc_u32 s7, s7, 0"); a("s_add_u32 s8, s8, s28"); a("s_addc_u32 s9, s9, 0")
    a("s_lshl_b32 s37, s3, 14")
    if cfg.wtab:
        packed = sum(w << (4*i) for i, w in enumerate(cfg.wtab))
        a("s_getreg_b32 s100, hwreg(HW_REG_XCC_ID, 0, 3)"); a("s_lshl_b32 s100, s100, 2")
        a(f"s_lshr_b32 s100, {hex(packed)}, s100"); a("s_and_b32 s100, s100, 15")
    vmq = []
    def vm_issue(tag): vmq.append(tag)
    def vm_wait(tag):
        idx = max(i for i, t in enumerate(vmq) if t == tag)
        n = len(vmq) - 1 - idx
        a(f"s_waitcnt vmcnt({n})")
    def vm_window(W):
        if not cfg.wtab:
            a(f"s_waitcnt vmcnt({W-1})"); return
        lo, hi = min(cfg.wtab), max(cfg.wtab)
        D = lab("win")
        for w in range(hi, lo - 1, -1):
            a(f"s_waitcnt vmcnt({w-1})")
            if w > lo:
                a(f"s_cmp_ge_u32 s100, {w}"); a(f"s_cbranch_scc1 {D}")
        a.label(D)
    if cfg.bar_first:
        a("s_barrier")
    if cfg.emode == "s": a("s_load_dword s99, s[26:27], 0")
    else:
        a(f"global_load_dword {vE}, v{TM}, s[26:27]" + (" sc1" if cfg.emode == "sc1" else "")); vm_issue("E")
    def tile_off(u):
        if cfg.tilemap == "cu":
            a(f"s_add_u32 s32, s31, {8*u}"); a("s_and_b32 s32, s32, 31"); a("s_lshl_b32 s32, s32, 12")
        else:
            a(f"s_add_u32 s32, s31, {64*u}"); a("s_and_b32 s32, s32, 255"); a("s_lshl_b32 s32, s32, 12")
    nissued = [1]
    def issue_k(u, r):
        if r == 0:
            tile_off(u)
            a("s_add_u32 s34, s6, s32"); a("s_addc_u32 s35, s7, 0")
            a(f"s_add_u32 s33, s37, {4096*u}"); a("s_mov_b32 m0, s33")
        a(f"global_load_lds_dwordx4 v{vKA[r]}, s[34:35] offset:{1024*r}{NT}"); vm_issue(("k", u, r))
    def issue_v(i):
        u, r = divmod(i, 4)
        if r == 0:
            tile_off(u)
            a("s_add_u32 s38, s8, s32"); a("s_addc_u32 s39, s9, 0")
        a(f"global_load_dwordx4 v[{VB+4*i}:{VB+4*i+3}], v{vVA}, s[38:39] offset:{1024*r}{NT}"); vm_issue(("v", i))
        if cfg.trig_c is None and i == cfg.trig - 1:
            arrive(C_V, "v10", "v11")
        if i == cfg.v2_at:
            a(f"s_setprio {cfg.prio_v2}")
    kops = [(u, r) for u in range(4) for r in range(4)]
    bar_done = False
    for i, (u, r) in enumerate(kops):
        if i >= (min(cfg.wtab) if cfg.wtab else cfg.Wk): vm_window(cfg.Wk)
        if r == 0 and u > 0: stamp(6 + u)
        issue_k(u, r)
        if i == (cfg.bar_at if cfg.bar_at else (min(cfg.wtab) if cfg.wtab else cfg.Wk)) - 1 and not cfg.bar_first:
            a("s_waitcnt lgkmcnt(0)"); a("s_barrier")
    stamp(1)
    a(f"s_setprio {cfg.prio_v1}")
    nv = 0
    while nv < cfg.qk_at:
        vm_window(cfg.Wk if nv < cfg.Wk else cfg.Wv); issue_v(nv); nv += 1
    vm_wait(("k", 3, 3))
    for i in range(cfg.extra):
        if nv < 16: issue_v(nv); nv += 1
    stamp(2)
    if cfg.emode == "s": a("s_waitcnt lgkmcnt(0)"); a(f"v_mov_b32 {vE}, s99")
    make_tag(vE, vT, f"v{TM}")
    if not cfg.skip_qk:
        spin_lds(C_Q, 1 if cfg.q2 else 4, "v10", f"v{TM}")
        stamp(3)
        for jj in range(4):
            a(f"ds_read_b128 v[{QB+4*jj}:{QB+4*jj+3}], v{vQA} offset:{64*jj}")
        def kread(u):
            b = KF + 16*(u & 1)
            for jj in range(4):
                a(f"ds_read_b128 v[{b+4*jj}:{b+4*jj+3}], v{vKR[jj]} offset:{4096*u}")
        kread(0); kread(1)
        for u in range(4):
            b = KF + 16*(u & 1)
            a("s_waitcnt lgkmcnt(4)" if u < 3 else "s_waitcnt lgkmcnt(0)")
            for jj in range(4):
                c = "0" if jj == 0 else f"v[{SB+4*u}:{SB+4*u+3}]"
                a(f"v_mfma_f32_16x16x32_bf16 v[{SB+4*u}:{SB+4*u+3}], v[{b+4*jj}:{b+4*jj+3}], v[{QB+4*jj}:{QB+4*jj+3}], {c}")
            if u + 2 < 4: kread(u + 2)
        a(f"s_mov_b32 s47, {hex(SCALE)}")
        for u in range(4):
            for h in range(2):
                s0 = SB + 4*u + 2*h
                t = TM + 2*h
                a(f"v_cvt_pk_bf16_f32 v{t}, v{s0}, v{s0+1}")
                a(f"v_lshlrev_b32 v{s0}, 16, v{t}")
                a(f"v_and_b32 v{s0+1}, 0xffff0000, v{t}")
                a(f"v_mul_f32 v{s0}, s47, v{s0}")
                a(f"v_mul_f32 v{s0+1}, s47, v{s0+1}")
                a(f"v_cvt_pk_bf16_f32 v{t+1}, v{s0}, v{s0+1}")
                a(f"v_lshlrev_b32 v{s0}, 16, v{t+1}")
                a(f"v_and_b32 v{s0+1}, 0xffff0000, v{t+1}")
        a(f"v_max3_f32 v{TM}, v{SB}, v{SB+1}, v{SB+2}")
        a(f"v_max3_f32 v{TM+1}, v{SB+3}, v{SB+4}, v{SB+5}")
        a(f"v_max3_f32 v{TM+2}, v{SB+6}, v{SB+7}, v{SB+8}")
        a(f"v_max3_f32 v{TM+3}, v{SB+9}, v{SB+10}, v{SB+11}")
        a(f"v_max3_f32 v{TM}, v{TM}, v{SB+12}, v{SB+13}")
        a(f"v_max3_f32 v{TM+1}, v{TM+1}, v{SB+14}, v{SB+15}")
        a(f"v_max3_f32 v{TM}, v{TM}, v{TM+1}, v{TM+2}")
        a(f"v_max_f32 v{TM}, v{TM}, v{TM+3}")
        allreduce_x16_x32("v_max_f32", [f"v{TM}"], [f"v{TM+1}"])
        a(f"v_mov_b32 v22, v{TM}")
        a("v_lshrrev_b32 v20, 3, v1"); a("v_and_b32 v20, 1, v20"); a("v_lshlrev_b32 v20, 5, v20")
        a(f"v_add_u32 v20, {LDS_M}, v20")
        a("s_lshl_b32 s28, s3, 2"); a("v_add_u32 v21, s28, v20")
        a(f"s_mov_b32 s48, {hex(LOG2E)}")
        a("v_mul_f32 v23, s48, v22")
        for i in range(16):
            a(f"v_fma_f32 v{SB+i}, v{SB+i}, s48, -v23")
        for i in range(16):
            a(f"v_exp_f32 v{SB+i}, v{SB+i}")
        a(f"v_add_f32 v24, v{SB}, v{SB+1}"); a(f"v_add_f32 v25, v{SB+2}, v{SB+3}")
        for i in range(4, 16, 2):
            t = 24 + ((i >> 1) & 1)
            a(f"v_add_f32 v{t}, v{t}, v{SB+i}")
            a(f"v_add_f32 v{t}, v{t}, v{SB+i+1}")
        a(f"v_add_f32 v24, v24, v25")
        for i in range(16):
            a(f"v_cvt_pk_bf16_f32 v{SB+i}, v{SB+i}, v{SB+i}")
        stamp(4)
    else:
        a("v_mov_b32 v22, 0"); a("v_mov_b32 v24, 0"); a(f"s_mov_b32 s48, {hex(LOG2E)}")
        a("v_lshrrev_b32 v20, 3, v1"); a("v_and_b32 v20, 1, v20"); a("v_lshlrev_b32 v20, 5, v20")
        a(f"v_add_u32 v20, {LDS_M}, v20"); a("s_lshl_b32 s28, s3, 2"); a("v_add_u32 v21, s28, v20")
    def publish_ml():
        allreduce_x16_x32("v_add_f32", ["v24"], ["v25"])
        set_exec(0x101, 0); a("ds_write_b32 v21, v22"); a("ds_write_b32 v21, v24 offset:64"); a("s_mov_b64 exec, -1")
        arrive_rtn(C_L, "v10", "v11", f"v{TM+1}", "s49")
        Lnoml = lab("noml")
        a("s_cmp_lg_u32 s49, 7"); a(f"s_cbranch_scc1 {Lnoml}")
        a(f"ds_read_b128 v[{KF}:{KF+3}], v20"); a(f"ds_read_b128 v[{KF+4}:{KF+7}], v20 offset:16")
        a(f"ds_read_b128 v[{KF+8}:{KF+11}], v20 offset:64"); a(f"ds_read_b128 v[{KF+12}:{KF+15}], v20 offset:80")
        a("s_waitcnt lgkmcnt(0)")
        a(f"v_max3_f32 v26, v{KF}, v{KF+1}, v{KF+2}"); a(f"v_max3_f32 v27, v{KF+3}, v{KF+4}, v{KF+5}")
        a(f"v_max3_f32 v26, v26, v{KF+6}, v{KF+7}"); a("v_max_f32 v26, v26, v27")
        for w in range(8): a(f"v_sub_f32 v{KF+w}, v{KF+w}, v26")
        for w in range(8): a(f"v_mul_f32 v{KF+w}, s48, v{KF+w}")
        for w in range(8): a(f"v_exp_f32 v{KF+w}, v{KF+w}")
        for w in range(8): a(f"v_mul_f32 v{KF+w}, v{KF+w}, v{KF+8+w}")
        a(f"v_add_f32 v{KF}, v{KF}, v{KF+1}"); a(f"v_add_f32 v{KF+2}, v{KF+2}, v{KF+3}")
        a(f"v_add_f32 v{KF+4}, v{KF+4}, v{KF+5}"); a(f"v_add_f32 v{KF+6}, v{KF+6}, v{KF+7}")
        a(f"v_add_f32 v{KF}, v{KF}, v{KF+2}"); a(f"v_add_f32 v{KF+4}, v{KF+4}, v{KF+6}")
        a(f"v_add_f32 v{KF+1}, v{KF}, v{KF+4}")
        a("s_getreg_b32 s50, hwreg(HW_REG_XCC_ID, 0, 4)"); a("s_lshl_b32 s50, s50, 8")
        a(f"v_mov_b32 v{KF}, v26"); a(f"v_mov_b32 v{KF+2}, s50"); a(f"v_mov_b32 v{KF+3}, 0")
        tag_insert(KF, vT)
        a("s_lshr_b32 s28, s96, 3"); a("s_and_b32 s29, s28, 15"); a("s_lshr_b32 s28, s28, 4")
        a("s_lshl_b32 s29, s29, 9"); a("s_lshl_b32 s28, s28, 7"); a("s_add_u32 s28, s28, s29")
        a("s_and_b32 s29, s96, 7"); a("s_lshl_b32 s29, s29, 4"); a("s_add_u32 s28, s28, s29"); a(f"s_add_u32 s28, s28, {WS_ML}")
        a("v_lshrrev_b32 v27, 3, v1"); a("v_and_b32 v27, 1, v27"); a("v_lshlrev_b32 v27, 8, v27"); a("v_add_u32 v27, s28, v27")
        set_exec(0x101, 0)
        a(f"global_store_dwordx4 v27, v[{KF}:{KF+3}], s[26:27] sc1")
        a("s_mov_b64 exec, -1")
        a.label(Lnoml)
    def wave_factor():
        spin_lds(C_L, 8, "v10", f"v{TM}")
        a(f"ds_read_b128 v[{KF}:{KF+3}], v20"); a(f"ds_read_b128 v[{KF+4}:{KF+7}], v20 offset:16")
        a("v_lshrrev_b32 v28, 4, v1"); a("v_lshlrev_b32 v28, 7, v28")
        a("v_lshrrev_b32 v29, 3, v1"); a("v_and_b32 v29, 1, v29"); a("v_lshl_add_u32 v28, v29, 9, v28")
        a("v_and_b32 v29, 7, v1"); a("v_lshl_add_u32 v28, v29, 4, v28")
        a("s_lshl_b32 s28, s96, 10"); a(f"s_add_u32 s28, s28, {WS_OB}"); a("v_add_u32 v28, s28, v28")
        a("s_lshl_b32 s28, s3, 10"); a(f"s_add_u32 s28, s28, {LDS_R2}"); a(f"v_add_u32 v29, s28, v{vVA}")
        a(f"v_add_u32 v30, {LDS_R2}, v{vVA}")
        a(f"v_add_u32 v31, {WS_OBL-WS_OB}, v28")
        a("s_waitcnt lgkmcnt(0)")
        a(f"v_max3_f32 v26, v{KF}, v{KF+1}, v{KF+2}"); a(f"v_max3_f32 v27, v{KF+3}, v{KF+4}, v{KF+5}")
        a(f"v_max3_f32 v26, v26, v{KF+6}, v{KF+7}"); a("v_max_f32 v26, v26, v27")
        a("v_sub_f32 v26, v22, v26"); a("v_mul_f32 v26, s48, v26"); a("v_exp_f32 v26, v26")
    did_factor = False
    for i in range(16):
        bt = BT + 4*(i & 1)
        for w in range(4):
            a(f"v_and_b32 v{bt+w}, v{SB+i}, v{12+w}")
        vm_wait(("v", i))
        c = "0" if i == 0 else f"v[{ACC}:{ACC+3}]"
        a(f"v_mfma_f32_16x16x32_bf16 v[{ACC}:{ACC+3}], v[{VB+4*i}:{VB+4*i+3}], v[{bt}:{bt+3}], {c}")
        if i % 4 == 3 and i < 15: stamp(10 + i // 4)
        while nv < 16 and nv - (i + 1) < cfg.Wv:
            issue_v(nv); nv += 1
        if cfg.trig_c is not None and i == cfg.trig_c:
            arrive(C_V, "v10", "v11")
        if i == cfg.ml_at:
            publish_ml()
        if nv == 16 and not did_factor and i > cfg.ml_at and i >= cfg.fac_at:
            wave_factor(); did_factor = True
            a(f"s_setprio {cfg.prio_tail}")
    stamp(5)
    for e in range(4): a(f"v_mul_f32 v{ACC+e}, v{ACC+e}, v26")
    a(f"ds_write_b128 v29, v[{ACC}:{ACC+3}]")
    arrive_rtn(C_O, "v10", "v11", f"v{TM}", "s49")
    a("s_cmp_lg_u32 s49, 7"); a("s_cbranch_scc1 L_att_done")
    for w in range(8):
        a(f"ds_read_b128 v[{KF+4*w}:{KF+4*w+3}], v30 offset:{1024*w}")
    def pk(d, x, y): a(f"v_pk_add_f32 v[{d}:{d+1}], v[{x}:{x+1}], v[{y}:{y+1}]")
    a("s_waitcnt lgkmcnt(6)")
    for e in (0, 2): pk(KF+e, KF+e, KF+4+e)
    a("s_waitcnt lgkmcnt(4)")
    for e in (0, 2): pk(KF+8+e, KF+8+e, KF+12+e)
    a("s_waitcnt lgkmcnt(2)")
    for e in (0, 2): pk(KF+16+e, KF+16+e, KF+20+e)
    for e in (0, 2): pk(KF+e, KF+e, KF+8+e)
    a("s_waitcnt lgkmcnt(0)")
    for e in (0, 2): pk(KF+24+e, KF+24+e, KF+28+e)
    for e in (0, 2): pk(KF+16+e, KF+16+e, KF+24+e)
    for e in (0, 2): pk(KF+e, KF+e, KF+16+e)
    tag_insert(KF, vT)
    if cfg.local_o:
        a(f"global_store_dwordx4 v31, v[{KF}:{KF+3}], s[26:27]")
    a(f"global_store_dwordx4 v28, v[{KF}:{KF+3}], s[26:27] sc1")
    a.label("L_att_done")
    stamp(6)
    dump_stamps(8)
    a("s_endpgm")

    a.label("L_wts")
    a(f"s_setprio {cfg.prio_w}")
    a("s_sub_u32 s36, s3, 8")
    XR = 20; EX = 30; WQD = 48; FD = 68; AC = 116; BB = 140; TP = 148; TM = 160
    a("v_lshrrev_b32 v6, 3, v1"); a("v_and_b32 v7, 7, v1"); a("v_lshlrev_b32 v7, 4, v7")
    a("v_lshl_add_u32 v2, v6, 13, v7")
    a("s_movk_i32 s28, 9216")
    if cfg.f256:
        a("v_lshrrev_b32 v8, 4, v1"); a("v_and_b32 v9, 15, v1"); a("v_lshlrev_b32 v9, 4, v9"); a("v_mad_u32_u24 v3, v8, s28, v9")
    else:
        a("v_mad_u32_u24 v3, v6, s28, v7")
    a("s_movk_i32 s28, 1152"); a("v_mad_u32_u24 v4, v6, s28, v7")
    a("v_lshrrev_b32 v8, 5, v1"); a("v_and_b32 v9, 31, v1")
    a("v_mul_u32_u24 v18, 36, v9"); a("v_mad_u32_u24 v18, v8, s28, v18")
    a(f"v_mov_b32 v{TM}, 0")
    for e in range(4): a(f"v_mov_b32 v{WQD+16+e}, 0")
    a("s_mov_b32 s50, 0x00ff00ff"); a("s_mov_b32 s51, 0xff00ff00")
    a("s_mov_b32 s52, 0xff00ff00"); a("s_mov_b32 s53, 0xff00ff00")
    a("s_mov_b32 s54, 0xffff0000"); a("s_mov_b32 s55, 0xffff0000")
    stamp(11)
    a("s_waitcnt lgkmcnt(0)")
    a("s_and_b32 s96, s101, 0xff"); a("s_bfe_u32 s97, s101, 0x80008"); a("s_bfe_u32 s98, s101, 0x80010"); a("s_lshr_b32 s101, s101, 24")
    stamp(12)
    if cfg.emode != "s":
        a(f"global_load_dword v16, v{TM}, s[26:27]" + (" sc1" if cfg.emode == "sc1" else ""))
    a(f"global_load_dwordx4 v[{XR}:{XR+3}], v18, s[4:5]")
    a(f"global_load_dwordx4 v[{XR+4}:{XR+7}], v18, s[4:5] offset:16")
    a(f"global_load_dword v{XR+8}, v18, s[4:5] offset:32")
    a("s_and_b32 s56, s97, 3"); a("s_lshr_b32 s57, s97, 2")
    a(f"s_mul_i32 s28, s56, {144*8192}"); a("s_lshl_b32 s29, s57, 7"); a("s_add_u32 s28, s28, s29")
    a("s_add_u32 s10, s10, s28"); a("s_addc_u32 s11, s11, 0")
    a("s_lshl_b32 s28, s36, 16"); a("s_add_u32 s32, s10, s28"); a("s_addc_u32 s33, s11, 0")
    for i in range(4):
        a(f"global_load_dwordx4 v[{WQD+4*i}:{WQD+4*i+3}], v2, s[32:33]{NT}")
        if i < 3:
            a(f"s_add_u32 s32, s32, {32*8192}"); a("s_addc_u32 s33, s33, 0")
    a("s_lshl_b32 s28, s36, 15"); a(f"s_add_u32 s28, s28, {128*8192}")
    a("s_add_u32 s32, s10, s28"); a("s_addc_u32 s33, s11, 0")
    set_exec(0xffffffff, 0)
    a(f"global_load_dwordx4 v[{WQD+16}:{WQD+19}], v2, s[32:33]{NT}")
    a("s_mov_b64 exec, -1")
    stamp(13)
    a("s_waitcnt lgkmcnt(0)"); a("s_barrier")
    if cfg.emode == "s": a("s_load_dword s99, s[26:27], 0")
    stamp(1)
    if cfg.f256:
        a("s_cmp_ge_u32 s98, 108"); a("s_cselect_b32 s28, 108, 0")
        a("s_cselect_b32 s16, s18, s16"); a("s_cselect_b32 s17, s19, s17")
        a("s_sub_u32 s29, s98, s28")
        a("s_mul_hi_u32 s58, s29, 0x55555556"); a("s_mul_i32 s59, s58, 3"); a("s_sub_u32 s59, s29, s59")
        a(f"s_mul_i32 s28, s59, {192*9216}"); a("s_min_u32 s29, s58, 35"); a("s_lshl_b32 s29, s29, 8"); a("s_add_u32 s28, s28, s29")
        a(f"s_mul_i32 s29, s36, {4*9216}"); a("s_add_u32 s28, s28, s29")
        a("s_add_u32 s16, s16, s28"); a("s_addc_u32 s17, s17, 0")
        def ffn_issue(i0_, i1_):
            for i in range(2*i0_, 2*i1_):
                a(f"global_load_dwordx4 v[{FD+4*i}:{FD+4*i+3}], v3, s[16:17]{NT}")
                if i < 11:
                    a(f"s_add_u32 s16, s16, {16*9216}"); a("s_addc_u32 s17, s17, 0")
    else:
        a("s_mul_hi_u32 s58, s98, 0x55555556"); a("s_mul_i32 s59, s58, 3"); a("s_sub_u32 s59, s98, s59")
        a(f"s_mul_i32 s28, s59, {192*9216}"); a("s_min_u32 s29, s58, 71"); a("s_lshl_b32 s29, s29, 7"); a("s_add_u32 s28, s28, s29")
        a(f"s_mul_i32 s29, s36, {8*9216}"); a("s_add_u32 s28, s28, s29")
        a("s_add_u32 s16, s16, s28"); a("s_addc_u32 s17, s17, 0"); a("s_add_u32 s18, s18, s28"); a("s_addc_u32 s19, s19, 0")
        def ffn_issue(i0_, i1_):
            for i in range(i0_, i1_):
                a(f"global_load_dwordx4 v[{FD+8*i}:{FD+8*i+3}], v3, s[16:17]{NT}")
                a(f"global_load_dwordx4 v[{FD+8*i+4}:{FD+8*i+7}], v3, s[18:19]{NT}")
                if i < 5:
                    a(f"s_add_u32 s16, s16, {32*9216}"); a("s_addc_u32 s17, s17, 0"); a(f"s_add_u32 s18, s18, {32*9216}"); a("s_addc_u32 s19, s19, 0")
    def heavy_wait(n_light, n_extra):
        L1 = lab("hw"); L2 = lab("hwd")
        a("s_cmp_ge_u32 s98, 216"); a(f"s_cbranch_scc1 {L1}")
        a(f"s_waitcnt vmcnt({n_light+n_extra})"); a(f"s_branch {L2}")
        a.label(L1); a(f"s_waitcnt vmcnt({n_light})"); a.label(L2)
    if cfg.ffn_pos == "start":
        assert cfg.ffn1 == 6
        Ls = lab("ffs")
        a("s_cmp_ge_u32 s98, 216"); a(f"s_cbranch_scc1 {Ls}")
        ffn_issue(0, 6)
        a.label(Ls)
    a("v_lshrrev_b32 v6, 3, v1"); a("v_and_b32 v6, 1, v6")
    a("v_lshrrev_b32 v7, 4, v1")
    a("s_movk_i32 s28, 2304"); a("v_mul_u32_u24 v5, 0x900, v6")
    a(f"v_add_u32 v5, {LDS_T}, v5")
    a("v_and_b32 v19, 1, v7"); a("v_lshl_add_u32 v19, v19, 3, v5")
    a("v_lshl_add_u32 v5, v7, 3, v5")
    a("v_mul_u32_u24 v6, 72, v9"); a("v_mul_u32_u24 v7, 0x900, v8"); a("v_add_u32 v6, v6, v7"); a(f"v_add_u32 v6, {LDS_T}, v6")
    a("v_lshl_add_u32 v7, v8, 2, v6")
    a("v_xor_b32 v8, 1, v8"); a("v_lshl_add_u32 v8, v8, 2, v6")
    if cfg.ffn_pos == "start": heavy_wait(5, 12)
    else: a("s_waitcnt vmcnt(5)")
    stamp(2)
    for k in range(9):
        a(f"v_lshlrev_b32 v{EX+2*k}, 16, v{XR+k}"); a(f"v_and_b32 v{EX+2*k+1}, 0xffff0000, v{XR+k}")
    a(f"v_add_f32 v{TM}, v{EX}, v{EX+1}"); a(f"v_add_f32 v{TM+1}, v{EX+2}, v{EX+3}")
    for k in range(4, 18, 2):
        t = TM + ((k >> 1) & 1)
        a(f"v_add_f32 v{t}, v{t}, v{EX+k}"); a(f"v_add_f32 v{t}, v{t}, v{EX+k+1}")
    a(f"v_add_f32 v{TM}, v{TM}, v{TM+1}")
    def allreduce32(r, t):
        allreduce8("v_add_f32", [r])
        a(f"v_add_f32_dpp {r}, {r}, {r} row_mirror {DPP}")
        a(f"v_mov_b32 {t}, {r}"); a(f"v_permlane16_swap_b32 {r}, {t}"); a(f"v_add_f32 {r}, {r}, {t}")
    allreduce32(f"v{TM}", f"v{TM+1}")
    a(f"v_mul_f32 v{TM}, 0x3ae38e39, v{TM}")
    a(f"v_sub_f32 v{TM+2}, v{EX}, v{TM}"); a(f"v_mul_f32 v{TM+1}, v{TM+2}, v{TM+2}")
    a(f"v_sub_f32 v{TM+3}, v{EX+1}, v{TM}"); a(f"v_mul_f32 v{TM+4}, v{TM+3}, v{TM+3}")
    for k in range(2, 18, 2):
        a(f"v_sub_f32 v{TM+2}, v{EX+k}, v{TM}"); a(f"v_sub_f32 v{TM+3}, v{EX+k+1}, v{TM}")
        a(f"v_fmac_f32 v{TM+1}, v{TM+2}, v{TM+2}"); a(f"v_fmac_f32 v{TM+4}, v{TM+3}, v{TM+3}")
    a(f"v_add_f32 v{TM+1}, v{TM+1}, v{TM+4}")
    allreduce32(f"v{TM+1}", f"v{TM+2}")
    a(f"v_mul_f32 v{TM+1}, 0x3ae38e39, v{TM+1}")
    a(f"v_cvt_pk_bf16_f32 v{TM}, v{TM}, v{TM+1}")
    a(f"v_and_b32 v{TM+1}, 0xffff0000, v{TM}")
    a(f"v_lshlrev_b32 v{TM}, 16, v{TM}")
    a(f"v_add_f32 v{TM+1}, 0x3727c5ac, v{TM+1}")
    a(f"v_cvt_pk_bf16_f32 v{TM+1}, v{TM+1}, v{TM+1}"); a(f"v_and_b32 v{TM+1}, 0xffff0000, v{TM+1}")
    a(f"v_sqrt_f32 v{TM+1}, v{TM+1}")
    a(f"v_cvt_pk_bf16_f32 v{TM+1}, v{TM+1}, v{TM+1}"); a(f"v_and_b32 v{TM+1}, 0xffff0000, v{TM+1}")
    a(f"v_rcp_f32 v{TM+2}, v{TM+1}")
    for k in range(9):
        e0, e1 = EX + 2*k, EX + 2*k + 1
        a(f"v_sub_f32 v{e0}, v{e0}, v{TM}"); a(f"v_sub_f32 v{e1}, v{e1}, v{TM}")
        a(f"v_cvt_pk_bf16_f32 v{TM+3}, v{e0}, v{e1}")
        a(f"v_lshlrev_b32 v{e0}, 16, v{TM+3}"); a(f"v_and_b32 v{e1}, 0xffff0000, v{TM+3}")
        a(f"v_mul_f32 v{TM+4}, v{e0}, v{TM+2}"); a(f"v_mul_f32 v{TM+5}, v{e1}, v{TM+2}")
        a(f"v_fma_f32 v{e0}, -v{TM+4}, v{TM+1}, v{e0}"); a(f"v_fma_f32 v{e1}, -v{TM+5}, v{TM+1}, v{e1}")
        a(f"v_fmac_f32 v{TM+4}, v{e0}, v{TM+2}"); a(f"v_fmac_f32 v{TM+5}, v{e1}, v{TM+2}")
        a(f"v_cvt_pk_bf16_f32 v{e0}, v{TM+4}, v{TM+4}"); a(f"v_cvt_pk_bf16_f32 v{e1}, v{TM+5}, v{TM+5}")
        a(f"ds_write_b32 v7, v{e0} offset:{8*k}"); a(f"ds_write_b32 v8, v{e1} offset:{8*k}")
    if cfg.emode == "s": a("s_waitcnt lgkmcnt(0)"); a("v_mov_b32 v16, s99")
    make_tag("v16", "v17", f"v{TM}")
    stamp(3)
    def gemv_unit(dreg_list, pair, accs, first):
        for w in range(4): a(f"v_and_b32 v{BB+w}, v{pair}, v{12+w}")
        for w in range(4): a(f"v_and_b32 v{BB+4+w}, v{pair+1}, v{12+w}")
        for d, (d1, d2) in zip(dreg_list, accs):
            c1 = "0" if first else f"v[{d1}:{d1+3}]"; c2 = "0" if first else f"v[{d2}:{d2+3}]"
            a(f"v_mfma_f32_16x16x32_bf16 v[{d1}:{d1+3}], v[{d}:{d+3}], v[{BB}:{BB+3}], {c1}")
            a(f"v_mfma_f32_16x16x32_bf16 v[{d2}:{d2+3}], v[{d}:{d+3}], v[{BB+4}:{BB+7}], {c2}")
    def zsel(d1, d2):
        for e in range(4): a(f"v_cndmask_b32_e64 v{d1+e}, v{d2+e}, v{d1+e}, s[50:51]")
    a("s_mul_i32 s28, s56, 576"); a("s_lshl_b32 s29, s36, 5"); a("s_add_u32 s28, s28, s29"); a("v_add_u32 v6, s28, v5")
    for i in range(4): a(f"ds_read_b64 v[{TP+2*i}:{TP+2*i+1}], v6 offset:{128*i}")
    a("s_mul_i32 s28, s56, 576"); a("s_lshl_b32 s29, s36, 4"); a("s_add_u32 s28, s28, s29"); a("s_add_u32 s28, s28, 512"); a("v_add_u32 v6, s28, v19")
    a(f"ds_read_b64 v[{TP+8}:{TP+9}], v6")
    if cfg.ffn_pos == "ln":
        assert cfg.ffn1 == 6
        Ls = lab("ffs")
        a("s_cmp_ge_u32 s98, 216"); a(f"s_cbranch_scc1 {Ls}")
        ffn_issue(0, 6)
        a.label(Ls)
    if cfg.ffn_pos in ("start", "ln"): heavy_wait(0, 12)
    else: a("s_waitcnt vmcnt(0)")
    a("s_waitcnt lgkmcnt(0)")
    for i in range(5):
        gemv_unit([WQD + 4*i], TP + 2*i, [(AC, AC + 4)], i == 0)
    zsel(AC, AC + 4)
    a("v_lshlrev_b32 v18, 4, v1")
    a("s_lshl_b32 s28, s36, 10"); a(f"s_add_u32 s28, s28, {LDS_R1}"); a("v_add_u32 v6, s28, v18")
    a(f"ds_write_b128 v6, v[{AC}:{AC+3}]")
    arrive_rtn(C_WQ, "v10", "v11", f"v{TM}", "s49")
    Lnq = lab("noqpub")
    a("s_cmp_lg_u32 s49, 3"); a(f"s_cbranch_scc1 {Lnq}")
    a("v_and_b32 v6, 31, v1"); a("v_lshlrev_b32 v6, 4, v6"); a("v_lshrrev_b32 v7, 5, v1"); a("v_lshl_add_u32 v6, v7, 3, v6"); a(f"v_add_u32 v6, {LDS_R1}, v6")
    for w in range(4):
        for e in range(2):
            a(f"ds_read_b64 v[{EX+4*w+2*e}:{EX+4*w+2*e+1}], v6 offset:{1024*w+512*e}")
    a("v_lshrrev_b32 v8, 3, v1"); a("v_and_b32 v8, 1, v8"); a("v_lshlrev_b32 v8, 9, v8"); a("v_lshl_add_u32 v8, v7, 8, v8")
    a("v_lshrrev_b32 v9, 4, v1"); a("v_and_b32 v9, 1, v9"); a("v_lshl_add_u32 v8, v9, 7, v8")
    a("v_and_b32 v9, 7, v1"); a("v_lshl_add_u32 v8, v9, 4, v8")
    a("s_lshl_b32 s28, s97, 10"); a(f"s_add_u32 s28, s28, {WS_QB}"); a("v_add_u32 v8, s28, v8")
    a("s_waitcnt lgkmcnt(0)")
    for st in range(4):
        a(f"v_add_f32 v{EX+4*st}, v{EX+4*st}, v{EX+4*st+2}"); a(f"v_add_f32 v{EX+4*st+1}, v{EX+4*st+1}, v{EX+4*st+3}")
    for st in (0, 8):
        a(f"v_add_f32 v{EX+st}, v{EX+st}, v{EX+st+4}"); a(f"v_add_f32 v{EX+st+1}, v{EX+st+1}, v{EX+st+5}")
    a(f"v_add_f32 v{EX}, v{EX}, v{EX+8}"); a(f"v_add_f32 v{EX+2}, v{EX+1}, v{EX+9}")
    a(f"v_mov_b32 v{EX+1}, v16"); a(f"v_mov_b32 v{EX+3}, v16")
    a(f"global_store_dwordx4 v8, v[{EX}:{EX+3}], s[26:27] sc1")
    a.label(Lnq)
    stamp(4)
    Lnf1 = lab("noffn1")
    a("s_cmp_ge_u32 s98, 216"); a(f"s_cbranch_scc1 {Lnf1}")
    if cfg.ffn_pos == "q": ffn_issue(0, cfg.ffn1)
    if cfg.f256:
        a("v_lshrrev_b32 v6, 3, v1"); a("v_and_b32 v6, 1, v6")
        a("v_lshrrev_b32 v7, 4, v1")
        a("v_xor_b32 v8, v7, v6"); a("v_and_b32 v8, 1, v8"); a("v_lshlrev_b32 v8, 2, v8")
        a("v_lshrrev_b32 v7, 1, v7"); a("v_lshl_add_u32 v8, v7, 3, v8")
        a("v_mul_u32_u24 v6, 0x900, v6"); a("v_add_u32 v6, v6, v8")
        a("s_mul_i32 s28, s59, 768"); a("s_lshl_b32 s29, s36, 4"); a("s_add_u32 s28, s28, s29"); a(f"s_add_u32 s28, s28, {LDS_T}")
        a("v_add_u32 v6, s28, v6")
        for i in range(12): a(f"ds_read_b32 v{TP+i}, v6 offset:{64*i}")
    else:
        a("s_mul_i32 s28, s59, 768"); a("s_lshl_b32 s29, s36, 5"); a("s_add_u32 s28, s28, s29"); a("v_add_u32 v6, s28, v5")
        for i in range(6): a(f"ds_read_b64 v[{TP+2*i}:{TP+2*i+1}], v6 offset:{128*i}")
    a("s_waitcnt lgkmcnt(0)")
    if cfg.wait_ffn1: a("s_waitcnt vmcnt(0)")
    a.label(Lnf1)
    a("s_lshr_b32 s28, s96, 3"); a("s_lshr_b32 s60, s28, 4"); a("s_and_b32 s61, s28, 15")
    if cfg.q2:
        Lo = lab("q1o"); Lj = lab("q1j")
        a("s_cmp_lg_u32 s36, 0"); a(f"s_cbranch_scc1 {Lo}")
        a("s_lshl_b32 s28, s57, 12"); a("s_lshr_b32 s29, s56, 1"); a("s_lshl_b32 s29, s29, 9"); a("s_add_u32 s28, s28, s29")
        a("s_and_b32 s29, s56, 1"); a("s_lshl_b32 s29, s29, 7"); a("s_add_u32 s28, s28, s29"); a(f"s_add_u32 s28, s28, {WS_QB}")
        a("v_and_b32 v6, 3, v1"); a("v_lshlrev_b32 v6, 10, v6")
        a("v_lshrrev_b32 v7, 2, v1"); a("v_and_b32 v7, 7, v7"); a("v_lshl_add_u32 v6, v7, 4, v6")
        a("v_lshrrev_b32 v8, 5, v1"); a("v_lshl_add_u32 v6, v8, 8, v6"); a("v_add_u32 v6, s28, v6")
        a("s_lshl_b32 s28, s57, 9"); a("s_lshl_b32 s29, s56, 7"); a("s_add_u32 s28, s28, s29"); a(f"s_add_u32 s28, s28, {WS_QF}")
        a("v_lshl_add_u32 v8, v7, 4, s28")
        G = EX
        def iss():
            a(f"global_load_dwordx4 v[{G}:{G+3}], v6, s[26:27] sc1")
        def chk():
            a(f"v_bitop3_b32 v{TM}, v{G+1}, v{G+3}, v16 bitop3:0x7e")
        Lq0 = lab("q0"); Lq1 = lab("q1"); Lq2 = lab("q2")
        iss()
        a("s_cmp_ge_u32 s98, 216"); a(f"s_cbranch_scc1 {Lq0}")
        ffn_issue(cfg.ffn1, 6)
        a(f"s_waitcnt vmcnt({2*(6-cfg.ffn1)})"); a(f"s_branch {Lq1}")
        a.label(Lq0); a("s_waitcnt vmcnt(0)"); a.label(Lq1)
        chk()
        a(f"v_cmp_ne_u32 vcc, 0, v{TM}")
        a(f"s_cbranch_vccz {Lq2}")
        if cfg.masked: a("s_mov_b64 exec, vcc")
        poll_loop(iss, chk, f"v{TM}", sleep=cfg.sl_q, pmax=cfg.pmax_q)
        a.label(Lq2)
        allreduce_quad("v_add_f32", [f"v{G}", f"v{G+2}"])
        a(f"v_mov_b32 v{G+1}, v{G}"); a(f"v_mov_b32 v{G+3}, v{G+2}")
        a(f"v_permlane32_swap_b32 v{G}, v{G+1}"); a(f"v_permlane32_swap_b32 v{G+2}, v{G+3}")
        for k, r in enumerate((G, G + 2, G + 1, G + 3)):
            a(f"v_cvt_pk_bf16_f32 v{G+4+k}, v{r}, v{r}")
        tag_insert(G + 4, "v17")
        set_exec(0x11111111, 0)
        a(f"global_store_dwordx4 v8, v[{G+4}:{G+7}], s[26:27] sc1")
        a("s_mov_b64 exec, -1")
        a(f"s_branch {Lj}")
        a.label(Lo)
        a("s_cmp_ge_u32 s98, 216"); a(f"s_cbranch_scc1 {Lj}")
        ffn_issue(cfg.ffn1, 6)
        a.label(Lj)
    else:
        a("s_lshr_b32 s28, s96, 3"); a("s_lshr_b32 s60, s28, 4"); a("s_and_b32 s61, s28, 15")
        a("s_lshl_b32 s28, s61, 2"); a("s_add_u32 s28, s28, s36"); a("s_lshl_b32 s28, s28, 12")
        a("s_lshl_b32 s29, s60, 9"); a("s_add_u32 s28, s28, s29"); a(f"s_add_u32 s28, s28, {WS_QB}")
        a("v_and_b32 v6, 3, v1"); a("v_lshlrev_b32 v6, 10, v6")
        a("v_lshrrev_b32 v7, 2, v1"); a("v_and_b32 v7, 7, v7"); a("v_lshl_add_u32 v6, v7, 4, v6")
        a("v_lshrrev_b32 v8, 5, v1"); a("v_lshl_add_u32 v6, v8, 7, v6"); a("v_add_u32 v6, s28, v6")
        G = EX
        def iss():
            a(f"global_load_dwordx4 v[{G}:{G+3}], v6, s[26:27] sc1")
            a(f"global_load_dwordx4 v[{G+4}:{G+7}], v6, s[26:27] offset:256 sc1")
        def chk():
            a(f"v_bitop3_b32 v{TM}, v{G+1}, v{G+3}, v16 bitop3:0x7e")
            a(f"v_bitop3_b32 v{TM+1}, v{G+5}, v{G+7}, v16 bitop3:0x7e")
            a(f"v_or_b32 v{TM}, v{TM}, v{TM+1}")
        if cfg.x_noq:
            Lx = lab("xq")
            a("s_cmp_ge_u32 s98, 216"); a(f"s_cbranch_scc1 {Lx}")
            if cfg.ffn1 < 6: ffn_issue(cfg.ffn1, 6)
            a.label(Lx)
        elif cfg.b2_early and cfg.ffn1 < 6:
            Lq0 = lab("q0"); Lq1 = lab("q1"); Lq2 = lab("q2")
            iss()
            a("s_cmp_ge_u32 s98, 216"); a(f"s_cbranch_scc1 {Lq0}")
            ffn_issue(cfg.ffn1, 6)
            a(f"s_waitcnt vmcnt({2*(6-cfg.ffn1)})"); a(f"s_branch {Lq1}")
            a.label(Lq0); a("s_waitcnt vmcnt(0)"); a.label(Lq1)
            chk()
            a(f"v_cmp_ne_u32 vcc, 0, v{TM}")
            a(f"s_cbranch_vccz {Lq2}")
            if cfg.masked: a("s_mov_b64 exec, vcc")
            poll_loop(iss, chk, f"v{TM}", sleep=cfg.sl_q, pmax=cfg.pmax_q)
            a.label(Lq2)
        else:
            poll_loop(iss, chk, f"v{TM}", sleep=cfg.sl_q, pmax=cfg.pmax_q)
        qv = [G, G + 2, G + 4, G + 6]
        allreduce_quad("v_add_f32", [f"v{r}" for r in qv])
        for r in qv: a(f"v_cvt_pk_bf16_f32 v{r}, v{r}, v{r}")
        a("s_lshr_b32 s28, s36, 1"); a("s_lshl_b32 s28, s28, 8"); a("s_and_b32 s29, s36, 1"); a("s_lshl_b32 s29, s29, 7")
        a("s_add_u32 s28, s28, s29"); a(f"s_add_u32 s28, s28, {LDS_Q}")
        a("v_lshlrev_b32 v8, 6, v8"); a("v_lshl_add_u32 v8, v7, 1, v8"); a("v_add_u32 v8, s28, v8")
        a("s_mov_b32 exec_lo, 0x11111111"); a("s_mov_b32 exec_hi, 0x11111111")
        for r in range(4): a(f"ds_write_b16 v8, v{qv[r]} offset:{16*r}")
        a("s_mov_b64 exec, -1")
        arrive(C_Q, "v10", "v11")
        stamp(5)


    Lnf2 = lab("noffn2")
    a("s_cmp_ge_u32 s98, 216"); a(f"s_cbranch_scc1 {Lnf2}")
    if not (cfg.q2 or (cfg.b2_early and cfg.ffn1 < 6)): ffn_issue(cfg.ffn1, 6)
    if cfg.f256:
        for i in range(12):
            b = BB + 4*(i & 1)
            for w in range(4): a(f"v_and_b32 v{b+w}, v{TP+i}, v{12+w}")
            if i >= 2*cfg.ffn1: a(f"s_waitcnt vmcnt({11-i})")
            c = "0" if i == 0 else f"v[{AC}:{AC+3}]"
            a(f"v_mfma_f32_16x16x32_bf16 v[{AC}:{AC+3}], v[{FD+4*i}:{FD+4*i+3}], v[{b}:{b+3}], {c}")
        a("s_lshl_b32 s28, s36, 10"); a(f"s_add_u32 s28, s28, {LDS_R1+4096}"); a("v_add_u32 v6, s28, v18")
        a(f"ds_write_b128 v6, v[{AC}:{AC+3}]")
        arrive_rtn(C_GU, "v10", "v11", f"v{TM}", "s49")
        a("s_cmp_lg_u32 s49, 3"); a(f"s_cbranch_scc1 {Lnf2}")
        a(f"v_add_u32 v6, {LDS_R1+4096}, v18")
        for w in range(4): a(f"ds_read_b128 v[{FD+4*w}:{FD+4*w+3}], v6 offset:{1024*w}")
        a("s_lshl_b32 s28, s98, 10"); a(f"s_add_u32 s28, s28, {WS_GU}"); a("v_add_u32 v8, s28, v18")
        a("s_waitcnt lgkmcnt(0)")
        for e in range(4): a(f"v_add_f32 v{FD+e}, v{FD+e}, v{FD+4+e}")
        for e in range(4): a(f"v_add_f32 v{FD+8+e}, v{FD+8+e}, v{FD+12+e}")
        for e in range(4): a(f"v_add_f32 v{FD+e}, v{FD+e}, v{FD+8+e}")
        tag_insert(FD, "v17")
        a(f"global_store_dwordx4 v8, v[{FD}:{FD+3}], s[26:27] sc1")
    else:
        for i in range(6):
            if i >= cfg.ffn1: a(f"s_waitcnt vmcnt({10-2*i})")
            gemv_unit([FD + 8*i, FD + 8*i + 4], TP + 2*i, [(AC, AC + 4), (AC + 8, AC + 12)], i == 0)
        zsel(AC, AC + 4); zsel(AC + 8, AC + 12)
        a("s_lshl_b32 s28, s36, 11"); a(f"s_add_u32 s28, s28, {LDS_R1+4096}"); a("v_add_u32 v6, s28, v18")
        a(f"ds_write_b128 v6, v[{AC}:{AC+3}]"); a(f"ds_write_b128 v6, v[{AC+8}:{AC+11}] offset:1024")
        arrive_rtn(C_GU, "v10", "v11", f"v{TM}", "s49")
        a("s_cmp_lg_u32 s49, 3"); a(f"s_cbranch_scc1 {Lnf2}")
        a("v_and_b32 v6, 31, v1"); a("v_lshlrev_b32 v6, 4, v6"); a("v_lshrrev_b32 v7, 5, v1"); a("v_lshl_add_u32 v6, v7, 10, v6"); a(f"v_add_u32 v6, {LDS_R1+4096}, v6")
        for w in range(4):
            for e in range(2):
                r = FD + 8*w + 4*e
                a(f"ds_read_b128 v[{r}:{r+3}], v6 offset:{2048*w+512*e}")
        a("v_lshrrev_b32 v8, 3, v1"); a("v_and_b32 v8, 1, v8"); a("v_lshlrev_b32 v8, 8, v8"); a("v_lshl_add_u32 v8, v7, 9, v8")
        a("v_lshrrev_b32 v9, 4, v1"); a("v_and_b32 v9, 1, v9"); a("v_lshl_add_u32 v8, v9, 7, v8")
        a("v_and_b32 v9, 7, v1"); a("v_lshl_add_u32 v8, v9, 4, v8")
        a("s_lshl_b32 s28, s98, 10"); a(f"s_add_u32 s28, s28, {WS_GU}"); a("v_add_u32 v8, s28, v8")
        a("s_waitcnt lgkmcnt(0)")
        for w in range(4):
            for e in range(4): a(f"v_add_f32 v{FD+8*w+e}, v{FD+8*w+e}, v{FD+8*w+4+e}")
        for w in (0, 2):
            for e in range(4): a(f"v_add_f32 v{FD+8*w+e}, v{FD+8*w+e}, v{FD+8*w+8+e}")
        for e in range(4): a(f"v_add_f32 v{FD+e}, v{FD+e}, v{FD+16+e}")
        tag_insert(FD, "v17")
        a(f"global_store_dwordx4 v8, v[{FD}:{FD+3}], s[26:27] sc1")
    a.label(Lnf2)
    stamp(6)
    if cfg.q2:
        Lq3 = lab("q3")
        a("s_cmp_lg_u32 s36, 1"); a(f"s_cbranch_scc1 {Lq3}")
        a("s_lshl_b32 s28, s61, 11"); a("s_lshl_b32 s29, s60, 8"); a("s_add_u32 s28, s28, s29"); a(f"s_add_u32 s28, s28, {WS_QF}")
        a("v_lshrrev_b32 v7, 4, v1"); a("v_lshlrev_b32 v6, 9, v7")
        a("v_lshrrev_b32 v8, 3, v1"); a("v_and_b32 v8, 1, v8"); a("v_lshl_add_u32 v6, v8, 7, v6")
        a("v_and_b32 v9, 7, v1"); a("v_lshl_add_u32 v6, v9, 4, v6"); a("v_add_u32 v6, s28, v6")
        a("v_lshlrev_b32 v7, 7, v7"); a("v_lshl_add_u32 v7, v8, 6, v7"); a("v_lshl_add_u32 v7, v9, 1, v7"); a(f"v_add_u32 v7, {LDS_Q}, v7")
        G = EX
        def iss():
            a(f"global_load_dwordx4 v[{G}:{G+3}], v6, s[26:27] sc1")
        def chk():
            tag_check(G, "v17", f"v{TM}", f"v{TM+1}", f"v{TM+2}", True)
        poll_loop(iss, chk, f"v{TM}", sleep=cfg.sl_q2)
        for r in range(4): a(f"ds_write_b16_d16_hi v7, v{G+r} offset:{16*r}")
        arrive(C_Q, "v10", "v11")
        stamp(5)
        a.label(Lq3)
    a("s_cmp_lt_u32 s101, 144"); a("s_cbranch_scc1 L_wtype")
    a("s_cmp_lt_u32 s101, 160"); a("s_cbranch_scc1 L_wts_done")

    OA = EX
    def late_loads(sb):
        n = 0
        for t in range(4):
            for cg in range(3):
                r = FD + 12*t + 4*cg
                if n >= cfg.Wl: a(f"s_waitcnt vmcnt({cfg.Wl-1})")
                a(f"global_load_dwordx4 v[{r}:{r+3}], v4, s[{sb}:{sb+1}] offset:{128*cg}{NT}")
                n += 1
            if t < 3:
                a(f"s_add_u32 s{sb}, s{sb}, 9216"); a(f"s_addc_u32 s{sb+1}, s{sb+1}, 0")
    BBUF = [BB, 152]
    def late_bops(t):
        b = BBUF[t & 1]
        L = [f"v_cndmask_b32_e64 v{TP}, v{OA+t}, v{OA+4+t}, s[52:53]",
             f"v_cndmask_b32_e64 v{TP+2}, v{OA+4+t}, v{OA+t}, s[52:53]"]
        L += [f"v_and_b32 v{b+w}, v{TP}, v{12+w}" for w in range(2)]
        L += [f"v_mov_b32_dpp v{TP+1}, v{TP+2} row_ror:8 {DPP}"]
        L += [f"v_and_b32 v{b+w}, v{TP}, v{12+w}" for w in range(2, 4)]
        L += [f"v_and_b32 v{b+4+w}, v{TP+1}, v{12+w}" for w in range(4)]
        return L
    def late_gemv():
        for ins in late_bops(0): a(ins)
        for t in range(4):
            b = BBUF[t & 1]
            nxt = late_bops(t + 1) if t < 3 else []
            k = 0
            for cg in range(3):
                d = FD + 12*t + 4*cg
                for half in range(2):
                    acc = AC + 8*cg + 4*half
                    c = "0" if t == 0 else f"v[{acc}:{acc+3}]"
                    a(f"v_mfma_f32_16x16x32_bf16 v[{acc}:{acc+3}], v[{d}:{d+3}], v[{b+4*half}:{b+4*half+3}], {c}")
                    for ins in nxt[k:k+2]: a(ins)
                    k += 2
            for ins in nxt[k:]: a(ins)
    def late_addr(sj, sslot):
        a("v_lshrrev_b32 v9, 3, v1"); a("v_and_b32 v9, 3, v9"); a("s_movk_i32 s28, 10240"); a("v_mul_u32_u24 v9, s28, v9")
        a("v_and_b32 v8, 7, v1"); a("v_lshl_add_u32 v9, v8, 4, v9")
        a(f"s_mul_i32 s28, {sj}, 12"); a("s_lshl_b32 s29, s36, 2"); a("s_add_u32 s28, s28, s29"); a("s_mul_i32 s28, s28, 10240")
        a(f"s_lshl_b32 s29, {sslot}, 7"); a("s_add_u32 s28, s28, s29"); a(f"s_add_u32 s28, s28, {WS_FIN}"); a("v_add_u32 v9, s28, v9")
        a("s_mul_i32 s28, s36, 3072"); a(f"s_add_u32 s28, s28, {LDS_R3}"); a("v_add_u32 v8, s28, v18")
        a("s_lshl_b32 s28, s36, 10"); a(f"s_add_u32 s28, s28, {LDS_R3}"); a("v_add_u32 v19, s28, v18")
    def late_reduce(nW):
        for cg in range(3):
            zsel(AC + 8*cg, AC + 8*cg + 4)
            a(f"ds_write_b128 v8, v[{AC+8*cg}:{AC+8*cg+3}] offset:{1024*cg}")
        arrive(C_LATE, "v10", "v11")
        if nW == 4:
            a("s_cmp_eq_u32 s36, 3"); a("s_cbranch_scc1 L_wts_done")
        spin_lds(C_LATE, nW, "v10", f"v{TM}")
        r = FD
        for w in range(nW):
            a(f"ds_read_b128 v[{r+4*w}:{r+4*w+3}], v19 offset:{3072*w}")
        def pk(d, x, y): a(f"v_pk_add_f32 v[{d}:{d+1}], v[{x}:{x+1}], v[{y}:{y+1}]")
        a(f"s_waitcnt lgkmcnt({nW-2})")
        for e in (0, 2): pk(r+e, r+e, r+4+e)
        a("s_waitcnt lgkmcnt(0)")
        if nW == 4:
            for e in (0, 2): pk(r+8+e, r+8+e, r+12+e)
        for e in (0, 2): pk(r+e, r+e, r+8+e)
        for e in range(4): a(f"v_mov_b32 v{r+4+e}, v{r+e}")
        for e in range(4): a(f"v_permlane32_swap_b32 v{r+e}, v{r+4+e}")
        for e in (0, 2): pk(r+e, r+e, r+4+e)
        tag_insert(r, "v17")
        set_exec(0xffffffff, 0)
        a(f"global_store_dwordx4 v9, v[{r}:{r+3}], s[26:27] sc1")
        a("s_mov_b64 exec, -1")

    a("; ---- O type ----")
    a("s_sub_u32 s28, s101, 160"); a("s_mul_hi_u32 s62, s28, 0x55555556"); a("s_mul_i32 s29, s62, 3"); a("s_sub_u32 s63, s28, s29")
    a("v_and_b32 v5, 7, v1"); a("v_lshlrev_b32 v5, 4, v5"); a("s_lshl_b32 s28, s62, 8"); a(f"s_add_u32 s28, s28, {WS_ML}"); a("v_add_u32 v5, s28, v5")
    a(f"s_mul_i32 s28, s62, {128*1152}"); a("s_mul_i32 s29, s63, 384"); a("s_add_u32 s28, s28, s29"); a(f"s_mul_i32 s29, s36, {32*1152}"); a("s_add_u32 s28, s28, s29")
    a("s_add_u32 s12, s12, s28"); a("s_addc_u32 s13, s13, 0")
    a("s_lshr_b32 s28, s62, 1"); a("s_lshl_b32 s28, s28, 13"); a("s_and_b32 s29, s62, 1"); a("s_lshl_b32 s29, s29, 9"); a("s_add_u32 s28, s28, s29")
    a("s_lshl_b32 s29, s36, 7"); a("s_add_u32 s28, s28, s29"); a(f"s_add_u32 s28, s28, {WS_OB}")
    a("v_and_b32 v6, 7, v1"); a("v_lshlrev_b32 v6, 10, v6"); a("v_lshrrev_b32 v7, 3, v1"); a("v_lshl_add_u32 v6, v7, 4, v6"); a("v_add_u32 v6, s28, v6")
    a(f"v_add_u32 v7, {16*8*1024}, v6")
    late_addr("s63", "s62")
    a(f"s_mov_b32 s48, {hex(LOG2E)}")
    spin_v()
    a(f"s_setprio {cfg.prio_late}")
    stamp(7)
    late_loads(12)
    G = XR
    def ml_factor():
        for bb in range(2):
            g = G + 4*bb
            a(f"v_and_b32 v{g}, s46, v{g}"); a(f"v_and_b32 v{g+1}, s46, v{g+1}")
            a(f"v_mov_b32 v{g+3}, v{g+2}")
            a(f"v_mov_b32 v{g+2}, v{g}")
        allreduce8("v_max_f32", [f"v{G+2}", f"v{G+6}"])
        for bb in range(2):
            g = G + 4*bb
            a(f"v_sub_f32 v{g}, v{g}, v{g+2}"); a(f"v_mul_f32 v{g}, s48, v{g}"); a(f"v_exp_f32 v{g}, v{g}")
        for bb in range(2):
            g = G + 4*bb
            a(f"v_mul_f32 v{g+1}, v{g+1}, v{g}")
        allreduce8("v_add_f32", [f"v{G+1}", f"v{G+5}"])
        for bb in range(2):
            g = G + 4*bb
            a(f"v_rcp_f32 v{g+2}, v{g+1}")
        for bb in range(2):
            g = G + 4*bb
            a(f"v_mul_f32 v{28+bb}, v{g}, v{g+2}")
        if cfg.local_o:
            a("s_getreg_b32 s28, hwreg(HW_REG_XCC_ID, 0, 4)")
            for bb, va in ((0, "v6"), (1, "v7")):
                a(f"v_lshrrev_b32 v{TM}, 8, v{G+4*bb+3}")
                a(f"v_cmp_eq_u32 vcc, s28, v{TM}")
                a(f"v_add_u32 v{TM+1}, {WS_OBL-WS_OB}, {va}")
                a(f"v_cndmask_b32 {va}, {va}, v{TM+1}, vcc")
    Lp = lab("opoll"); Lf = lab("opollf"); Ld = lab("opolld"); Lr = lab("opollr")
    a("s_mov_b32 s30, 0"); a("s_mov_b32 s31, 0")
    a("s_mov_b64 s[32:33], -1"); a("s_mov_b64 s[34:35], -1")
    a.label(Lp)
    for bb, va in ((0, "v6"), (1, "v7")):
        Ls = lab("oskip"); Lm = lab("oskipm")
        a(f"s_mov_b64 exec, s[{32+2*bb}:{33+2*bb}]")
        a(f"s_cbranch_execz {Ls}")
        a("s_cmp_lg_u32 s31, 0"); a(f"s_cbranch_scc1 {Lm}")
        a(f"global_load_dwordx4 v[{G+4*bb}:{G+4*bb+3}], v5, s[26:27] offset:{128*bb} sc1")
        a.label(Lm)
        a(f"global_load_dwordx4 v[{OA+4*bb}:{OA+4*bb+3}], {va}, s[26:27] sc1")
        a.label(Ls)
    a("s_mov_b64 exec, -1")
    a("s_waitcnt vmcnt(0)")
    a("s_mov_b64 s[38:39], 0"); a("s_mov_b64 s[56:57], 0")
    a("s_cmp_lg_u32 s31, 0"); a(f"s_cbranch_scc1 {Lf}")
    tag_check(G, "v17", f"v{TM}", f"v{TM+1}", f"v{TM+2}", True)
    tag_check(G + 4, "v17", f"v{TM+3}", f"v{TM+1}", f"v{TM+2}", True)
    a(f"v_cmp_ne_u32 s[38:39], 0, v{TM}")
    a(f"v_cmp_ne_u32 s[56:57], 0, v{TM+3}")
    a("s_or_b64 s[58:59], s[38:39], s[56:57]")
    a(f"s_cbranch_scc1 {Lf}")
    ml_factor()
    a("s_mov_b32 s31, 1")
    a.label(Lf)
    tag_check(OA, "v17", f"v{TM}", f"v{TM+1}", f"v{TM+2}", True)
    tag_check(OA + 4, "v17", f"v{TM+3}", f"v{TM+1}", f"v{TM+2}", True)
    a(f"v_cmp_ne_u32 s[32:33], 0, v{TM}")
    a(f"v_cmp_ne_u32 s[34:35], 0, v{TM+3}")
    a("s_or_b64 s[32:33], s[32:33], s[38:39]")
    a("s_or_b64 s[34:35], s[34:35], s[56:57]")
    a("s_or_b64 s[58:59], s[32:33], s[34:35]")
    a(f"s_cbranch_scc0 {Ld}")
    if cfg.sl_o: a(f"s_sleep {cfg.sl_o}")
    a("s_add_u32 s30, s30, 1"); a(f"s_cmp_lt_u32 s30, {cfg.spin_max}"); a(f"s_cbranch_scc1 {Lp}")
    a.label(Ld)
    stamp(8)
    tag_strip(OA); tag_strip(OA + 4)
    for e in (0, 2): a(f"v_pk_mul_f32 v[{OA+e}:{OA+e+1}], v[{OA+e}:{OA+e+1}], v[28:29] op_sel_hi:[1,0]")
    for e in (4, 6): a(f"v_pk_mul_f32 v[{OA+e}:{OA+e+1}], v[{OA+e}:{OA+e+1}], v[28:29] op_sel:[0,1] op_sel_hi:[1,1]")
    allreduce8("v_add_f32", [f"v{OA+e}" for e in range(8)])
    for e in range(8): a(f"v_cvt_pk_bf16_f32 v{OA+e}, v{OA+e}, v{OA+e}")
    late_gemv()
    late_reduce(4)
    stamp(9)
    a("s_branch L_wts_done")

    a.label("L_wtype")
    a("; ---- W type ----")
    a("s_cmp_eq_u32 s36, 3"); a("s_cbranch_scc1 L_final")
    a("s_mul_hi_u32 s58, s101, 0x55555556"); a("s_mul_i32 s59, s58, 3"); a("s_sub_u32 s59, s101, s59")
    if cfg.late_gather: spin_lds(C_V, cfg.late_gather, "v10", f"v{TM}", sleep=cfg.sl_v)
    if cfg.f256:
        a("s_mul_i32 s28, s58, 3"); a("s_add_u32 s28, s28, s36"); a("s_lshr_b32 s29, s28, 2"); a("s_and_b32 s28, s28, 3")
        a("s_mul_i32 s29, s29, 3072"); a("s_lshl_b32 s28, s28, 8"); a("s_add_u32 s28, s28, s29"); a(f"s_add_u32 s28, s28, {WS_GU}")
        a("v_and_b32 v6, 3, v1"); a("v_cmp_ne_u32 s[56:57], 3, v6"); a("v_cndmask_b32_e64 v6, 0, v6, s[56:57]")
        a("v_lshlrev_b32 v6, 10, v6")
        a("v_lshrrev_b32 v7, 2, v1"); a("v_and_b32 v7, 1, v7"); a(f"v_mul_u32_u24 v7, {hex(108*1024)}, v7"); a("v_add_u32 v6, v6, v7")
        a("v_lshrrev_b32 v7, 3, v1"); a("v_lshl_add_u32 v6, v7, 4, v6"); a("v_add_u32 v6, s28, v6")
    else:
        a("s_mul_i32 s28, s58, 3"); a("s_add_u32 s28, s28, s36"); a("s_lshr_b32 s29, s28, 1"); a("s_and_b32 s28, s28, 1")
        a("s_mul_i32 s29, s29, 3072"); a("s_lshl_b32 s28, s28, 7"); a("s_add_u32 s28, s28, s29"); a(f"s_add_u32 s28, s28, {WS_GU}")
        a("v_and_b32 v6, 3, v1"); a("v_cmp_ne_u32 s[56:57], 3, v6"); a("v_cndmask_b32_e64 v6, 0, v6, s[56:57]")
        a("v_lshlrev_b32 v6, 10, v6")
        a("v_lshrrev_b32 v7, 2, v1"); a("v_and_b32 v7, 1, v7"); a("v_lshl_add_u32 v6, v7, 9, v6")
        a("v_lshrrev_b32 v7, 3, v1"); a("v_lshl_add_u32 v6, v7, 4, v6"); a("v_add_u32 v6, s28, v6")
    def iss():
        a(f"global_load_dwordx4 v[{OA}:{OA+3}], v6, s[26:27] sc1")
        a(f"global_load_dwordx4 v[{OA+4}:{OA+7}], v6, s[26:27] offset:{128 if cfg.f256 else 256} sc1")
    def chk():
        tag_check(OA, "v17", f"v{TM}", f"v{TM+1}", f"v{TM+2}", True)
        tag_check(OA + 4, "v17", f"v{TM}", f"v{TM+1}", f"v{TM+2}", False)
    if not cfg.x_nogu: poll_loop(iss, chk, f"v{TM}", sleep=cfg.sl_gu, pmax=cfg.pmax_gu)
    tag_strip(OA); tag_strip(OA + 4)
    for e in range(8): a(f"v_cndmask_b32_e64 v{OA+e}, 0, v{OA+e}, s[56:57]")
    allreduce_quad("v_add_f32", [f"v{OA+e}" for e in range(8)])
    OB2 = OA + 8
    for e in range(8): a(f"v_mov_b32_dpp v{OB2+e}, v{OA+e} row_half_mirror {DPP}")
    a("s_mov_b32 s56, 0xf0f0f0f0"); a("s_mov_b32 s57, 0xf0f0f0f0")
    a(f"s_mov_b32 s48, {hex(LOG2E)}")
    for e in range(8):
        g, u = TM, TM + 1
        a(f"v_cndmask_b32_e64 v{g}, v{OA+e}, v{OB2+e}, s[56:57]")
        a(f"v_cndmask_b32_e64 v{u}, v{OB2+e}, v{OA+e}, s[56:57]")
        a(f"v_cvt_pk_bf16_f32 v{g}, v{g}, v{u}")
        a(f"v_and_b32 v{u}, 0xffff0000, v{g}"); a(f"v_lshlrev_b32 v{g}, 16, v{g}")
        a(f"v_mul_f32 v{TM+2}, s48, v{g}"); a(f"v_exp_f32 v{TM+2}, -v{TM+2}"); a(f"v_add_f32 v{TM+2}, 1.0, v{TM+2}")
        a(f"v_rcp_f32 v{TM+3}, v{TM+2}")
        a(f"v_mul_f32 v{TM+4}, v{g}, v{TM+3}")
        a(f"v_fma_f32 v{TM+5}, -v{TM+4}, v{TM+2}, v{g}"); a(f"v_fmac_f32 v{TM+4}, v{TM+5}, v{TM+3}")
        a(f"v_cvt_pk_bf16_f32 v{TM+4}, v{TM+4}, v{TM+4}"); a(f"v_and_b32 v{TM+4}, 0xffff0000, v{TM+4}")
        a(f"v_mul_f32 v{TM+4}, v{TM+4}, v{u}")
        a(f"v_cvt_pk_bf16_f32 v{OA+e}, v{TM+4}, v{TM+4}")
    a(f"s_mul_i32 s28, s58, {96*1152}"); a("s_mul_i32 s29, s59, 384"); a("s_add_u32 s28, s28, s29"); a(f"s_mul_i32 s29, s36, {32*1152}"); a("s_add_u32 s28, s28, s29")
    a("s_add_u32 s20, s20, s28"); a("s_addc_u32 s21, s21, 0")
    a("s_add_u32 s62, s58, 32")
    late_addr("s59", "s62")
    spin_v()
    a(f"s_setprio {cfg.prio_late}")
    stamp(7)
    late_loads(20)
    a("s_waitcnt vmcnt(0)")
    stamp(8)
    late_gemv()
    late_reduce(3)
    stamp(9)
    a("s_branch L_wts_done")

    a.label("L_final")
    a("s_cmp_ge_u32 s101, 36"); a("s_cbranch_scc1 L_wts_done")
    a("s_mul_i32 s28, s101, 10240"); a(f"s_add_u32 s28, s28, {WS_FIN}"); a("v_add_u32 v6, s28, v18")
    a("v_add_u32 v7, 4096, v6"); a("v_add_u32 v8, 8192, v6")
    a("s_and_b32 s28, s101, 1"); a("s_mul_i32 s28, s28, 576"); a("s_lshr_b32 s29, s101, 1"); a("s_lshl_b32 s29, s29, 5"); a("s_add_u32 s28, s28, s29")
    a("v_and_b32 v9, 31, v1"); a("v_add_u32 v9, s28, v9"); a("v_lshlrev_b32 v9, 1, v9")
    a("global_load_ushort v19, v9, s[4:5]")
    if cfg.fin_wait_v: spin_v()
    G = FD
    def iss():
        for t in range(6):
            base, off = (("v7", 1024*t) if t < 4 else ("v8", 1024*(t-4)))
            a(f"global_load_dwordx4 v[{G+4*t}:{G+4*t+3}], {base}, s[26:27] offset:{off} sc1")
    def chk():
        for t in range(6): tag_check(G + 4*t, "v17", f"v{TM}", f"v{TM+1}", f"v{TM+2}", t == 0)
    poll_loop(iss, chk, f"v{TM}", sleep=cfg.sl_fin)
    stamp(7)
    def reduce_slots(n):
        for t in range(n): tag_strip(G + 4*t)
        for t in range(1, n):
            for e in range(4): a(f"v_add_f32 v{G+e}, v{G+e}, v{G+4*t+e}")
        for e in range(4): a(f"v_add_f32_dpp v{G+e}, v{G+e}, v{G+e} row_ror:8 {DPP}")
        allreduce_x16_x32("v_add_f32", [f"v{G+e}" for e in range(4)], [f"v{G+4+e}" for e in range(4)])
        a(f"v_cndmask_b32_e64 v{G}, v{G}, v{G+1}, s[52:53]"); a(f"v_cndmask_b32_e64 v{G+2}, v{G+2}, v{G+3}, s[52:53]")
        a(f"v_cndmask_b32_e64 v{G}, v{G}, v{G+2}, s[54:55]")
    reduce_slots(6)
    a(f"s_mov_b32 s48, {hex(LOG2E)}")
    a(f"v_cvt_pk_bf16_f32 v{G}, v{G}, v{G}"); a(f"v_and_b32 v{G}, 0xffff0000, v{G}")
    a(f"v_mul_f32 v{TM+2}, s48, v{G}"); a(f"v_exp_f32 v{TM+2}, -v{TM+2}"); a(f"v_add_f32 v{TM+2}, 1.0, v{TM+2}")
    a(f"v_rcp_f32 v{TM+3}, v{TM+2}"); a(f"v_mul_f32 v{TM+4}, v{G}, v{TM+3}")
    a(f"v_fma_f32 v{TM+5}, -v{TM+4}, v{TM+2}, v{G}"); a(f"v_fmac_f32 v{TM+4}, v{TM+5}, v{TM+3}")
    a(f"v_cvt_pk_bf16_f32 v{TM+4}, v{TM+4}, v{TM+4}"); a(f"v_and_b32 v20, 0xffff0000, v{TM+4}")
    a("v_lshlrev_b32 v19, 16, v19")
    def iss():
        for t in range(4):
            a(f"global_load_dwordx4 v[{G+4*t}:{G+4*t+3}], v6, s[26:27] offset:{1024*t} sc1")
    def chk():
        for t in range(4): tag_check(G + 4*t, "v17", f"v{TM}", f"v{TM+1}", f"v{TM+2}", t == 0)
    poll_loop(iss, chk, f"v{TM}")
    stamp(8)
    reduce_slots(4)
    a(f"v_cvt_pk_bf16_f32 v{G}, v{G}, v{G}"); a(f"v_and_b32 v{G}, 0xffff0000, v{G}")
    a(f"v_mul_f32 v{G}, v{G}, v20"); a(f"v_cvt_pk_bf16_f32 v{G}, v{G}, v{G}"); a(f"v_and_b32 v{G}, 0xffff0000, v{G}")
    a(f"v_add_f32 v{G}, v19, v{G}"); a(f"v_cvt_pk_bf16_f32 v{G}, v{G}, v{G}")
    set_exec(0xffffffff, 0)
    a(f"global_store_short v9, v{G}, s[22:23]")
    a("s_mov_b64 exec, -1")
    a("s_cmp_lg_u32 s101, 0"); a("s_cbranch_scc1 L_wts_done")
    a(f"v_mov_b32 v{TM}, 0")
    a("s_mov_b64 exec, 1")
    a(f"global_store_dword v{TM}, v16, s[26:27] sc1")
    a("s_mov_b64 exec, -1")
    a.label("L_wts_done")
    stamp(10)
    dump_stamps(12)
    a.label("L_end")
    a("s_endpgm")
    a.raw(".p2align 6")
    a.raw(".type L_roles,@object")
    a.label("L_roles")
    roles = make_roles(cfg)
    for c0 in range(0, 256, 8):
        a.raw("    .long " + ", ".join(hex(r[0] | r[1] << 8 | r[2] << 16 | r[3] << 24) for r in roles[c0:c0+8]))
    a.raw(".size L_roles, 1024")
    return a

HEADER = """; Kernarg layout (96 bytes, pointers only, base s[0:1]):
; @launch grid=(256,1,1) block=(768,1,1) lds=%d
.amdgcn_target "amdgcn-amd-amdhsa--gfx950"
.text
.globl %s
.p2align 8
.type %s,@function
"""
FOOTER = """.section .rodata,"a"
.p2align 6
.amdhsa_kernel %s
  .amdhsa_next_free_vgpr 168
  .amdhsa_next_free_sgpr 102
  .amdhsa_accum_offset 168
  .amdhsa_group_segment_fixed_size 0
  .amdhsa_kernarg_size 96
  .amdhsa_user_sgpr_count 2
  .amdhsa_user_sgpr_kernarg_segment_ptr 1
  .amdhsa_system_sgpr_workgroup_id_x 1
  .amdhsa_float_denorm_mode_32 3
.end_amdhsa_kernel
"""
def build(cfg):
    a = gen(cfg)
    lds = (LDS_END + 255) // 256 * 256
    return HEADER % (lds, KNAME, KNAME) + a.text() + FOOTER % KNAME

if __name__ == "__main__":
    out = sys.argv[1] if len(sys.argv) > 1 else "k.s"
    kw = eval(sys.argv[2]) if len(sys.argv) > 2 else {}
    open(out, "w").write(build(Cfg(**kw)))
```

```python
import sys, json
sys.path.insert(0, 'work')
from asmb import Asm

KNAME = "recurrent_scan__sliding_block_cached__glu_gated_swiglu__decode_kernel"

LDS_K  = 0
LDS_T  = 131072
LDS_Q  = LDS_T + 4608
LDS_R1 = LDS_Q + 512
LDS_R2 = LDS_K + 16384
LDS_R3 = LDS_R1 + 12288
LDS_M  = LDS_R3 + 12288
LDS_C  = LDS_M + 128
LDS_END = LDS_C + 64
C_WQ, C_GU, C_Q, C_M, C_L, C_V, C_O, C_LATE, C_G = [4*i for i in range(9)]

WS_QB  = 0x010000
WS_QF  = 0x050000
WS_GU  = 0x060000
WS_ML  = 0x0A0000
WS_DN  = 0x0A8000
WS_OB  = 0x0B0000
WS_OBL = 0x180000
WS_FIN = 0x100000
WS_DBG = 0x200000

LOG2E = 0x3fb8aa3b
SCALE = 0x3db504f3
SPIN_MAX = 1 << 22

class Cfg:
    def __init__(self, **kw):
        self.Wk = 4; self.Wv = 4; self.extra = 2; self.trig = 16; self.rot = 1
        self.attmap = 'id'; self.rmap = 'id'; self.emode = 's'; self.dbgout = False; self.sl_v = 0; self.late_gather = 0; self.qk_at = 12; self.fac_at = 8; self.Wl = 12; self.tilemap = 'cu'; self.wtab = None; self.plan = None; self.b2_early = True; self.sl_q = 0; self.trig_c = None; self.pmax_q = None; self.pmax_gu = None; self.local_o = False; self.stamp_set = None; self.skip_qk = False; self.code_pf = 0; self.code_pf_wave = 11; self.sl_o = 0; self.x_noq = False; self.x_nogu = False; self.q2 = False; self.sl_q2 = 2; self.f256 = False; self.ffn_pos = 'q'; self.spin_prio = None; self.bar_at = None; self.ml_w3 = False; self.sl_l = 4; self.gu_late = False; self.fin2 = 0; self.epoch_plain = False; self.dn_k = 0; self.sl_dn = 1; self.v_pts = []; self.Wq = 6; self.lds_spin_max = None; self.masked = True; self.wait_ffn1 = True; self.bar_first = True; self.sl_gu = 4; self.sl_ml = 4; self.sl_fin = 2; self.fin_wait_v = True; self.ffn1 = 3; self.ml_at = 3; self.prio_k = 2; self.prio_v1 = 1; self.prio_v2 = 0; self.v2_at = 8; self.prio_tail = 3; self.prio_w = 3; self.prio_late = 3; self.stamps = False; self.nt = " nt"
        self.spin_max = SPIN_MAX
        self.__dict__.update(kw)

def make_roles(cfg):
    ids = list(range(256))
    def att_of(c):
        x, i = c & 7, c >> 3
        if cfg.attmap == "id": return c
        if cfg.attmap == "T": return (c & 31) * 8 + (c >> 5)
        if cfg.attmap == "X":
            return (((i >> 3) & 1) * 16 + 2 * x + (i >> 4)) * 8 + (i & 7)
    att = [att_of(c) for c in ids]
    if cfg.plan is None:
        if cfg.rmap == "odd":
            R = [c if c < 176 else (176 + ((c - 176) >> 1) + 40 * (c & 1)) for c in ids]
        else: R = list(ids)
        return [(att[c], c, R[c], R[c]) for c in ids]
    p = cfg.plan
    nlight = p["nlight"]
    assert sum(nlight) == 40
    light = [c for c in ids if (c >> 3) >= 32 - nlight[c & 7]]
    heavy = [c for c in ids if c not in light]
    slowR = [] if cfg.f256 else [r for r in range(216) if (r // 3) % 8 == 3]
    normR = [r for r in range(216) if r not in slowR]
    R = {}
    pref = p.get("slow_dies", [0, 2, 6])
    cand = sorted([c for c in heavy if (c & 7) in pref], key=lambda c: (c >> 3, pref.index(c & 7)))
    for c, r in zip(cand, slowR): R[c] = r
    rest = [c for c in heavy if c not in R]
    for c, r in zip(rest, normR): R[c] = r
    for k, c in enumerate(light): R[c] = 216 + k
    slowQ = [w for w in range(256) if (w >> 2) % 8 == 3]
    normQ = [w for w in range(256) if w not in slowQ]
    Q = {}
    if p.get("slowq_light", True):
        for c, w in zip(light, slowQ): Q[c] = w
    else:
        cand = [c for c in heavy if (c & 7) in pref and R[c] not in slowR]
        for c, w in zip(cand, slowQ): Q[c] = w
    rest = [c for c in ids if c not in Q]
    used = set(Q.values())
    for c, w in zip(rest, [w for w in range(256) if w not in used]): Q[c] = w
    nO = p.get("nO", [12]*8); nS = p.get("nS", [2]*8)
    assert sum(nO) == 96 and sum(nS) == 16
    L = {}
    Os, Ss, Ws = [], [], []
    for x in range(8):
        cs = [c for c in ids if (c & 7) == x]
        cs.sort(key=lambda c: (0 if c in light else 1, 1 if R[c] in slowR else 0, c))
        if p.get("o_heavy_first"): cs = cs[::-1]
        Os += cs[:nO[x]]; rem = cs[nO[x]:]
        Ss += rem[len(rem)-nS[x]:] if nS[x] else []
        Ws += rem[:len(rem)-nS[x]]
    Ws.sort(key=lambda c: (c >> 3, c & 7))
    Os.sort(key=lambda c: (c >> 3, c & 7))
    for k, c in enumerate(Ws): L[c] = k
    for k, c in enumerate(Ss): L[c] = 144 + k
    if cfg.attmap == "X":
        assert nO == [12]*8
        for x in range(8):
            cs = sorted(c for c in Os if (c & 7) == x)
            for k, c in enumerate(cs): L[c] = 160 + 12 * x + k
    else:
        for k, c in enumerate(Os): L[c] = 160 + k
    out = [(att[c], Q[c], R[c], L[c]) for c in ids]
    for k in range(4): assert sorted(o[k] for o in out) == ids
    return out

def gen(cfg):
    a = Asm()
    NT = cfg.nt
    uid = [0]
    def lab(p):
        uid[0] += 1
        return f"L_{p}_{uid[0]}"

    nstamp = [0]
    def stamp(idx):
        if cfg.stamps and (cfg.stamp_set is None or idx in cfg.stamp_set):
            a(f"s_memrealtime s[{64+2*idx}:{65+2*idx}]")
    def dump_dbg(att):
        if att: return
        L = lab("nodbg")
        a("s_waitcnt vmcnt(0) lgkmcnt(0)")
        a("s_cmp_lg_u32 s3, 11"); a(f"s_cbranch_scc1 {L}")
        a("s_cmp_ge_u32 s2, 8"); a(f"s_cbranch_scc1 {L}")
        a("s_mov_b64 exec, 1")
        a("s_lshl_b32 s29, s2, 2"); a("v_mov_b32 v2, s29")
        a("v_mov_b32 v4, s64"); a("v_mov_b32 v5, s84")
        a("global_store_dword v2, v4, s[24:25]"); a("global_store_dword v2, v5, s[24:25] offset:32")
        a.label(L)
    def dump_stamps(n):
        if cfg.dbgout:
            dump_dbg(n == 8)
            return
        if not cfg.stamps: return
        a("s_waitcnt vmcnt(0) lgkmcnt(0)")
        a("s_mov_b64 exec, 1")
        a("s_lshl_b32 s28, s2, 4"); a("s_add_u32 s28, s28, s3"); a("s_lshl_b32 s28, s28, 7")
        a(f"s_add_u32 s28, s28, {WS_DBG}")
        a("v_mov_b32 v2, s28")
        for q in range(0, 16, 4):
            for e in range(4):
                a(f"v_mov_b32 v{4+e}, s{64+2*(q+e)}")
            a(f"global_store_dwordx4 v2, v[4:7], s[26:27] offset:{q*4}")
        a("s_getreg_b32 s28, hwreg(HW_REG_XCC_ID)")
        a("v_mov_b32 v4, s28")
        a("global_store_dword v2, v4, s[26:27] offset:64")

    def spin_lds(cnt_off, target, vaddr, vtmp, stmp="s29", sto="s30", sleep=0):
        L = lab("spin"); D = lab("spind")
        a(f"s_mov_b32 {sto}, 0")
        a.label(L)
        a(f"ds_read_b32 {vtmp}, {vaddr} offset:{cnt_off}")
        a("s_waitcnt lgkmcnt(0)")
        a(f"v_readfirstlane_b32 {stmp}, {vtmp}")
        a(f"s_cmp_ge_u32 {stmp}, {target}")
        a(f"s_cbranch_scc1 {D}")
        if sleep: a(f"s_sleep {sleep}")
        a(f"s_add_u32 {sto}, {sto}, 1")
        a(f"s_cmp_lt_u32 {sto}, {cfg.lds_spin_max if cfg.lds_spin_max else cfg.spin_max}")
        a(f"s_cbranch_scc1 {L}")
        a.label(D)

    def set_exec(lo, hi):
        a(f"s_mov_b32 exec_lo, {hex(lo)}"); a(f"s_mov_b32 exec_hi, {hex(hi)}")

    def gate_late(skvh):
        if not cfg.dn_k:
            spin_v(); return
        Lw = lab("gw"); Lx = lab("gx"); Lp = lab("gp"); Ld = lab("gd")
        a("s_cmp_lg_u32 s36, 0"); a(f"s_cbranch_scc1 {Lw}")
        a("v_and_b32 v160, 15, v1"); a("v_lshlrev_b32 v160, 4, v160")
        a(f"s_lshl_b32 s28, {skvh}, 8"); a(f"s_add_u32 s28, s28, {WS_DN}"); a("v_add_u32 v165, s28, v160")
        spin_v()
        a("s_mov_b32 s31, 0")
        a.label(Lp)
        set_exec(0xffff, 0)
        a("global_load_dwordx4 v[20:23], v165, s[26:27] sc1")
        a("s_waitcnt vmcnt(0)")
        tag_check(20, "v17", "v160", "v161", "v162", True)
        a("v_cmp_eq_u32 vcc, 0, v160")
        a("s_mov_b64 exec, -1")
        a("s_bcnt1_i32_b64 s28, vcc")
        a(f"s_cmp_ge_u32 s28, {cfg.dn_k}"); a(f"s_cbranch_scc1 {Ld}")
        if cfg.sl_dn: a(f"s_sleep {cfg.sl_dn}")
        a("s_add_u32 s31, s31, 1"); a(f"s_cmp_lt_u32 s31, {cfg.spin_max}"); a(f"s_cbranch_scc1 {Lp}")
        a.label(Ld)
        arrive(C_G, "v10", "v11")
        a(f"s_branch {Lx}")
        a.label(Lw)
        if cfg.spin_prio is not None: a(f"s_setprio {cfg.spin_prio}")
        spin_lds(C_G, 1, "v10", "v160", sleep=cfg.sl_v)
        if cfg.spin_prio is not None: a(f"s_setprio {cfg.prio_late}")
        a.label(Lx)

    def spin_v():
        if cfg.spin_prio is not None: a(f"s_setprio {cfg.spin_prio}")
        spin_lds(C_V, 8, "v10", f"v{TM}" if False else "v160", sleep=cfg.sl_v)
        if cfg.spin_prio is not None: a(f"s_setprio {cfg.prio_late}")

    def arrive_rtn(cnt_off, vaddr, vone, vtmp, sdst):
        a("s_mov_b64 exec, 1")
        a(f"ds_add_rtn_u32 {vtmp}, {vaddr}, {vone} offset:{cnt_off}")
        a("s_waitcnt lgkmcnt(0)")
        a(f"v_readfirstlane_b32 {sdst}, {vtmp}")
        a("s_mov_b64 exec, -1")

    def arrive(cnt_off, vaddr, vone):
        a("s_mov_b64 exec, 1")
        a(f"ds_add_u32 {vaddr}, {vone} offset:{cnt_off}")
        a("s_mov_b64 exec, -1")

    DPP = "row_mask:0xf bank_mask:0xf"
    def allreduce8(op, regs, tmp=None):
        for r in regs: a(f"{op}_dpp {r}, {r}, {r} quad_perm:[1,0,3,2] {DPP}")
        for r in regs: a(f"{op}_dpp {r}, {r}, {r} quad_perm:[2,3,0,1] {DPP}")
        for r in regs: a(f"{op}_dpp {r}, {r}, {r} row_half_mirror {DPP}")
    def allreduce_quad(op, regs):
        for r in regs: a(f"{op}_dpp {r}, {r}, {r} quad_perm:[1,0,3,2] {DPP}")
        for r in regs: a(f"{op}_dpp {r}, {r}, {r} quad_perm:[2,3,0,1] {DPP}")
    def allreduce_x16_x32(op, regs, tmps):
        for r, t in zip(regs, tmps): a(f"v_mov_b32 {t}, {r}")
        for r, t in zip(regs, tmps): a(f"v_permlane16_swap_b32 {r}, {t}")
        for r, t in zip(regs, tmps): a(f"{op} {r}, {r}, {t}")
        for r, t in zip(regs, tmps): a(f"v_mov_b32 {t}, {r}")
        for r, t in zip(regs, tmps): a(f"v_permlane32_swap_b32 {r}, {t}")
        for r, t in zip(regs, tmps): a(f"{op} {r}, {r}, {t}")

    def tag_consts():
        for i in range(4): a(f"s_mov_b32 s{40+i}, {hex(0x07060500+i)}")
        a("s_mov_b32 s44, 0x0c0c0400"); a("s_mov_b32 s45, 0x04000c0c"); a("s_mov_b32 s46, 0xffffff00")
    def make_tag(vE, vT, t1):
        a(f"v_add_u32 {vE}, 1, {vE}")
        a(f"s_mov_b32 s28, 0x9E3779B1")
        a(f"v_mul_lo_u32 {vT}, {vE}, s28")
        a(f"v_not_b32 {t1}, {vT}")
        a(f"v_and_b32 {t1}, 1, {t1}")
        a(f"v_lshlrev_b32 {t1}, 8, {t1}")
        a(f"v_and_b32 {vT}, 0xfffffeff, {vT}")
        a(f"v_or_b32 {vT}, {vT}, {t1}")
    def tag_insert(base, vT):
        for i in range(4): a(f"v_perm_b32 v{base+i}, v{base+i}, {vT}, s{40+i}")
    def tag_check(base, vT, vacc, t1, t2, first):
        a(f"v_perm_b32 {t1}, v{base+1}, v{base}, s44")
        a(f"v_perm_b32 {t2}, v{base+3}, v{base+2}, s45")
        if first:
            a(f"v_bitop3_b32 {vacc}, {t1}, {t2}, {vT} bitop3:0x56")
        else:
            a(f"v_bitop3_b32 {t1}, {t1}, {t2}, {vT} bitop3:0x56")
            a(f"v_or_b32 {vacc}, {vacc}, {t1}")
    def tag_strip(base):
        for i in range(4): a(f"v_and_b32 v{base+i}, s46, v{base+i}")
    def poll_loop(issue, check, vacc, sleep=0, pmax=None):
        L = lab("poll"); D = lab("polld")
        a("s_mov_b32 s30, 0")
        a.label(L)
        issue()
        a("s_waitcnt vmcnt(0)")
        check()
        a(f"v_cmp_ne_u32 vcc, 0, {vacc}")
        a(f"s_cbranch_vccz {D}")
        if cfg.masked: a("s_mov_b64 exec, vcc")
        if sleep: a(f"s_sleep {sleep}")
        a("s_add_u32 s30, s30, 1")
        a(f"s_cmp_lt_u32 s30, {pmax if pmax else cfg.spin_max}")
        a(f"s_cbranch_scc1 {L}")
        a.label(D)
        if cfg.masked: a("s_mov_b64 exec, -1")

    a.raw(f"{KNAME}:")
    a("s_cmp_ge_u32 s2, 256")
    a("s_cbranch_scc1 L_end")
    if cfg.dbgout or cfg.stamps:
        for i in range(1, 16): a(f"s_mov_b32 s{64+2*i}, 0")
    stamp(0)
    a("s_load_dwordx16 s[4:19], s[0:1], 0")
    a("s_load_dwordx8 s[20:27], s[0:1], 64")
    a("v_lshrrev_b32 v2, 6, v0")
    a("v_and_b32 v1, 63, v0")
    a("v_readfirstlane_b32 s3, v2")
    a("s_getpc_b64 s[28:29]")
    a.label("L_pc")
    a("s_add_u32 s28, s28, L_roles-L_pc"); a("s_addc_u32 s29, s29, 0")
    a("s_lshl_b32 s30, s2, 2")
    a("s_load_dword s101, s[28:29], s30")
    if cfg.code_pf:
        Lpf = lab("nopf")
        a(f"s_cmp_lg_u32 s3, {cfg.code_pf_wave}"); a(f"s_cbranch_scc1 {Lpf}")
        a("s_getpc_b64 s[30:31]")
        a.label("L_pf")
        a("v_lshlrev_b32 v3, 7, v1")
        for k in range(cfg.code_pf):
            a("v_min_u32 v4, L_roles+1020-L_pf, v3")
            a(f"global_load_dword v167, v4, s[30:31]")
            if k < cfg.code_pf - 1: a("v_add_u32 v3, 0x2000, v3")
        a.label(Lpf)
    a("v_and_b32 v3, 7, v1")
    a("v_and_b32 v4, 1, v3"); a("v_lshlrev_b32 v4, 4, v4"); a("v_mov_b32 v5, 0xffff"); a("v_lshlrev_b32 v4, v4, v5")
    a("v_lshrrev_b32 v3, 1, v3")
    for w in range(4):
        a(f"v_cmp_eq_u32 vcc, {w}, v3"); a(f"v_cndmask_b32 v{12+w}, 0, v4, vcc")
    a(f"v_mov_b32 v10, {LDS_C}")
    a("v_mov_b32 v11, 1")
    tag_consts()
    Lni = lab("noinit")
    a("s_cmp_lg_u32 s3, 0"); a(f"s_cbranch_scc1 {Lni}")
    a("v_lshlrev_b32 v3, 2, v1"); a(f"v_add_u32 v3, {LDS_C}, v3"); a("v_mov_b32 v4, 0")
    set_exec(0xffff, 0); a("ds_write_b32 v3, v4"); a("s_mov_b64 exec, -1")
    a.label(Lni)
    a("s_cmp_ge_u32 s3, 8"); a("s_cbranch_scc1 L_wts")

    vE, vT = "v16", "v17"
    vKA = [2, 3, 4, 5]; vVA = 6; vKR = [7, 8, 9, 18]; vQA = 19
    QB = 20; SB = 36; KF = 52; ACC = 84; BT = 88; VB = 96; TM = 160
    a(f"s_setprio {cfg.prio_k}")
    a("v_lshrrev_b32 v20, 4, v1"); a("v_and_b32 v21, 15, v1")
    a("v_lshlrev_b32 v22, 2, v20"); a("v_lshlrev_b32 v23, 8, v20")
    for r in range(4):
        a(f"v_add_u32 v24, {r}, v22"); a("v_xor_b32 v24, v24, v21"); a(f"v_lshl_add_u32 v{vKA[r]}, v24, 4, v23")
    a(f"v_lshlrev_b32 v{vVA}, 4, v1")
    a("v_lshrrev_b32 v22, 2, v21"); a("v_and_b32 v23, 3, v21")
    a("v_lshl_add_u32 v24, v23, 2, v22"); a("v_lshlrev_b32 v24, 8, v24")
    a("v_xor_b32 v25, v23, v20")
    a("s_lshl_b32 s28, s3, 14"); a("v_add_u32 v24, s28, v24")
    a("v_lshl_add_u32 v24, v25, 4, v24")
    for jj in range(4):
        a(f"v_xor_b32 v26, {jj}, v22"); a(f"v_lshl_add_u32 v{vKR[jj]}, v26, 6, v24")
    a("v_lshrrev_b32 v22, 3, v1"); a("v_and_b32 v22, 1, v22"); a("v_lshlrev_b32 v22, 8, v22")
    a(f"v_lshl_add_u32 v{vQA}, v20, 4, v22"); a(f"v_add_u32 v{vQA}, {LDS_Q}, v{vQA}")
    a(f"v_mov_b32 v{TM}, 0")
    a("s_waitcnt lgkmcnt(0)")
    a("s_and_b32 s96, s101, 0xff"); a("s_bfe_u32 s97, s101, 0x80008"); a("s_bfe_u32 s98, s101, 0x80010"); a("s_lshr_b32 s101, s101, 24")
    if cfg.tilemap == "cu":
        a("s_lshr_b32 s28, s96, 3"); a("s_and_b32 s29, s96, 7")
        a("s_lshl_b32 s28, s28, 23"); a("s_lshl_b32 s29, s29, 17"); a("s_add_u32 s28, s28, s29"); a("s_add_u32 s28, s28, 0x700000")
        a(f"s_mul_i32 s31, s96, {cfg.rot}"); a("s_add_u32 s31, s31, s3")
    else:
        a("s_lshr_b32 s29, s96, 3"); a("s_lshl_b32 s28, s29, 23"); a("s_add_u32 s28, s28, 0x700000")
        a(f"s_mul_i32 s31, s29, {cfg.rot}"); a("s_and_b32 s29, s96, 7")
        if cfg.tilemap == "pair":
            a("s_lshl_b32 s29, s29, 3"); a("s_add_u32 s31, s31, s29"); a("s_add_u32 s31, s31, s3")
        elif cfg.tilemap == "pair2":
            a("s_add_u32 s31, s31, s29"); a("s_lshl_b32 s29, s3, 3"); a("s_add_u32 s31, s31, s29")
    a("s_add_u32 s6, s6, s28"); a("s_addc_u32 s7, s7, 0"); a("s_add_u32 s8, s8, s28"); a("s_addc_u32 s9, s9, 0")
    a("s_lshl_b32 s37, s3, 14")
    if cfg.wtab:
        packed = sum(w << (4*i) for i, w in enumerate(cfg.wtab))
        a("s_getreg_b32 s100, hwreg(HW_REG_XCC_ID, 0, 3)"); a("s_lshl_b32 s100, s100, 2")
        a(f"s_lshr_b32 s100, {hex(packed)}, s100"); a("s_and_b32 s100, s100, 15")
    vmq = []
    def vm_issue(tag): vmq.append(tag)
    def vm_wait(tag):
        idx = max(i for i, t in enumerate(vmq) if t == tag)
        n = len(vmq) - 1 - idx
        a(f"s_waitcnt vmcnt({n})")
    def vm_window(W):
        if not cfg.wtab:
            a(f"s_waitcnt vmcnt({W-1})"); return
        lo, hi = min(cfg.wtab), max(cfg.wtab)
        D = lab("win")
        for w in range(hi, lo - 1, -1):
            a(f"s_waitcnt vmcnt({w-1})")
            if w > lo:
                a(f"s_cmp_ge_u32 s100, {w}"); a(f"s_cbranch_scc1 {D}")
        a.label(D)
    if cfg.bar_first:
        a("s_barrier")
    if cfg.emode == "s": a("s_load_dword s99, s[26:27], 0")
    else:
        a(f"global_load_dword {vE}, v{TM}, s[26:27]" + (" sc1" if cfg.emode == "sc1" else "")); vm_issue("E")
    def tile_off(u):
        if cfg.tilemap == "cu":
            a(f"s_add_u32 s32, s31, {8*u}"); a("s_and_b32 s32, s32, 31"); a("s_lshl_b32 s32, s32, 12")
        else:
            a(f"s_add_u32 s32, s31, {64*u}"); a("s_and_b32 s32, s32, 255"); a("s_lshl_b32 s32, s32, 12")
    nissued = [1]
    def issue_k(u, r):
        if r == 0:
            tile_off(u)
            a("s_add_u32 s34, s6, s32"); a("s_addc_u32 s35, s7, 0")
            a(f"s_add_u32 s33, s37, {4096*u}"); a("s_mov_b32 m0, s33")
        a(f"global_load_lds_dwordx4 v{vKA[r]}, s[34:35] offset:{1024*r}{NT}"); vm_issue(("k", u, r))
    def issue_v(i):
        u, r = divmod(i, 4)
        if r == 0:
            tile_off(u)
            a("s_add_u32 s38, s8, s32"); a("s_addc_u32 s39, s9, 0")
        a(f"global_load_dwordx4 v[{VB+4*i}:{VB+4*i+3}], v{vVA}, s[38:39] offset:{1024*r}{NT}"); vm_issue(("v", i))
        if cfg.trig_c is None and i == cfg.trig - 1:
            arrive(C_V, "v10", "v11")
        if i == cfg.v2_at:
            a(f"s_setprio {cfg.prio_v2}")
    kops = [(u, r) for u in range(4) for r in range(4)]
    bar_done = False
    for i, (u, r) in enumerate(kops):
        if i >= (min(cfg.wtab) if cfg.wtab else cfg.Wk): vm_window(cfg.Wk)
        if r == 0 and u > 0: stamp(6 + u)
        issue_k(u, r)
        if i == (cfg.bar_at if cfg.bar_at else (min(cfg.wtab) if cfg.wtab else cfg.Wk)) - 1 and not cfg.bar_first:
            a("s_waitcnt lgkmcnt(0)"); a("s_barrier")
    stamp(1)
    a(f"s_setprio {cfg.prio_v1}")
    nv = 0
    while nv < cfg.qk_at:
        vm_window(cfg.Wk if nv < cfg.Wk else cfg.Wv); issue_v(nv); nv += 1
    vm_wait(("k", 3, 3))
    for i in range(cfg.extra):
        if nv < 16: issue_v(nv); nv += 1
    stamp(2)
    if cfg.emode == "s": a("s_waitcnt lgkmcnt(0)"); a(f"v_mov_b32 {vE}, s99")
    make_tag(vE, vT, f"v{TM}")
    if not cfg.skip_qk:
        spin_lds(C_Q, 1 if cfg.q2 else 4, "v10", f"v{TM}")
        stamp(3)
        for jj in range(4):
            a(f"ds_read_b128 v[{QB+4*jj}:{QB+4*jj+3}], v{vQA} offset:{64*jj}")
        def kread(u):
            b = KF + 16*(u & 1)
            for jj in range(4):
                a(f"ds_read_b128 v[{b+4*jj}:{b+4*jj+3}], v{vKR[jj]} offset:{4096*u}")
        kread(0); kread(1)
        for u in range(4):
            b = KF + 16*(u & 1)
            a("s_waitcnt lgkmcnt(4)" if u < 3 else "s_waitcnt lgkmcnt(0)")
            for jj in range(4):
                c = "0" if jj == 0 else f"v[{SB+4*u}:{SB+4*u+3}]"
                a(f"v_mfma_f32_16x16x32_bf16 v[{SB+4*u}:{SB+4*u+3}], v[{b+4*jj}:{b+4*jj+3}], v[{QB+4*jj}:{QB+4*jj+3}], {c}")
            if u + 2 < 4: kread(u + 2)
        nvb = [nv]
        def vpoint(k):
            for _ in range(cfg.v_pts.count(k)):
                if nvb[0] < 16:
                    a(f"s_waitcnt vmcnt({cfg.Wq-1})"); issue_v(nvb[0]); nvb[0] += 1
        vpoint(1)
        a(f"s_mov_b32 s47, {hex(SCALE)}")
        for u in range(4):
            if u == 2: vpoint(2)
            for h in range(2):
                s0 = SB + 4*u + 2*h
                t = TM + 2*h
                a(f"v_cvt_pk_bf16_f32 v{t}, v{s0}, v{s0+1}")
                a(f"v_lshlrev_b32 v{s0}, 16, v{t}")
                a(f"v_and_b32 v{s0+1}, 0xffff0000, v{t}")
                a(f"v_mul_f32 v{s0}, s47, v{s0}")
                a(f"v_mul_f32 v{s0+1}, s47, v{s0+1}")
                a(f"v_cvt_pk_bf16_f32 v{t+1}, v{s0}, v{s0+1}")
                a(f"v_lshlrev_b32 v{s0}, 16, v{t+1}")
                a(f"v_and_b32 v{s0+1}, 0xffff0000, v{t+1}")
        vpoint(3)
        a(f"v_max3_f32 v{TM}, v{SB}, v{SB+1}, v{SB+2}")
        a(f"v_max3_f32 v{TM+1}, v{SB+3}, v{SB+4}, v{SB+5}")
        a(f"v_max3_f32 v{TM+2}, v{SB+6}, v{SB+7}, v{SB+8}")
        a(f"v_max3_f32 v{TM+3}, v{SB+9}, v{SB+10}, v{SB+11}")
        a(f"v_max3_f32 v{TM}, v{TM}, v{SB+12}, v{SB+13}")
        a(f"v_max3_f32 v{TM+1}, v{TM+1}, v{SB+14}, v{SB+15}")
        a(f"v_max3_f32 v{TM}, v{TM}, v{TM+1}, v{TM+2}")
        a(f"v_max_f32 v{TM}, v{TM}, v{TM+3}")
        allreduce_x16_x32("v_max_f32", [f"v{TM}"], [f"v{TM+1}"])
        a(f"v_mov_b32 v22, v{TM}")
        a("v_lshrrev_b32 v20, 3, v1"); a("v_and_b32 v20, 1, v20"); a("v_lshlrev_b32 v20, 5, v20")
        a(f"v_add_u32 v20, {LDS_M}, v20")
        a("s_lshl_b32 s28, s3, 2"); a("v_add_u32 v21, s28, v20")
        a(f"s_mov_b32 s48, {hex(LOG2E)}")
        a("v_mul_f32 v23, s48, v22")
        vpoint(4)
        for i in range(16):
            a(f"v_fma_f32 v{SB+i}, v{SB+i}, s48, -v23")
        for i in range(16):
            a(f"v_exp_f32 v{SB+i}, v{SB+i}")
        vpoint(5)
        a(f"v_add_f32 v24, v{SB}, v{SB+1}"); a(f"v_add_f32 v25, v{SB+2}, v{SB+3}")
        for i in range(4, 16, 2):
            t = 24 + ((i >> 1) & 1)
            a(f"v_add_f32 v{t}, v{t}, v{SB+i}")
            a(f"v_add_f32 v{t}, v{t}, v{SB+i+1}")
        a(f"v_add_f32 v24, v24, v25")
        for i in range(16):
            a(f"v_cvt_pk_bf16_f32 v{SB+i}, v{SB+i}, v{SB+i}")
        vpoint(6)
        nv = nvb[0]
        stamp(4)
    else:
        a("v_mov_b32 v22, 0"); a("v_mov_b32 v24, 0"); a(f"s_mov_b32 s48, {hex(LOG2E)}")
        a("v_lshrrev_b32 v20, 3, v1"); a("v_and_b32 v20, 1, v20"); a("v_lshlrev_b32 v20, 5, v20")
        a(f"v_add_u32 v20, {LDS_M}, v20"); a("s_lshl_b32 s28, s3, 2"); a("v_add_u32 v21, s28, v20")
    def publish_ml():
        allreduce_x16_x32("v_add_f32", ["v24"], ["v25"])
        set_exec(0x101, 0); a("ds_write_b32 v21, v22"); a("ds_write_b32 v21, v24 offset:64"); a("s_mov_b64 exec, -1")
        if cfg.ml_w3:
            arrive(C_L, "v10", "v11")
            return
        arrive_rtn(C_L, "v10", "v11", f"v{TM+1}", "s49")
        Lnoml = lab("noml")
        a("s_cmp_lg_u32 s49, 7"); a(f"s_cbranch_scc1 {Lnoml}")
        a(f"ds_read_b128 v[{KF}:{KF+3}], v20"); a(f"ds_read_b128 v[{KF+4}:{KF+7}], v20 offset:16")
        a(f"ds_read_b128 v[{KF+8}:{KF+11}], v20 offset:64"); a(f"ds_read_b128 v[{KF+12}:{KF+15}], v20 offset:80")
        a("s_waitcnt lgkmcnt(0)")
        a(f"v_max3_f32 v26, v{KF}, v{KF+1}, v{KF+2}"); a(f"v_max3_f32 v27, v{KF+3}, v{KF+4}, v{KF+5}")
        a(f"v_max3_f32 v26, v26, v{KF+6}, v{KF+7}"); a("v_max_f32 v26, v26, v27")
        for w in range(8): a(f"v_sub_f32 v{KF+w}, v{KF+w}, v26")
        for w in range(8): a(f"v_mul_f32 v{KF+w}, s48, v{KF+w}")
        for w in range(8): a(f"v_exp_f32 v{KF+w}, v{KF+w}")
        for w in range(8): a(f"v_mul_f32 v{KF+w}, v{KF+w}, v{KF+8+w}")
        a(f"v_add_f32 v{KF}, v{KF}, v{KF+1}"); a(f"v_add_f32 v{KF+2}, v{KF+2}, v{KF+3}")
        a(f"v_add_f32 v{KF+4}, v{KF+4}, v{KF+5}"); a(f"v_add_f32 v{KF+6}, v{KF+6}, v{KF+7}")
        a(f"v_add_f32 v{KF}, v{KF}, v{KF+2}"); a(f"v_add_f32 v{KF+4}, v{KF+4}, v{KF+6}")
        a(f"v_add_f32 v{KF+1}, v{KF}, v{KF+4}")
        a("s_getreg_b32 s50, hwreg(HW_REG_XCC_ID, 0, 4)"); a("s_lshl_b32 s50, s50, 8")
        a(f"v_mov_b32 v{KF}, v26"); a(f"v_mov_b32 v{KF+2}, s50"); a(f"v_mov_b32 v{KF+3}, 0")
        tag_insert(KF, vT)
        a("s_lshr_b32 s28, s96, 3"); a("s_and_b32 s29, s28, 15"); a("s_lshr_b32 s28, s28, 4")
        a("s_lshl_b32 s29, s29, 9"); a("s_lshl_b32 s28, s28, 7"); a("s_add_u32 s28, s28, s29")
        a("s_and_b32 s29, s96, 7"); a("s_lshl_b32 s29, s29, 4"); a("s_add_u32 s28, s28, s29"); a(f"s_add_u32 s28, s28, {WS_ML}")
        a("v_lshrrev_b32 v27, 3, v1"); a("v_and_b32 v27, 1, v27"); a("v_lshlrev_b32 v27, 8, v27"); a("v_add_u32 v27, s28, v27")
        set_exec(0x101, 0)
        a(f"global_store_dwordx4 v27, v[{KF}:{KF+3}], s[26:27] sc1")
        a("s_mov_b64 exec, -1")
        a.label(Lnoml)
    def wave_factor():
        spin_lds(C_L, 8, "v10", f"v{TM}")
        a(f"ds_read_b128 v[{KF}:{KF+3}], v20"); a(f"ds_read_b128 v[{KF+4}:{KF+7}], v20 offset:16")
        a("v_lshrrev_b32 v28, 4, v1"); a("v_lshlrev_b32 v28, 7, v28")
        a("v_lshrrev_b32 v29, 3, v1"); a("v_and_b32 v29, 1, v29"); a("v_lshl_add_u32 v28, v29, 9, v28")
        a("v_and_b32 v29, 7, v1"); a("v_lshl_add_u32 v28, v29, 4, v28")
        a("s_lshl_b32 s28, s96, 10"); a(f"s_add_u32 s28, s28, {WS_OB}"); a("v_add_u32 v28, s28, v28")
        a("s_lshl_b32 s28, s3, 10"); a(f"s_add_u32 s28, s28, {LDS_R2}"); a(f"v_add_u32 v29, s28, v{vVA}")
        a(f"v_add_u32 v30, {LDS_R2}, v{vVA}")
        a(f"v_add_u32 v31, {WS_OBL-WS_OB}, v28")
        a("s_waitcnt lgkmcnt(0)")
        a(f"v_max3_f32 v26, v{KF}, v{KF+1}, v{KF+2}"); a(f"v_max3_f32 v27, v{KF+3}, v{KF+4}, v{KF+5}")
        a(f"v_max3_f32 v26, v26, v{KF+6}, v{KF+7}"); a("v_max_f32 v26, v26, v27")
        a("v_sub_f32 v26, v22, v26"); a("v_mul_f32 v26, s48, v26"); a("v_exp_f32 v26, v26")
    did_factor = False
    for i in range(16):
        bt = BT + 4*(i & 1)
        for w in range(4):
            a(f"v_and_b32 v{bt+w}, v{SB+i}, v{12+w}")
        vm_wait(("v", i))
        c = "0" if i == 0 else f"v[{ACC}:{ACC+3}]"
        a(f"v_mfma_f32_16x16x32_bf16 v[{ACC}:{ACC+3}], v[{VB+4*i}:{VB+4*i+3}], v[{bt}:{bt+3}], {c}")
        if i % 4 == 3 and i < 15: stamp(10 + i // 4)
        while nv < 16 and nv - (i + 1) < cfg.Wv:
            issue_v(nv); nv += 1
        if cfg.trig_c is not None and i == cfg.trig_c:
            arrive(C_V, "v10", "v11")
        if i == cfg.ml_at:
            publish_ml()
        if nv == 16 and not did_factor and i > cfg.ml_at and i >= cfg.fac_at:
            wave_factor(); did_factor = True
            a(f"s_setprio {cfg.prio_tail}")
    stamp(5)
    for e in range(4): a(f"v_mul_f32 v{ACC+e}, v{ACC+e}, v26")
    a(f"ds_write_b128 v29, v[{ACC}:{ACC+3}]")
    arrive_rtn(C_O, "v10", "v11", f"v{TM}", "s49")
    a("s_cmp_lg_u32 s49, 7"); a("s_cbranch_scc1 L_att_done")
    for w in range(8):
        a(f"ds_read_b128 v[{KF+4*w}:{KF+4*w+3}], v30 offset:{1024*w}")
    def pk(d, x, y): a(f"v_pk_add_f32 v[{d}:{d+1}], v[{x}:{x+1}], v[{y}:{y+1}]")
    a("s_waitcnt lgkmcnt(6)")
    for e in (0, 2): pk(KF+e, KF+e, KF+4+e)
    a("s_waitcnt lgkmcnt(4)")
    for e in (0, 2): pk(KF+8+e, KF+8+e, KF+12+e)
    a("s_waitcnt lgkmcnt(2)")
    for e in (0, 2): pk(KF+16+e, KF+16+e, KF+20+e)
    for e in (0, 2): pk(KF+e, KF+e, KF+8+e)
    a("s_waitcnt lgkmcnt(0)")
    for e in (0, 2): pk(KF+24+e, KF+24+e, KF+28+e)
    for e in (0, 2): pk(KF+16+e, KF+16+e, KF+24+e)
    for e in (0, 2): pk(KF+e, KF+e, KF+16+e)
    tag_insert(KF, vT)
    if cfg.local_o:
        a(f"global_store_dwordx4 v31, v[{KF}:{KF+3}], s[26:27]")
    a(f"global_store_dwordx4 v28, v[{KF}:{KF+3}], s[26:27] sc1")
    if cfg.dn_k:
        a("s_lshr_b32 s28, s96, 3"); a("s_and_b32 s29, s28, 15"); a("s_lshr_b32 s28, s28, 4")
        a("s_lshl_b32 s29, s29, 8"); a("s_lshl_b32 s28, s28, 7"); a("s_add_u32 s28, s28, s29")
        a("s_and_b32 s29, s96, 7"); a("s_lshl_b32 s29, s29, 4"); a("s_add_u32 s28, s28, s29"); a(f"s_add_u32 s28, s28, {WS_DN}")
        a("v_mov_b32 v20, s28")
        for e in range(4): a(f"v_mov_b32 v{KF+4+e}, 0")
        tag_insert(KF + 4, vT)
        a("s_mov_b64 exec, 1")
        a(f"global_store_dwordx4 v20, v[{KF+4}:{KF+7}], s[26:27] sc1")
        a("s_mov_b64 exec, -1")
    a.label("L_att_done")
    stamp(6)
    dump_stamps(8)
    a("s_endpgm")

    a.label("L_wts")
    a(f"s_setprio {cfg.prio_w}")
    a("s_sub_u32 s36, s3, 8")
    XR = 20; EX = 30; WQD = 48; FD = 68; AC = 116; BB = 140; TP = 148; TM = 160
    a("v_lshrrev_b32 v6, 3, v1"); a("v_and_b32 v7, 7, v1"); a("v_lshlrev_b32 v7, 4, v7")
    a("v_lshl_add_u32 v2, v6, 13, v7")
    a("s_movk_i32 s28, 9216")
    if cfg.f256:
        a("v_lshrrev_b32 v8, 4, v1"); a("v_and_b32 v9, 15, v1"); a("v_lshlrev_b32 v9, 4, v9"); a("v_mad_u32_u24 v3, v8, s28, v9")
    else:
        a("v_mad_u32_u24 v3, v6, s28, v7")
    a("s_movk_i32 s28, 1152"); a("v_mad_u32_u24 v4, v6, s28, v7")
    a("v_lshrrev_b32 v8, 5, v1"); a("v_and_b32 v9, 31, v1")
    a("v_mul_u32_u24 v18, 36, v9"); a("v_mad_u32_u24 v18, v8, s28, v18")
    a(f"v_mov_b32 v{TM}, 0")
    for e in range(4): a(f"v_mov_b32 v{WQD+16+e}, 0")
    a("s_mov_b32 s50, 0x00ff00ff"); a("s_mov_b32 s51, 0xff00ff00")
    a("s_mov_b32 s52, 0xff00ff00"); a("s_mov_b32 s53, 0xff00ff00")
    a("s_mov_b32 s54, 0xffff0000"); a("s_mov_b32 s55, 0xffff0000")
    stamp(11)
    a("s_waitcnt lgkmcnt(0)")
    a("s_and_b32 s96, s101, 0xff"); a("s_bfe_u32 s97, s101, 0x80008"); a("s_bfe_u32 s98, s101, 0x80010"); a("s_lshr_b32 s101, s101, 24")
    stamp(12)
    if cfg.emode != "s":
        a(f"global_load_dword v16, v{TM}, s[26:27]" + (" sc1" if cfg.emode == "sc1" else ""))
    a(f"global_load_dwordx4 v[{XR}:{XR+3}], v18, s[4:5]")
    a(f"global_load_dwordx4 v[{XR+4}:{XR+7}], v18, s[4:5] offset:16")
    a(f"global_load_dword v{XR+8}, v18, s[4:5] offset:32")
    a("s_and_b32 s56, s97, 3"); a("s_lshr_b32 s57, s97, 2")
    a(f"s_mul_i32 s28, s56, {144*8192}"); a("s_lshl_b32 s29, s57, 7"); a("s_add_u32 s28, s28, s29")
    a("s_add_u32 s10, s10, s28"); a("s_addc_u32 s11, s11, 0")
    a("s_lshl_b32 s28, s36, 16"); a("s_add_u32 s32, s10, s28"); a("s_addc_u32 s33, s11, 0")
    for i in range(4):
        a(f"global_load_dwordx4 v[{WQD+4*i}:{WQD+4*i+3}], v2, s[32:33]{NT}")
        if i < 3:
            a(f"s_add_u32 s32, s32, {32*8192}"); a("s_addc_u32 s33, s33, 0")
    a("s_lshl_b32 s28, s36, 15"); a(f"s_add_u32 s28, s28, {128*8192}")
    a("s_add_u32 s32, s10, s28"); a("s_addc_u32 s33, s11, 0")
    set_exec(0xffffffff, 0)
    a(f"global_load_dwordx4 v[{WQD+16}:{WQD+19}], v2, s[32:33]{NT}")
    a("s_mov_b64 exec, -1")
    stamp(13)
    a("s_waitcnt lgkmcnt(0)"); a("s_barrier")
    if cfg.emode == "s": a("s_load_dword s99, s[26:27], 0")
    stamp(1)
    if cfg.f256:
        a("s_cmp_ge_u32 s98, 108"); a("s_cselect_b32 s28, 108, 0")
        a("s_cselect_b32 s16, s18, s16"); a("s_cselect_b32 s17, s19, s17")
        a("s_sub_u32 s29, s98, s28")
        a("s_mul_hi_u32 s58, s29, 0x55555556"); a("s_mul_i32 s59, s58, 3"); a("s_sub_u32 s59, s29, s59")
        a(f"s_mul_i32 s28, s59, {192*9216}"); a("s_min_u32 s29, s58, 35"); a("s_lshl_b32 s29, s29, 8"); a("s_add_u32 s28, s28, s29")
        a(f"s_mul_i32 s29, s36, {4*9216}"); a("s_add_u32 s28, s28, s29")
        a("s_add_u32 s16, s16, s28"); a("s_addc_u32 s17, s17, 0")
        def ffn_issue(i0_, i1_):
            for i in range(2*i0_, 2*i1_):
                a(f"global_load_dwordx4 v[{FD+4*i}:{FD+4*i+3}], v3, s[16:17]{NT}")
                if i < 11:
                    a(f"s_add_u32 s16, s16, {16*9216}"); a("s_addc_u32 s17, s17, 0")
    else:
        a("s_mul_hi_u32 s58, s98, 0x55555556"); a("s_mul_i32 s59, s58, 3"); a("s_sub_u32 s59, s98, s59")
        a(f"s_mul_i32 s28, s59, {192*9216}"); a("s_min_u32 s29, s58, 71"); a("s_lshl_b32 s29, s29, 7"); a("s_add_u32 s28, s28, s29")
        a(f"s_mul_i32 s29, s36, {8*9216}"); a("s_add_u32 s28, s28, s29")
        a("s_add_u32 s16, s16, s28"); a("s_addc_u32 s17, s17, 0"); a("s_add_u32 s18, s18, s28"); a("s_addc_u32 s19, s19, 0")
        def ffn_issue(i0_, i1_):
            for i in range(i0_, i1_):
                a(f"global_load_dwordx4 v[{FD+8*i}:{FD+8*i+3}], v3, s[16:17]{NT}")
                a(f"global_load_dwordx4 v[{FD+8*i+4}:{FD+8*i+7}], v3, s[18:19]{NT}")
                if i < 5:
                    a(f"s_add_u32 s16, s16, {32*9216}"); a("s_addc_u32 s17, s17, 0"); a(f"s_add_u32 s18, s18, {32*9216}"); a("s_addc_u32 s19, s19, 0")
    def heavy_wait(n_light, n_extra):
        L1 = lab("hw"); L2 = lab("hwd")
        a("s_cmp_ge_u32 s98, 216"); a(f"s_cbranch_scc1 {L1}")
        a(f"s_waitcnt vmcnt({n_light+n_extra})"); a(f"s_branch {L2}")
        a.label(L1); a(f"s_waitcnt vmcnt({n_light})"); a.label(L2)
    if cfg.ffn_pos == "start":
        assert cfg.ffn1 == 6
        Ls = lab("ffs")
        a("s_cmp_ge_u32 s98, 216"); a(f"s_cbranch_scc1 {Ls}")
        ffn_issue(0, 6)
        a.label(Ls)
    a("v_lshrrev_b32 v6, 3, v1"); a("v_and_b32 v6, 1, v6")
    a("v_lshrrev_b32 v7, 4, v1")
    a("s_movk_i32 s28, 2304"); a("v_mul_u32_u24 v5, 0x900, v6")
    a(f"v_add_u32 v5, {LDS_T}, v5")
    a("v_and_b32 v19, 1, v7"); a("v_lshl_add_u32 v19, v19, 3, v5")
    a("v_lshl_add_u32 v5, v7, 3, v5")
    a("v_mul_u32_u24 v6, 72, v9"); a("v_mul_u32_u24 v7, 0x900, v8"); a("v_add_u32 v6, v6, v7"); a(f"v_add_u32 v6, {LDS_T}, v6")
    a("v_lshl_add_u32 v7, v8, 2, v6")
    a("v_xor_b32 v8, 1, v8"); a("v_lshl_add_u32 v8, v8, 2, v6")
    if cfg.ffn_pos == "start": heavy_wait(5, 12)
    else: a("s_waitcnt vmcnt(5)")
    stamp(2)
    for k in range(9):
        a(f"v_lshlrev_b32 v{EX+2*k}, 16, v{XR+k}"); a(f"v_and_b32 v{EX+2*k+1}, 0xffff0000, v{XR+k}")
    a(f"v_add_f32 v{TM}, v{EX}, v{EX+1}"); a(f"v_add_f32 v{TM+1}, v{EX+2}, v{EX+3}")
    for k in range(4, 18, 2):
        t = TM + ((k >> 1) & 1)
        a(f"v_add_f32 v{t}, v{t}, v{EX+k}"); a(f"v_add_f32 v{t}, v{t}, v{EX+k+1}")
    a(f"v_add_f32 v{TM}, v{TM}, v{TM+1}")
    def allreduce32(r, t):
        allreduce8("v_add_f32", [r])
        a(f"v_add_f32_dpp {r}, {r}, {r} row_mirror {DPP}")
        a(f"v_mov_b32 {t}, {r}"); a(f"v_permlane16_swap_b32 {r}, {t}"); a(f"v_add_f32 {r}, {r}, {t}")
    allreduce32(f"v{TM}", f"v{TM+1}")
    a(f"v_mul_f32 v{TM}, 0x3ae38e39, v{TM}")
    a(f"v_sub_f32 v{TM+2}, v{EX}, v{TM}"); a(f"v_mul_f32 v{TM+1}, v{TM+2}, v{TM+2}")
    a(f"v_sub_f32 v{TM+3}, v{EX+1}, v{TM}"); a(f"v_mul_f32 v{TM+4}, v{TM+3}, v{TM+3}")
    for k in range(2, 18, 2):
        a(f"v_sub_f32 v{TM+2}, v{EX+k}, v{TM}"); a(f"v_sub_f32 v{TM+3}, v{EX+k+1}, v{TM}")
        a(f"v_fmac_f32 v{TM+1}, v{TM+2}, v{TM+2}"); a(f"v_fmac_f32 v{TM+4}, v{TM+3}, v{TM+3}")
    a(f"v_add_f32 v{TM+1}, v{TM+1}, v{TM+4}")
    allreduce32(f"v{TM+1}", f"v{TM+2}")
    a(f"v_mul_f32 v{TM+1}, 0x3ae38e39, v{TM+1}")
    a(f"v_cvt_pk_bf16_f32 v{TM}, v{TM}, v{TM+1}")
    a(f"v_and_b32 v{TM+1}, 0xffff0000, v{TM}")
    a(f"v_lshlrev_b32 v{TM}, 16, v{TM}")
    a(f"v_add_f32 v{TM+1}, 0x3727c5ac, v{TM+1}")
    a(f"v_cvt_pk_bf16_f32 v{TM+1}, v{TM+1}, v{TM+1}"); a(f"v_and_b32 v{TM+1}, 0xffff0000, v{TM+1}")
    a(f"v_sqrt_f32 v{TM+1}, v{TM+1}")
    a(f"v_cvt_pk_bf16_f32 v{TM+1}, v{TM+1}, v{TM+1}"); a(f"v_and_b32 v{TM+1}, 0xffff0000, v{TM+1}")
    a(f"v_rcp_f32 v{TM+2}, v{TM+1}")
    for k in range(9):
        e0, e1 = EX + 2*k, EX + 2*k + 1
        a(f"v_sub_f32 v{e0}, v{e0}, v{TM}"); a(f"v_sub_f32 v{e1}, v{e1}, v{TM}")
        a(f"v_cvt_pk_bf16_f32 v{TM+3}, v{e0}, v{e1}")
        a(f"v_lshlrev_b32 v{e0}, 16, v{TM+3}"); a(f"v_and_b32 v{e1}, 0xffff0000, v{TM+3}")
        a(f"v_mul_f32 v{TM+4}, v{e0}, v{TM+2}"); a(f"v_mul_f32 v{TM+5}, v{e1}, v{TM+2}")
        a(f"v_fma_f32 v{e0}, -v{TM+4}, v{TM+1}, v{e0}"); a(f"v_fma_f32 v{e1}, -v{TM+5}, v{TM+1}, v{e1}")
        a(f"v_fmac_f32 v{TM+4}, v{e0}, v{TM+2}"); a(f"v_fmac_f32 v{TM+5}, v{e1}, v{TM+2}")
        a(f"v_cvt_pk_bf16_f32 v{e0}, v{TM+4}, v{TM+4}"); a(f"v_cvt_pk_bf16_f32 v{e1}, v{TM+5}, v{TM+5}")
        a(f"ds_write_b32 v7, v{e0} offset:{8*k}"); a(f"ds_write_b32 v8, v{e1} offset:{8*k}")
    if cfg.emode == "s": a("s_waitcnt lgkmcnt(0)"); a("v_mov_b32 v16, s99")
    make_tag("v16", "v17", f"v{TM}")
    stamp(3)
    def gemv_unit(dreg_list, pair, accs, first):
        for w in range(4): a(f"v_and_b32 v{BB+w}, v{pair}, v{12+w}")
        for w in range(4): a(f"v_and_b32 v{BB+4+w}, v{pair+1}, v{12+w}")
        for d, (d1, d2) in zip(dreg_list, accs):
            c1 = "0" if first else f"v[{d1}:{d1+3}]"; c2 = "0" if first else f"v[{d2}:{d2+3}]"
            a(f"v_mfma_f32_16x16x32_bf16 v[{d1}:{d1+3}], v[{d}:{d+3}], v[{BB}:{BB+3}], {c1}")
            a(f"v_mfma_f32_16x16x32_bf16 v[{d2}:{d2+3}], v[{d}:{d+3}], v[{BB+4}:{BB+7}], {c2}")
    def zsel(d1, d2):
        for e in range(4): a(f"v_cndmask_b32_e64 v{d1+e}, v{d2+e}, v{d1+e}, s[50:51]")
    a("s_mul_i32 s28, s56, 576"); a("s_lshl_b32 s29, s36, 5"); a("s_add_u32 s28, s28, s29"); a("v_add_u32 v6, s28, v5")
    for i in range(4): a(f"ds_read_b64 v[{TP+2*i}:{TP+2*i+1}], v6 offset:{128*i}")
    a("s_mul_i32 s28, s56, 576"); a("s_lshl_b32 s29, s36, 4"); a("s_add_u32 s28, s28, s29"); a("s_add_u32 s28, s28, 512"); a("v_add_u32 v6, s28, v19")
    a(f"ds_read_b64 v[{TP+8}:{TP+9}], v6")
    if cfg.ffn_pos == "ln":
        assert cfg.ffn1 == 6
        Ls = lab("ffs")
        a("s_cmp_ge_u32 s98, 216"); a(f"s_cbranch_scc1 {Ls}")
        ffn_issue(0, 6)
        a.label(Ls)
    if cfg.ffn_pos in ("start", "ln"): heavy_wait(0, 12)
    else: a("s_waitcnt vmcnt(0)")
    a("s_waitcnt lgkmcnt(0)")
    for i in range(5):
        gemv_unit([WQD + 4*i], TP + 2*i, [(AC, AC + 4)], i == 0)
    zsel(AC, AC + 4)
    a("v_lshlrev_b32 v18, 4, v1")
    a("s_lshl_b32 s28, s36, 10"); a(f"s_add_u32 s28, s28, {LDS_R1}"); a("v_add_u32 v6, s28, v18")
    a(f"ds_write_b128 v6, v[{AC}:{AC+3}]")
    arrive_rtn(C_WQ, "v10", "v11", f"v{TM}", "s49")
    Lnq = lab("noqpub")
    a("s_cmp_lg_u32 s49, 3"); a(f"s_cbranch_scc1 {Lnq}")
    a("v_and_b32 v6, 31, v1"); a("v_lshlrev_b32 v6, 4, v6"); a("v_lshrrev_b32 v7, 5, v1"); a("v_lshl_add_u32 v6, v7, 3, v6"); a(f"v_add_u32 v6, {LDS_R1}, v6")
    for w in range(4):
        for e in range(2):
            a(f"ds_read_b64 v[{EX+4*w+2*e}:{EX+4*w+2*e+1}], v6 offset:{1024*w+512*e}")
    a("v_lshrrev_b32 v8, 3, v1"); a("v_and_b32 v8, 1, v8"); a("v_lshlrev_b32 v8, 9, v8"); a("v_lshl_add_u32 v8, v7, 8, v8")
    a("v_lshrrev_b32 v9, 4, v1"); a("v_and_b32 v9, 1, v9"); a("v_lshl_add_u32 v8, v9, 7, v8")
    a("v_and_b32 v9, 7, v1"); a("v_lshl_add_u32 v8, v9, 4, v8")
    a("s_lshl_b32 s28, s97, 10"); a(f"s_add_u32 s28, s28, {WS_QB}"); a("v_add_u32 v8, s28, v8")
    a("s_waitcnt lgkmcnt(0)")
    for st in range(4):
        a(f"v_add_f32 v{EX+4*st}, v{EX+4*st}, v{EX+4*st+2}"); a(f"v_add_f32 v{EX+4*st+1}, v{EX+4*st+1}, v{EX+4*st+3}")
    for st in (0, 8):
        a(f"v_add_f32 v{EX+st}, v{EX+st}, v{EX+st+4}"); a(f"v_add_f32 v{EX+st+1}, v{EX+st+1}, v{EX+st+5}")
    a(f"v_add_f32 v{EX}, v{EX}, v{EX+8}"); a(f"v_add_f32 v{EX+2}, v{EX+1}, v{EX+9}")
    a(f"v_mov_b32 v{EX+1}, v16"); a(f"v_mov_b32 v{EX+3}, v16")
    a(f"global_store_dwordx4 v8, v[{EX}:{EX+3}], s[26:27] sc1")
    a.label(Lnq)
    stamp(4)
    Lnf1 = lab("noffn1")
    a("s_cmp_ge_u32 s98, 216"); a(f"s_cbranch_scc1 {Lnf1}")
    if cfg.ffn_pos == "q": ffn_issue(0, cfg.ffn1)
    if cfg.f256:
        a("v_lshrrev_b32 v6, 3, v1"); a("v_and_b32 v6, 1, v6")
        a("v_lshrrev_b32 v7, 4, v1")
        a("v_xor_b32 v8, v7, v6"); a("v_and_b32 v8, 1, v8"); a("v_lshlrev_b32 v8, 2, v8")
        a("v_lshrrev_b32 v7, 1, v7"); a("v_lshl_add_u32 v8, v7, 3, v8")
        a("v_mul_u32_u24 v6, 0x900, v6"); a("v_add_u32 v6, v6, v8")
        a("s_mul_i32 s28, s59, 768"); a("s_lshl_b32 s29, s36, 4"); a("s_add_u32 s28, s28, s29"); a(f"s_add_u32 s28, s28, {LDS_T}")
        a("v_add_u32 v6, s28, v6")
        for i in range(12): a(f"ds_read_b32 v{TP+i}, v6 offset:{64*i}")
    else:
        a("s_mul_i32 s28, s59, 768"); a("s_lshl_b32 s29, s36, 5"); a("s_add_u32 s28, s28, s29"); a("v_add_u32 v6, s28, v5")
        for i in range(6): a(f"ds_read_b64 v[{TP+2*i}:{TP+2*i+1}], v6 offset:{128*i}")
    a("s_waitcnt lgkmcnt(0)")
    if cfg.wait_ffn1: a("s_waitcnt vmcnt(0)")
    a.label(Lnf1)
    a("s_lshr_b32 s28, s96, 3"); a("s_lshr_b32 s60, s28, 4"); a("s_and_b32 s61, s28, 15")
    if cfg.q2:
        Lo = lab("q1o"); Lj = lab("q1j")
        a("s_cmp_lg_u32 s36, 0"); a(f"s_cbranch_scc1 {Lo}")
        a("s_lshl_b32 s28, s57, 12"); a("s_lshr_b32 s29, s56, 1"); a("s_lshl_b32 s29, s29, 9"); a("s_add_u32 s28, s28, s29")
        a("s_and_b32 s29, s56, 1"); a("s_lshl_b32 s29, s29, 7"); a("s_add_u32 s28, s28, s29"); a(f"s_add_u32 s28, s28, {WS_QB}")
        a("v_and_b32 v6, 3, v1"); a("v_lshlrev_b32 v6, 10, v6")
        a("v_lshrrev_b32 v7, 2, v1"); a("v_and_b32 v7, 7, v7"); a("v_lshl_add_u32 v6, v7, 4, v6")
        a("v_lshrrev_b32 v8, 5, v1"); a("v_lshl_add_u32 v6, v8, 8, v6"); a("v_add_u32 v6, s28, v6")
        a("s_lshl_b32 s28, s57, 9"); a("s_lshl_b32 s29, s56, 7"); a("s_add_u32 s28, s28, s29"); a(f"s_add_u32 s28, s28, {WS_QF}")
        a("v_lshl_add_u32 v8, v7, 4, s28")
        G = EX
        def iss():
            a(f"global_load_dwordx4 v[{G}:{G+3}], v6, s[26:27] sc1")
        def chk():
            a(f"v_bitop3_b32 v{TM}, v{G+1}, v{G+3}, v16 bitop3:0x7e")
        Lq0 = lab("q0"); Lq1 = lab("q1"); Lq2 = lab("q2")
        iss()
        a("s_cmp_ge_u32 s98, 216"); a(f"s_cbranch_scc1 {Lq0}")
        ffn_issue(cfg.ffn1, 6)
        a(f"s_waitcnt vmcnt({2*(6-cfg.ffn1)})"); a(f"s_branch {Lq1}")
        a.label(Lq0); a("s_waitcnt vmcnt(0)"); a.label(Lq1)
        chk()
        a(f"v_cmp_ne_u32 vcc, 0, v{TM}")
        a(f"s_cbranch_vccz {Lq2}")
        if cfg.masked: a("s_mov_b64 exec, vcc")
        poll_loop(iss, chk, f"v{TM}", sleep=cfg.sl_q, pmax=cfg.pmax_q)
        a.label(Lq2)
        allreduce_quad("v_add_f32", [f"v{G}", f"v{G+2}"])
        a(f"v_mov_b32 v{G+1}, v{G}"); a(f"v_mov_b32 v{G+3}, v{G+2}")
        a(f"v_permlane32_swap_b32 v{G}, v{G+1}"); a(f"v_permlane32_swap_b32 v{G+2}, v{G+3}")
        for k, r in enumerate((G, G + 2, G + 1, G + 3)):
            a(f"v_cvt_pk_bf16_f32 v{G+4+k}, v{r}, v{r}")
        tag_insert(G + 4, "v17")
        set_exec(0x11111111, 0)
        a(f"global_store_dwordx4 v8, v[{G+4}:{G+7}], s[26:27] sc1")
        a("s_mov_b64 exec, -1")
        a(f"s_branch {Lj}")
        a.label(Lo)
        a("s_cmp_ge_u32 s98, 216"); a(f"s_cbranch_scc1 {Lj}")
        ffn_issue(cfg.ffn1, 6)
        a.label(Lj)
    else:
        a("s_lshr_b32 s28, s96, 3"); a("s_lshr_b32 s60, s28, 4"); a("s_and_b32 s61, s28, 15")
        a("s_lshl_b32 s28, s61, 2"); a("s_add_u32 s28, s28, s36"); a("s_lshl_b32 s28, s28, 12")
        a("s_lshl_b32 s29, s60, 9"); a("s_add_u32 s28, s28, s29"); a(f"s_add_u32 s28, s28, {WS_QB}")
        a("v_and_b32 v6, 3, v1"); a("v_lshlrev_b32 v6, 10, v6")
        a("v_lshrrev_b32 v7, 2, v1"); a("v_and_b32 v7, 7, v7"); a("v_lshl_add_u32 v6, v7, 4, v6")
        a("v_lshrrev_b32 v8, 5, v1"); a("v_lshl_add_u32 v6, v8, 7, v6"); a("v_add_u32 v6, s28, v6")
        G = EX
        def iss():
            a(f"global_load_dwordx4 v[{G}:{G+3}], v6, s[26:27] sc1")
            a(f"global_load_dwordx4 v[{G+4}:{G+7}], v6, s[26:27] offset:256 sc1")
        def chk():
            a(f"v_bitop3_b32 v{TM}, v{G+1}, v{G+3}, v16 bitop3:0x7e")
            a(f"v_bitop3_b32 v{TM+1}, v{G+5}, v{G+7}, v16 bitop3:0x7e")
            a(f"v_or_b32 v{TM}, v{TM}, v{TM+1}")
        if cfg.x_noq:
            Lx = lab("xq")
            a("s_cmp_ge_u32 s98, 216"); a(f"s_cbranch_scc1 {Lx}")
            if cfg.ffn1 < 6: ffn_issue(cfg.ffn1, 6)
            a.label(Lx)
        elif cfg.b2_early and cfg.ffn1 < 6:
            Lq0 = lab("q0"); Lq1 = lab("q1"); Lq2 = lab("q2")
            iss()
            a("s_cmp_ge_u32 s98, 216"); a(f"s_cbranch_scc1 {Lq0}")
            ffn_issue(cfg.ffn1, 6)
            a(f"s_waitcnt vmcnt({2*(6-cfg.ffn1)})"); a(f"s_branch {Lq1}")
            a.label(Lq0); a("s_waitcnt vmcnt(0)"); a.label(Lq1)
            chk()
            a(f"v_cmp_ne_u32 vcc, 0, v{TM}")
            a(f"s_cbranch_vccz {Lq2}")
            if cfg.masked: a("s_mov_b64 exec, vcc")
            poll_loop(iss, chk, f"v{TM}", sleep=cfg.sl_q, pmax=cfg.pmax_q)
            a.label(Lq2)
        else:
            poll_loop(iss, chk, f"v{TM}", sleep=cfg.sl_q, pmax=cfg.pmax_q)
        qv = [G, G + 2, G + 4, G + 6]
        allreduce_quad("v_add_f32", [f"v{r}" for r in qv])
        for r in qv: a(f"v_cvt_pk_bf16_f32 v{r}, v{r}, v{r}")
        a("s_lshr_b32 s28, s36, 1"); a("s_lshl_b32 s28, s28, 8"); a("s_and_b32 s29, s36, 1"); a("s_lshl_b32 s29, s29, 7")
        a("s_add_u32 s28, s28, s29"); a(f"s_add_u32 s28, s28, {LDS_Q}")
        a("v_lshlrev_b32 v8, 6, v8"); a("v_lshl_add_u32 v8, v7, 1, v8"); a("v_add_u32 v8, s28, v8")
        a("s_mov_b32 exec_lo, 0x11111111"); a("s_mov_b32 exec_hi, 0x11111111")
        for r in range(4): a(f"ds_write_b16 v8, v{qv[r]} offset:{16*r}")
        a("s_mov_b64 exec, -1")
        arrive(C_Q, "v10", "v11")
        stamp(5)


    Lnf2 = lab("noffn2")
    a("s_cmp_ge_u32 s98, 216"); a(f"s_cbranch_scc1 {Lnf2}")
    if not (cfg.q2 or (cfg.b2_early and cfg.ffn1 < 6)): ffn_issue(cfg.ffn1, 6)
    if cfg.f256:
        for i in range(12):
            b = BB + 4*(i & 1)
            for w in range(4): a(f"v_and_b32 v{b+w}, v{TP+i}, v{12+w}")
            if i >= 2*cfg.ffn1: a(f"s_waitcnt vmcnt({11-i})")
            c = "0" if i == 0 else f"v[{AC}:{AC+3}]"
            a(f"v_mfma_f32_16x16x32_bf16 v[{AC}:{AC+3}], v[{FD+4*i}:{FD+4*i+3}], v[{b}:{b+3}], {c}")
        a("s_lshl_b32 s28, s36, 10"); a(f"s_add_u32 s28, s28, {LDS_R1+4096}"); a("v_add_u32 v6, s28, v18")
        a(f"ds_write_b128 v6, v[{AC}:{AC+3}]")
        arrive_rtn(C_GU, "v10", "v11", f"v{TM}", "s49")
        a("s_cmp_lg_u32 s49, 3"); a(f"s_cbranch_scc1 {Lnf2}")
        a(f"v_add_u32 v6, {LDS_R1+4096}, v18")
        for w in range(4): a(f"ds_read_b128 v[{FD+4*w}:{FD+4*w+3}], v6 offset:{1024*w}")
        a("s_lshl_b32 s28, s98, 10"); a(f"s_add_u32 s28, s28, {WS_GU}"); a("v_add_u32 v8, s28, v18")
        a("s_waitcnt lgkmcnt(0)")
        for e in range(4): a(f"v_add_f32 v{FD+e}, v{FD+e}, v{FD+4+e}")
        for e in range(4): a(f"v_add_f32 v{FD+8+e}, v{FD+8+e}, v{FD+12+e}")
        for e in range(4): a(f"v_add_f32 v{FD+e}, v{FD+e}, v{FD+8+e}")
        tag_insert(FD, "v17")
        a(f"global_store_dwordx4 v8, v[{FD}:{FD+3}], s[26:27] sc1")
    else:
        for i in range(6):
            if i >= cfg.ffn1: a(f"s_waitcnt vmcnt({10-2*i})")
            gemv_unit([FD + 8*i, FD + 8*i + 4], TP + 2*i, [(AC, AC + 4), (AC + 8, AC + 12)], i == 0)
        zsel(AC, AC + 4); zsel(AC + 8, AC + 12)
        a("s_lshl_b32 s28, s36, 11"); a(f"s_add_u32 s28, s28, {LDS_R1+4096}"); a("v_add_u32 v6, s28, v18")
        a(f"ds_write_b128 v6, v[{AC}:{AC+3}]"); a(f"ds_write_b128 v6, v[{AC+8}:{AC+11}] offset:1024")
        arrive_rtn(C_GU, "v10", "v11", f"v{TM}", "s49")
        a("s_cmp_lg_u32 s49, 3"); a(f"s_cbranch_scc1 {Lnf2}")
        a("v_and_b32 v6, 31, v1"); a("v_lshlrev_b32 v6, 4, v6"); a("v_lshrrev_b32 v7, 5, v1"); a("v_lshl_add_u32 v6, v7, 10, v6"); a(f"v_add_u32 v6, {LDS_R1+4096}, v6")
        for w in range(4):
            for e in range(2):
                r = FD + 8*w + 4*e
                a(f"ds_read_b128 v[{r}:{r+3}], v6 offset:{2048*w+512*e}")
        a("v_lshrrev_b32 v8, 3, v1"); a("v_and_b32 v8, 1, v8"); a("v_lshlrev_b32 v8, 8, v8"); a("v_lshl_add_u32 v8, v7, 9, v8")
        a("v_lshrrev_b32 v9, 4, v1"); a("v_and_b32 v9, 1, v9"); a("v_lshl_add_u32 v8, v9, 7, v8")
        a("v_and_b32 v9, 7, v1"); a("v_lshl_add_u32 v8, v9, 4, v8")
        a("s_lshl_b32 s28, s98, 10"); a(f"s_add_u32 s28, s28, {WS_GU}"); a("v_add_u32 v8, s28, v8")
        a("s_waitcnt lgkmcnt(0)")
        for w in range(4):
            for e in range(4): a(f"v_add_f32 v{FD+8*w+e}, v{FD+8*w+e}, v{FD+8*w+4+e}")
        for w in (0, 2):
            for e in range(4): a(f"v_add_f32 v{FD+8*w+e}, v{FD+8*w+e}, v{FD+8*w+8+e}")
        for e in range(4): a(f"v_add_f32 v{FD+e}, v{FD+e}, v{FD+16+e}")
        tag_insert(FD, "v17")
        a(f"global_store_dwordx4 v8, v[{FD}:{FD+3}], s[26:27] sc1")
    a.label(Lnf2)
    stamp(6)
    if cfg.q2:
        Lq3 = lab("q3")
        a("s_cmp_lg_u32 s36, 1"); a(f"s_cbranch_scc1 {Lq3}")
        a("s_lshl_b32 s28, s61, 11"); a("s_lshl_b32 s29, s60, 8"); a("s_add_u32 s28, s28, s29"); a(f"s_add_u32 s28, s28, {WS_QF}")
        a("v_lshrrev_b32 v7, 4, v1"); a("v_lshlrev_b32 v6, 9, v7")
        a("v_lshrrev_b32 v8, 3, v1"); a("v_and_b32 v8, 1, v8"); a("v_lshl_add_u32 v6, v8, 7, v6")
        a("v_and_b32 v9, 7, v1"); a("v_lshl_add_u32 v6, v9, 4, v6"); a("v_add_u32 v6, s28, v6")
        a("v_lshlrev_b32 v7, 7, v7"); a("v_lshl_add_u32 v7, v8, 6, v7"); a("v_lshl_add_u32 v7, v9, 1, v7"); a(f"v_add_u32 v7, {LDS_Q}, v7")
        G = EX
        def iss():
            a(f"global_load_dwordx4 v[{G}:{G+3}], v6, s[26:27] sc1")
        def chk():
            tag_check(G, "v17", f"v{TM}", f"v{TM+1}", f"v{TM+2}", True)
        poll_loop(iss, chk, f"v{TM}", sleep=cfg.sl_q2)
        for r in range(4): a(f"ds_write_b16_d16_hi v7, v{G+r} offset:{16*r}")
        arrive(C_Q, "v10", "v11")
        stamp(5)
        a.label(Lq3)
    if cfg.ml_w3:
        Lm = lab("noml3")
        a("s_cmp_lg_u32 s36, 3"); a(f"s_cbranch_scc1 {Lm}")
        MB = EX
        a("v_lshrrev_b32 v7, 3, v1"); a("v_and_b32 v7, 1, v7"); a("v_lshlrev_b32 v6, 5, v7"); a(f"v_add_u32 v6, {LDS_M}, v6")
        a("s_lshl_b32 s29, s61, 9"); a("s_lshl_b32 s28, s60, 7"); a("s_add_u32 s28, s28, s29")
        a("s_and_b32 s29, s96, 7"); a("s_lshl_b32 s29, s29, 4"); a("s_add_u32 s28, s28, s29"); a(f"s_add_u32 s28, s28, {WS_ML}")
        a("v_lshlrev_b32 v7, 8, v7"); a("v_add_u32 v7, s28, v7")
        a(f"s_mov_b32 s48, {hex(LOG2E)}")
        if cfg.spin_prio is not None: a(f"s_setprio {cfg.spin_prio}")
        spin_lds(C_L, 8, "v10", f"v{TM}", sleep=cfg.sl_l)
        a(f"s_setprio {cfg.prio_w}")
        a(f"ds_read_b128 v[{MB}:{MB+3}], v6"); a(f"ds_read_b128 v[{MB+4}:{MB+7}], v6 offset:16")
        a(f"ds_read_b128 v[{MB+8}:{MB+11}], v6 offset:64"); a(f"ds_read_b128 v[{MB+12}:{MB+15}], v6 offset:80")
        a("s_waitcnt lgkmcnt(0)")
        a(f"v_max3_f32 v8, v{MB}, v{MB+1}, v{MB+2}"); a(f"v_max3_f32 v9, v{MB+3}, v{MB+4}, v{MB+5}")
        a(f"v_max3_f32 v8, v8, v{MB+6}, v{MB+7}"); a("v_max_f32 v8, v8, v9")
        for w in range(8): a(f"v_sub_f32 v{MB+w}, v{MB+w}, v8")
        for w in range(8): a(f"v_mul_f32 v{MB+w}, s48, v{MB+w}")
        for w in range(8): a(f"v_exp_f32 v{MB+w}, v{MB+w}")
        for w in range(8): a(f"v_mul_f32 v{MB+w}, v{MB+w}, v{MB+8+w}")
        a(f"v_add_f32 v{MB}, v{MB}, v{MB+1}"); a(f"v_add_f32 v{MB+2}, v{MB+2}, v{MB+3}")
        a(f"v_add_f32 v{MB+4}, v{MB+4}, v{MB+5}"); a(f"v_add_f32 v{MB+6}, v{MB+6}, v{MB+7}")
        a(f"v_add_f32 v{MB}, v{MB}, v{MB+2}"); a(f"v_add_f32 v{MB+4}, v{MB+4}, v{MB+6}")
        a(f"v_add_f32 v{MB+1}, v{MB}, v{MB+4}")
        a("s_getreg_b32 s28, hwreg(HW_REG_XCC_ID, 0, 4)"); a("s_lshl_b32 s28, s28, 8")
        a(f"v_mov_b32 v{MB}, v8"); a(f"v_mov_b32 v{MB+2}, s28"); a(f"v_mov_b32 v{MB+3}, 0")
        tag_insert(MB, "v17")
        set_exec(0x101, 0)
        a(f"global_store_dwordx4 v7, v[{MB}:{MB+3}], s[26:27] sc1")
        a("s_mov_b64 exec, -1")
        a.label(Lm)
    a("s_cmp_lt_u32 s101, 144"); a("s_cbranch_scc1 L_wtype")
    a("s_cmp_lt_u32 s101, 160"); a("s_cbranch_scc1 L_wts_done")

    OA = EX
    def late_loads(sb):
        n = 0
        for t in range(4):
            for cg in range(3):
                r = FD + 12*t + 4*cg
                if n >= cfg.Wl: a(f"s_waitcnt vmcnt({cfg.Wl-1})")
                a(f"global_load_dwordx4 v[{r}:{r+3}], v4, s[{sb}:{sb+1}] offset:{128*cg}{NT}")
                n += 1
            if t < 3:
                a(f"s_add_u32 s{sb}, s{sb}, 9216"); a(f"s_addc_u32 s{sb+1}, s{sb+1}, 0")
    BBUF = [BB, 152]
    def late_bops(t):
        b = BBUF[t & 1]
        L = [f"v_cndmask_b32_e64 v{TP}, v{OA+t}, v{OA+4+t}, s[52:53]",
             f"v_cndmask_b32_e64 v{TP+2}, v{OA+4+t}, v{OA+t}, s[52:53]"]
        L += [f"v_and_b32 v{b+w}, v{TP}, v{12+w}" for w in range(2)]
        L += [f"v_mov_b32_dpp v{TP+1}, v{TP+2} row_ror:8 {DPP}"]
        L += [f"v_and_b32 v{b+w}, v{TP}, v{12+w}" for w in range(2, 4)]
        L += [f"v_and_b32 v{b+4+w}, v{TP+1}, v{12+w}" for w in range(4)]
        return L
    def late_gemv():
        for ins in late_bops(0): a(ins)
        for t in range(4):
            b = BBUF[t & 1]
            nxt = late_bops(t + 1) if t < 3 else []
            k = 0
            for cg in range(3):
                d = FD + 12*t + 4*cg
                for half in range(2):
                    acc = AC + 8*cg + 4*half
                    c = "0" if t == 0 else f"v[{acc}:{acc+3}]"
                    a(f"v_mfma_f32_16x16x32_bf16 v[{acc}:{acc+3}], v[{d}:{d+3}], v[{b+4*half}:{b+4*half+3}], {c}")
                    for ins in nxt[k:k+2]: a(ins)
                    k += 2
            for ins in nxt[k:]: a(ins)
    def late_addr(sj, sslot):
        a("v_lshrrev_b32 v9, 3, v1"); a("v_and_b32 v9, 3, v9"); a("s_movk_i32 s28, 10240"); a("v_mul_u32_u24 v9, s28, v9")
        a("v_and_b32 v8, 7, v1"); a("v_lshl_add_u32 v9, v8, 4, v9")
        a(f"s_mul_i32 s28, {sj}, 12"); a("s_lshl_b32 s29, s36, 2"); a("s_add_u32 s28, s28, s29"); a("s_mul_i32 s28, s28, 10240")
        a(f"s_lshl_b32 s29, {sslot}, 7"); a("s_add_u32 s28, s28, s29"); a(f"s_add_u32 s28, s28, {WS_FIN}"); a("v_add_u32 v9, s28, v9")
        a("s_mul_i32 s28, s36, 3072"); a(f"s_add_u32 s28, s28, {LDS_R3}"); a("v_add_u32 v8, s28, v18")
        a("s_lshl_b32 s28, s36, 10"); a(f"s_add_u32 s28, s28, {LDS_R3}"); a("v_add_u32 v19, s28, v18")
    def late_reduce(nW):
        for cg in range(3):
            zsel(AC + 8*cg, AC + 8*cg + 4)
            a(f"ds_write_b128 v8, v[{AC+8*cg}:{AC+8*cg+3}] offset:{1024*cg}")
        arrive(C_LATE, "v10", "v11")
        if nW == 4:
            a("s_cmp_eq_u32 s36, 3"); a("s_cbranch_scc1 L_wts_done")
        spin_lds(C_LATE, nW, "v10", f"v{TM}")
        r = FD
        for w in range(nW):
            a(f"ds_read_b128 v[{r+4*w}:{r+4*w+3}], v19 offset:{3072*w}")
        def pk(d, x, y): a(f"v_pk_add_f32 v[{d}:{d+1}], v[{x}:{x+1}], v[{y}:{y+1}]")
        a(f"s_waitcnt lgkmcnt({nW-2})")
        for e in (0, 2): pk(r+e, r+e, r+4+e)
        a("s_waitcnt lgkmcnt(0)")
        if nW == 4:
            for e in (0, 2): pk(r+8+e, r+8+e, r+12+e)
        for e in (0, 2): pk(r+e, r+e, r+8+e)
        for e in range(4): a(f"v_mov_b32 v{r+4+e}, v{r+e}")
        for e in range(4): a(f"v_permlane32_swap_b32 v{r+e}, v{r+4+e}")
        for e in (0, 2): pk(r+e, r+e, r+4+e)
        tag_insert(r, "v17")
        set_exec(0xffffffff, 0)
        a(f"global_store_dwordx4 v9, v[{r}:{r+3}], s[26:27] sc1")
        a("s_mov_b64 exec, -1")

    a("; ---- O type ----")
    a("s_sub_u32 s28, s101, 160"); a("s_mul_hi_u32 s62, s28, 0x55555556"); a("s_mul_i32 s29, s62, 3"); a("s_sub_u32 s63, s28, s29")
    a("v_and_b32 v5, 7, v1"); a("v_lshlrev_b32 v5, 4, v5"); a("s_lshl_b32 s28, s62, 8"); a(f"s_add_u32 s28, s28, {WS_ML}"); a("v_add_u32 v5, s28, v5")
    a(f"s_mul_i32 s28, s62, {128*1152}"); a("s_mul_i32 s29, s63, 384"); a("s_add_u32 s28, s28, s29"); a(f"s_mul_i32 s29, s36, {32*1152}"); a("s_add_u32 s28, s28, s29")
    a("s_add_u32 s12, s12, s28"); a("s_addc_u32 s13, s13, 0")
    a("s_lshr_b32 s28, s62, 1"); a("s_lshl_b32 s28, s28, 13"); a("s_and_b32 s29, s62, 1"); a("s_lshl_b32 s29, s29, 9"); a("s_add_u32 s28, s28, s29")
    a("s_lshl_b32 s29, s36, 7"); a("s_add_u32 s28, s28, s29"); a(f"s_add_u32 s28, s28, {WS_OB}")
    a("v_and_b32 v6, 7, v1"); a("v_lshlrev_b32 v6, 10, v6"); a("v_lshrrev_b32 v7, 3, v1"); a("v_lshl_add_u32 v6, v7, 4, v6"); a("v_add_u32 v6, s28, v6")
    a(f"v_add_u32 v7, {16*8*1024}, v6")
    late_addr("s63", "s62")
    a(f"s_mov_b32 s48, {hex(LOG2E)}")
    a("s_lshr_b32 s64x, s62, 1".replace("s64x", "s63") if False else "s_lshr_b32 s57, s62, 1")
    gate_late("s57")
    a(f"s_setprio {cfg.prio_late}")
    stamp(7)
    late_loads(12)
    G = XR
    def ml_factor():
        for bb in range(2):
            g = G + 4*bb
            a(f"v_and_b32 v{g}, s46, v{g}"); a(f"v_and_b32 v{g+1}, s46, v{g+1}")
            a(f"v_mov_b32 v{g+3}, v{g+2}")
            a(f"v_mov_b32 v{g+2}, v{g}")
        allreduce8("v_max_f32", [f"v{G+2}", f"v{G+6}"])
        for bb in range(2):
            g = G + 4*bb
            a(f"v_sub_f32 v{g}, v{g}, v{g+2}"); a(f"v_mul_f32 v{g}, s48, v{g}"); a(f"v_exp_f32 v{g}, v{g}")
        for bb in range(2):
            g = G + 4*bb
            a(f"v_mul_f32 v{g+1}, v{g+1}, v{g}")
        allreduce8("v_add_f32", [f"v{G+1}", f"v{G+5}"])
        for bb in range(2):
            g = G + 4*bb
            a(f"v_rcp_f32 v{g+2}, v{g+1}")
        for bb in range(2):
            g = G + 4*bb
            a(f"v_mul_f32 v{28+bb}, v{g}, v{g+2}")
        if cfg.local_o:
            a("s_getreg_b32 s28, hwreg(HW_REG_XCC_ID, 0, 4)")
            for bb, va in ((0, "v6"), (1, "v7")):
                a(f"v_lshrrev_b32 v{TM}, 8, v{G+4*bb+3}")
                a(f"v_cmp_eq_u32 vcc, s28, v{TM}")
                a(f"v_add_u32 v{TM+1}, {WS_OBL-WS_OB}, {va}")
                a(f"v_cndmask_b32 {va}, {va}, v{TM+1}, vcc")
    Lp = lab("opoll"); Lf = lab("opollf"); Ld = lab("opolld"); Lr = lab("opollr")
    a("s_mov_b32 s30, 0"); a("s_mov_b32 s31, 0")
    a("s_mov_b64 s[32:33], -1"); a("s_mov_b64 s[34:35], -1")
    a.label(Lp)
    for bb, va in ((0, "v6"), (1, "v7")):
        Ls = lab("oskip"); Lm = lab("oskipm")
        a(f"s_mov_b64 exec, s[{32+2*bb}:{33+2*bb}]")
        a(f"s_cbranch_execz {Ls}")
        a("s_cmp_lg_u32 s31, 0"); a(f"s_cbranch_scc1 {Lm}")
        a(f"global_load_dwordx4 v[{G+4*bb}:{G+4*bb+3}], v5, s[26:27] offset:{128*bb} sc1")
        a.label(Lm)
        a(f"global_load_dwordx4 v[{OA+4*bb}:{OA+4*bb+3}], {va}, s[26:27] sc1")
        a.label(Ls)
    a("s_mov_b64 exec, -1")
    a("s_waitcnt vmcnt(0)")
    a("s_mov_b64 s[38:39], 0"); a("s_mov_b64 s[56:57], 0")
    a("s_cmp_lg_u32 s31, 0"); a(f"s_cbranch_scc1 {Lf}")
    tag_check(G, "v17", f"v{TM}", f"v{TM+1}", f"v{TM+2}", True)
    tag_check(G + 4, "v17", f"v{TM+3}", f"v{TM+1}", f"v{TM+2}", True)
    a(f"v_cmp_ne_u32 s[38:39], 0, v{TM}")
    a(f"v_cmp_ne_u32 s[56:57], 0, v{TM+3}")
    a("s_or_b64 s[58:59], s[38:39], s[56:57]")
    a(f"s_cbranch_scc1 {Lf}")
    ml_factor()
    a("s_mov_b32 s31, 1")
    a.label(Lf)
    tag_check(OA, "v17", f"v{TM}", f"v{TM+1}", f"v{TM+2}", True)
    tag_check(OA + 4, "v17", f"v{TM+3}", f"v{TM+1}", f"v{TM+2}", True)
    a(f"v_cmp_ne_u32 s[32:33], 0, v{TM}")
    a(f"v_cmp_ne_u32 s[34:35], 0, v{TM+3}")
    a("s_or_b64 s[32:33], s[32:33], s[38:39]")
    a("s_or_b64 s[34:35], s[34:35], s[56:57]")
    a("s_or_b64 s[58:59], s[32:33], s[34:35]")
    a(f"s_cbranch_scc0 {Ld}")
    if cfg.sl_o: a(f"s_sleep {cfg.sl_o}")
    a("s_add_u32 s30, s30, 1"); a(f"s_cmp_lt_u32 s30, {cfg.spin_max}"); a(f"s_cbranch_scc1 {Lp}")
    a.label(Ld)
    stamp(8)
    tag_strip(OA); tag_strip(OA + 4)
    for e in (0, 2): a(f"v_pk_mul_f32 v[{OA+e}:{OA+e+1}], v[{OA+e}:{OA+e+1}], v[28:29] op_sel_hi:[1,0]")
    for e in (4, 6): a(f"v_pk_mul_f32 v[{OA+e}:{OA+e+1}], v[{OA+e}:{OA+e+1}], v[28:29] op_sel:[0,1] op_sel_hi:[1,1]")
    allreduce8("v_add_f32", [f"v{OA+e}" for e in range(8)])
    for e in range(8): a(f"v_cvt_pk_bf16_f32 v{OA+e}, v{OA+e}, v{OA+e}")
    late_gemv()
    late_reduce(4)
    stamp(9)
    a("s_branch L_wts_done")

    a.label("L_wtype")
    a("; ---- W type ----")
    a("s_cmp_eq_u32 s36, 3"); a("s_cbranch_scc1 L_final")
    a("s_mul_hi_u32 s58, s101, 0x55555556"); a("s_mul_i32 s59, s58, 3"); a("s_sub_u32 s59, s101, s59")
    if cfg.late_gather: spin_lds(C_V, cfg.late_gather, "v10", f"v{TM}", sleep=cfg.sl_v)
    if cfg.f256:
        a("s_mul_i32 s28, s58, 3"); a("s_add_u32 s28, s28, s36"); a("s_lshr_b32 s29, s28, 2"); a("s_and_b32 s28, s28, 3")
        a("s_mul_i32 s29, s29, 3072"); a("s_lshl_b32 s28, s28, 8"); a("s_add_u32 s28, s28, s29"); a(f"s_add_u32 s28, s28, {WS_GU}")
        a("v_and_b32 v6, 3, v1"); a("v_cmp_ne_u32 s[56:57], 3, v6"); a("v_cndmask_b32_e64 v6, 0, v6, s[56:57]")
        a("v_lshlrev_b32 v6, 10, v6")
        a("v_lshrrev_b32 v7, 2, v1"); a("v_and_b32 v7, 1, v7"); a(f"v_mul_u32_u24 v7, {hex(108*1024)}, v7"); a("v_add_u32 v6, v6, v7")
        a("v_lshrrev_b32 v7, 3, v1"); a("v_lshl_add_u32 v6, v7, 4, v6"); a("v_add_u32 v6, s28, v6")
    else:
        a("s_mul_i32 s28, s58, 3"); a("s_add_u32 s28, s28, s36"); a("s_lshr_b32 s29, s28, 1"); a("s_and_b32 s28, s28, 1")
        a("s_mul_i32 s29, s29, 3072"); a("s_lshl_b32 s28, s28, 7"); a("s_add_u32 s28, s28, s29"); a(f"s_add_u32 s28, s28, {WS_GU}")
        a("v_and_b32 v6, 3, v1"); a("v_cmp_ne_u32 s[56:57], 3, v6"); a("v_cndmask_b32_e64 v6, 0, v6, s[56:57]")
        a("v_lshlrev_b32 v6, 10, v6")
        a("v_lshrrev_b32 v7, 2, v1"); a("v_and_b32 v7, 1, v7"); a("v_lshl_add_u32 v6, v7, 9, v6")
        a("v_lshrrev_b32 v7, 3, v1"); a("v_lshl_add_u32 v6, v7, 4, v6"); a("v_add_u32 v6, s28, v6")
    def iss():
        a(f"global_load_dwordx4 v[{OA}:{OA+3}], v6, s[26:27] sc1")
        a(f"global_load_dwordx4 v[{OA+4}:{OA+7}], v6, s[26:27] offset:{128 if cfg.f256 else 256} sc1")
    def chk():
        tag_check(OA, "v17", f"v{TM}", f"v{TM+1}", f"v{TM+2}", True)
        tag_check(OA + 4, "v17", f"v{TM}", f"v{TM+1}", f"v{TM+2}", False)
    def w2_setup():
        a(f"s_mul_i32 s28, s58, {96*1152}"); a("s_mul_i32 s29, s59, 384"); a("s_add_u32 s28, s28, s29"); a(f"s_mul_i32 s29, s36, {32*1152}"); a("s_add_u32 s28, s28, s29")
        a("s_add_u32 s20, s20, s28"); a("s_addc_u32 s21, s21, 0")
        a("s_add_u32 s62, s58, 32")
        late_addr("s59", "s62")
        a("s_and_b32 s61, s101, 15")
        gate_late("s61")
        a(f"s_setprio {cfg.prio_late}")
        stamp(7)
    if cfg.gu_late:
        assert cfg.Wl == 12
        Lg = lab("gul")
        w2_setup()
        iss()
        late_loads(20)
        a("s_waitcnt vmcnt(12)")
        chk()
        a(f"v_cmp_ne_u32 vcc, 0, v{TM}")
        a(f"s_cbranch_vccz {Lg}")
        if cfg.masked: a("s_mov_b64 exec, vcc")
        poll_loop(iss, chk, f"v{TM}", sleep=0)
        a.label(Lg)
    elif not cfg.x_nogu: poll_loop(iss, chk, f"v{TM}", sleep=cfg.sl_gu, pmax=cfg.pmax_gu)
    tag_strip(OA); tag_strip(OA + 4)
    for e in range(8): a(f"v_cndmask_b32_e64 v{OA+e}, 0, v{OA+e}, s[56:57]")
    allreduce_quad("v_add_f32", [f"v{OA+e}" for e in range(8)])
    OB2 = OA + 8
    for e in range(8): a(f"v_mov_b32_dpp v{OB2+e}, v{OA+e} row_half_mirror {DPP}")
    a("s_mov_b32 s56, 0xf0f0f0f0"); a("s_mov_b32 s57, 0xf0f0f0f0")
    a(f"s_mov_b32 s48, {hex(LOG2E)}")
    for e in range(8):
        g, u = TM, TM + 1
        a(f"v_cndmask_b32_e64 v{g}, v{OA+e}, v{OB2+e}, s[56:57]")
        a(f"v_cndmask_b32_e64 v{u}, v{OB2+e}, v{OA+e}, s[56:57]")
        a(f"v_cvt_pk_bf16_f32 v{g}, v{g}, v{u}")
        a(f"v_and_b32 v{u}, 0xffff0000, v{g}"); a(f"v_lshlrev_b32 v{g}, 16, v{g}")
        a(f"v_mul_f32 v{TM+2}, s48, v{g}"); a(f"v_exp_f32 v{TM+2}, -v{TM+2}"); a(f"v_add_f32 v{TM+2}, 1.0, v{TM+2}")
        a(f"v_rcp_f32 v{TM+3}, v{TM+2}")
        a(f"v_mul_f32 v{TM+4}, v{g}, v{TM+3}")
        a(f"v_fma_f32 v{TM+5}, -v{TM+4}, v{TM+2}, v{g}"); a(f"v_fmac_f32 v{TM+4}, v{TM+5}, v{TM+3}")
        a(f"v_cvt_pk_bf16_f32 v{TM+4}, v{TM+4}, v{TM+4}"); a(f"v_and_b32 v{TM+4}, 0xffff0000, v{TM+4}")
        a(f"v_mul_f32 v{TM+4}, v{TM+4}, v{u}")
        a(f"v_cvt_pk_bf16_f32 v{OA+e}, v{TM+4}, v{TM+4}")
    if not cfg.gu_late:
        w2_setup()
        late_loads(20)
    a("s_waitcnt vmcnt(0)")
    stamp(8)
    late_gemv()
    late_reduce(3)
    stamp(9)
    a("s_branch L_wts_done")

    a.label("L_final")
    a("s_cmp_ge_u32 s101, 36"); a("s_cbranch_scc1 L_wts_done")
    a("s_mul_i32 s28, s101, 10240"); a(f"s_add_u32 s28, s28, {WS_FIN}"); a("v_add_u32 v6, s28, v18")
    a("v_add_u32 v7, 4096, v6"); a("v_add_u32 v8, 8192, v6")
    a("s_and_b32 s28, s101, 1"); a("s_mul_i32 s28, s28, 576"); a("s_lshr_b32 s29, s101, 1"); a("s_lshl_b32 s29, s29, 5"); a("s_add_u32 s28, s28, s29")
    a("v_and_b32 v9, 31, v1"); a("v_add_u32 v9, s28, v9"); a("v_lshlrev_b32 v9, 1, v9")
    a("global_load_ushort v19, v9, s[4:5]")
    if cfg.fin_wait_v: spin_v()
    G = FD
    def iss():
        for t in range(6):
            base, off = (("v7", 1024*t) if t < 4 else ("v8", 1024*(t-4)))
            a(f"global_load_dwordx4 v[{G+4*t}:{G+4*t+3}], {base}, s[26:27] offset:{off} sc1")
    def chk():
        for t in range(6): tag_check(G + 4*t, "v17", f"v{TM}", f"v{TM+1}", f"v{TM+2}", t == 0)
    poll_loop(iss, chk, f"v{TM}", sleep=cfg.sl_fin)
    stamp(7)
    def reduce_slots(n, G=None):
        if G is None: G = FD
        for t in range(n): tag_strip(G + 4*t)
        for t in range(1, n):
            for e in (0, 2): a(f"v_pk_add_f32 v[{G+e}:{G+e+1}], v[{G+e}:{G+e+1}], v[{G+4*t+e}:{G+4*t+e+1}]")
        for e in range(4): a(f"v_add_f32_dpp v{G+e}, v{G+e}, v{G+e} row_ror:8 {DPP}")
        allreduce_x16_x32("v_add_f32", [f"v{G+e}" for e in range(4)], [f"v{G+4+e}" for e in range(4)])
        a(f"v_cndmask_b32_e64 v{G}, v{G}, v{G+1}, s[52:53]"); a(f"v_cndmask_b32_e64 v{G+2}, v{G+2}, v{G+3}, s[52:53]")
        a(f"v_cndmask_b32_e64 v{G}, v{G}, v{G+2}, s[54:55]")
    GA, GB = G + 24, G + 40
    def issx(b):
        for t in range(4): a(f"global_load_dwordx4 v[{b+4*t}:{b+4*t+3}], v6, s[26:27] offset:{1024*t} sc1")
    if cfg.fin2: issx(GA)
    reduce_slots(6)
    a(f"s_mov_b32 s48, {hex(LOG2E)}")
    a(f"v_cvt_pk_bf16_f32 v{G}, v{G}, v{G}"); a(f"v_and_b32 v{G}, 0xffff0000, v{G}")
    a(f"v_mul_f32 v{TM+2}, s48, v{G}"); a(f"v_exp_f32 v{TM+2}, -v{TM+2}"); a(f"v_add_f32 v{TM+2}, 1.0, v{TM+2}")
    a(f"v_rcp_f32 v{TM+3}, v{TM+2}"); a(f"v_mul_f32 v{TM+4}, v{G}, v{TM+3}")
    a(f"v_fma_f32 v{TM+5}, -v{TM+4}, v{TM+2}, v{G}"); a(f"v_fmac_f32 v{TM+4}, v{TM+5}, v{TM+3}")
    a(f"v_cvt_pk_bf16_f32 v{TM+4}, v{TM+4}, v{TM+4}"); a(f"v_and_b32 v20, 0xffff0000, v{TM+4}")
    a("v_lshlrev_b32 v19, 16, v19")
    def iss():
        for t in range(4):
            a(f"global_load_dwordx4 v[{G+4*t}:{G+4*t+3}], v6, s[26:27] offset:{1024*t} sc1")
    def chk():
        for t in range(4): tag_check(G + 4*t, "v17", f"v{TM}", f"v{TM+1}", f"v{TM+2}", t == 0)
    if cfg.fin2:
        def chkx(b):
            for t in range(4): tag_check(b + 4*t, "v17", f"v{TM}", f"v{TM+1}", f"v{TM+2}", t == 0)
            a(f"v_cmp_ne_u32 vcc, 0, v{TM}")
        Lp = lab("f2"); LA = lab("f2a"); LB = lab("f2b"); Lx = lab("f2x")
        a("s_mov_b32 s30, 0")
        a.label(Lp)
        issx(GB)
        a("s_waitcnt vmcnt(4)")
        chkx(GA); a(f"s_cbranch_vccz {LA}")
        issx(GA)
        a("s_waitcnt vmcnt(4)")
        chkx(GB); a(f"s_cbranch_vccz {LB}")
        a("s_add_u32 s30, s30, 1"); a(f"s_cmp_lt_u32 s30, {cfg.spin_max}"); a(f"s_cbranch_scc1 {Lp}")
        a.label(LB)
        stamp(8)
        reduce_slots(4, GB)
        a(f"v_mov_b32 v{TM+6}, v{GB}")
        a(f"s_branch {Lx}")
        a.label(LA)
        stamp(8)
        reduce_slots(4, GA)
        a(f"v_mov_b32 v{TM+6}, v{GA}")
        a.label(Lx)
        G = TM + 6
    else:
        poll_loop(iss, chk, f"v{TM}")
        stamp(8)
        reduce_slots(4)
    a(f"v_cvt_pk_bf16_f32 v{G}, v{G}, v{G}"); a(f"v_and_b32 v{G}, 0xffff0000, v{G}")
    a(f"v_mul_f32 v{G}, v{G}, v20"); a(f"v_cvt_pk_bf16_f32 v{G}, v{G}, v{G}"); a(f"v_and_b32 v{G}, 0xffff0000, v{G}")
    a(f"v_add_f32 v{G}, v19, v{G}"); a(f"v_cvt_pk_bf16_f32 v{G}, v{G}, v{G}")
    set_exec(0xffffffff, 0)
    a(f"global_store_short v9, v{G}, s[22:23]")
    a("s_mov_b64 exec, -1")
    a("s_cmp_lg_u32 s101, 0"); a("s_cbranch_scc1 L_wts_done")
    a(f"v_mov_b32 v{TM}, 0")
    a("s_mov_b64 exec, 1")
    a(f"global_store_dword v{TM}, v16, s[26:27]" + ("" if cfg.epoch_plain else " sc1"))
    a("s_mov_b64 exec, -1")
    a.label("L_wts_done")
    stamp(10)
    dump_stamps(12)
    a.label("L_end")
    a("s_endpgm")
    a.raw(".p2align 6")
    a.raw(".type L_roles,@object")
    a.label("L_roles")
    roles = make_roles(cfg)
    for c0 in range(0, 256, 8):
        a.raw("    .long " + ", ".join(hex(r[0] | r[1] << 8 | r[2] << 16 | r[3] << 24) for r in roles[c0:c0+8]))
    a.raw(".size L_roles, 1024")
    return a

HEADER = """; Fused decode step: LayerNorm -> (sliding-window GQA attention -> wo) * silu(SwiGLU FFN) + x.   gfx950 / MI355X
; word (d_ws[0] + 1), written with sc1 stores and polled with sc1 loads; every wait is bounded.
; @launch grid=(256,1,1) block=(768,1,1) lds=%d
.amdgcn_target "amdgcn-amd-amdhsa--gfx950"
.text
.globl %s
.p2align 8
.type %s,@function
"""
FOOTER = """.section .rodata,"a"
.p2align 6
.amdhsa_kernel %s
  .amdhsa_next_free_vgpr 168
  .amdhsa_next_free_sgpr 102
  .amdhsa_accum_offset 168
  .amdhsa_group_segment_fixed_size 0
  .amdhsa_kernarg_size 96
  .amdhsa_user_sgpr_count 2
  .amdhsa_user_sgpr_kernarg_segment_ptr 1
  .amdhsa_system_sgpr_workgroup_id_x 1
  .amdhsa_float_denorm_mode_32 3
.end_amdhsa_kernel
"""
def build(cfg):
    a = gen(cfg)
    lds = (LDS_END + 255) // 256 * 256
    return HEADER % (lds, KNAME, KNAME) + a.text() + FOOTER % KNAME

if __name__ == "__main__":
    out = sys.argv[1] if len(sys.argv) > 1 else "k.s"
    kw = eval(sys.argv[2]) if len(sys.argv) > 2 else {}
    open(out, "w").write(build(Cfg(**kw)))
```

```python
import sys, json
sys.path.insert(0, 'work')
from asmb import Asm

KNAME = "recurrent_scan__sliding_block_cached__glu_gated_swiglu__decode_kernel"

LDS_K  = 0
LDS_T  = 131072
LDS_Q  = LDS_T + 4608
LDS_R1 = LDS_Q + 512
LDS_R2 = LDS_K + 16384
LDS_R3 = LDS_R1 + 12288
LDS_M  = LDS_R3 + 12288
LDS_C  = LDS_M + 128
LDS_END = LDS_C + 64
C_WQ, C_GU, C_Q, C_M, C_L, C_V, C_O, C_LATE, C_G = [4*i for i in range(9)]

WS_QB  = 0x010000
WS_QF  = 0x050000
WS_GU  = 0x060000
WS_ML  = 0x0A0000
WS_DN  = 0x0A8000
WS_OB  = 0x0B0000
WS_OBL = 0x180000
WS_FIN = 0x100000
WS_DBG = 0x200000

LOG2E = 0x3fb8aa3b
SCALE = 0x3db504f3
SPIN_MAX = 1 << 22

class Cfg:
    def __init__(self, **kw):
        self.Wk = 4; self.Wv = 4; self.extra = 2; self.trig = 16; self.rot = 1
        self.attmap = 'id'; self.rmap = 'id'; self.emode = 's'; self.dbgout = False; self.sl_v = 0; self.late_gather = 0; self.qk_at = 12; self.fac_at = 8; self.Wl = 12; self.tilemap = 'cu'; self.wtab = None; self.plan = None; self.b2_early = True; self.sl_q = 0; self.trig_c = None; self.pmax_q = None; self.pmax_gu = None; self.local_o = False; self.stamp_set = None; self.skip_qk = False; self.code_pf = 0; self.code_pf_wave = 11; self.sl_o = 0; self.x_noq = False; self.x_nogu = False; self.q2 = False; self.sl_q2 = 2; self.f256 = False; self.ffn_pos = 'q'; self.spin_prio = None; self.bar_at = None; self.ml_w3 = False; self.sl_l = 4; self.gu_late = False; self.fin2 = 0; self.epoch_plain = False; self.dn_k = 0; self.sl_dn = 1; self.v_pts = []; self.Wq = 6; self.lds_spin_max = None; self.nt_k = None; self.nt_v = None; self.nt_w = None; self.nt_l = None; self.masked = True; self.wait_ffn1 = True; self.bar_first = True; self.sl_gu = 4; self.sl_ml = 4; self.sl_fin = 2; self.fin_wait_v = True; self.ffn1 = 3; self.ml_at = 3; self.prio_k = 2; self.prio_v1 = 1; self.prio_v2 = 0; self.v2_at = 8; self.prio_tail = 3; self.prio_w = 3; self.prio_late = 3; self.stamps = False; self.nt = " nt"
        self.spin_max = SPIN_MAX
        self.__dict__.update(kw)

def make_roles(cfg):
    ids = list(range(256))
    def att_of(c):
        x, i = c & 7, c >> 3
        if cfg.attmap == "id": return c
        if cfg.attmap == "T": return (c & 31) * 8 + (c >> 5)
        if cfg.attmap == "X":
            return (((i >> 3) & 1) * 16 + 2 * x + (i >> 4)) * 8 + (i & 7)
    att = [att_of(c) for c in ids]
    if cfg.plan is None:
        if cfg.rmap == "odd":
            R = [c if c < 176 else (176 + ((c - 176) >> 1) + 40 * (c & 1)) for c in ids]
        else: R = list(ids)
        return [(att[c], c, R[c], R[c]) for c in ids]
    p = cfg.plan
    nlight = p["nlight"]
    assert sum(nlight) == 40
    light = [c for c in ids if (c >> 3) >= 32 - nlight[c & 7]]
    heavy = [c for c in ids if c not in light]
    slowR = [] if cfg.f256 else [r for r in range(216) if (r // 3) % 8 == 3]
    normR = [r for r in range(216) if r not in slowR]
    R = {}
    pref = p.get("slow_dies", [0, 2, 6])
    cand = sorted([c for c in heavy if (c & 7) in pref], key=lambda c: (c >> 3, pref.index(c & 7)))
    for c, r in zip(cand, slowR): R[c] = r
    rest = [c for c in heavy if c not in R]
    for c, r in zip(rest, normR): R[c] = r
    for k, c in enumerate(light): R[c] = 216 + k
    slowQ = [w for w in range(256) if (w >> 2) % 8 == 3]
    normQ = [w for w in range(256) if w not in slowQ]
    Q = {}
    if p.get("slowq_light", True):
        for c, w in zip(light, slowQ): Q[c] = w
    else:
        cand = [c for c in heavy if (c & 7) in pref and R[c] not in slowR]
        for c, w in zip(cand, slowQ): Q[c] = w
    rest = [c for c in ids if c not in Q]
    used = set(Q.values())
    for c, w in zip(rest, [w for w in range(256) if w not in used]): Q[c] = w
    nO = p.get("nO", [12]*8); nS = p.get("nS", [2]*8)
    assert sum(nO) == 96 and sum(nS) == 16
    L = {}
    Os, Ss, Ws = [], [], []
    for x in range(8):
        cs = [c for c in ids if (c & 7) == x]
        cs.sort(key=lambda c: (0 if c in light else 1, 1 if R[c] in slowR else 0, c))
        if p.get("o_heavy_first"): cs = cs[::-1]
        Os += cs[:nO[x]]; rem = cs[nO[x]:]
        Ss += rem[len(rem)-nS[x]:] if nS[x] else []
        Ws += rem[:len(rem)-nS[x]]
    Ws.sort(key=lambda c: (c >> 3, c & 7))
    Os.sort(key=lambda c: (c >> 3, c & 7))
    for k, c in enumerate(Ws): L[c] = k
    for k, c in enumerate(Ss): L[c] = 144 + k
    if cfg.attmap == "X":
        assert nO == [12]*8
        for x in range(8):
            cs = sorted(c for c in Os if (c & 7) == x)
            for k, c in enumerate(cs): L[c] = 160 + 12 * x + k
    else:
        for k, c in enumerate(Os): L[c] = 160 + k
    out = [(att[c], Q[c], R[c], L[c]) for c in ids]
    for k in range(4): assert sorted(o[k] for o in out) == ids
    return out

def gen(cfg):
    a = Asm()
    NT = cfg.nt
    NTK = cfg.nt if cfg.nt_k is None else cfg.nt_k
    NTV = cfg.nt if cfg.nt_v is None else cfg.nt_v
    NTW = cfg.nt if cfg.nt_w is None else cfg.nt_w
    NTL = cfg.nt if cfg.nt_l is None else cfg.nt_l
    uid = [0]
    def lab(p):
        uid[0] += 1
        return f"L_{p}_{uid[0]}"

    nstamp = [0]
    def stamp(idx):
        if cfg.stamps and (cfg.stamp_set is None or idx in cfg.stamp_set):
            a(f"s_memrealtime s[{64+2*idx}:{65+2*idx}]")
    def dump_dbg(att):
        if att: return
        L = lab("nodbg")
        a("s_waitcnt vmcnt(0) lgkmcnt(0)")
        a("s_cmp_lg_u32 s3, 11"); a(f"s_cbranch_scc1 {L}")
        a("s_cmp_ge_u32 s2, 8"); a(f"s_cbranch_scc1 {L}")
        a("s_mov_b64 exec, 1")
        a("s_lshl_b32 s29, s2, 2"); a("v_mov_b32 v2, s29")
        a("v_mov_b32 v4, s64"); a("v_mov_b32 v5, s84")
        a("global_store_dword v2, v4, s[24:25]"); a("global_store_dword v2, v5, s[24:25] offset:32")
        a.label(L)
    def dump_stamps(n):
        if cfg.dbgout:
            dump_dbg(n == 8)
            return
        if not cfg.stamps: return
        a("s_waitcnt vmcnt(0) lgkmcnt(0)")
        a("s_mov_b64 exec, 1")
        a("s_lshl_b32 s28, s2, 4"); a("s_add_u32 s28, s28, s3"); a("s_lshl_b32 s28, s28, 7")
        a(f"s_add_u32 s28, s28, {WS_DBG}")
        a("v_mov_b32 v2, s28")
        for q in range(0, 16, 4):
            for e in range(4):
                a(f"v_mov_b32 v{4+e}, s{64+2*(q+e)}")
            a(f"global_store_dwordx4 v2, v[4:7], s[26:27] offset:{q*4}")
        a("s_getreg_b32 s28, hwreg(HW_REG_XCC_ID)")
        a("v_mov_b32 v4, s28")
        a("global_store_dword v2, v4, s[26:27] offset:64")

    def spin_lds(cnt_off, target, vaddr, vtmp, stmp="s29", sto="s30", sleep=0):
        L = lab("spin"); D = lab("spind")
        a(f"s_mov_b32 {sto}, 0")
        a.label(L)
        a(f"ds_read_b32 {vtmp}, {vaddr} offset:{cnt_off}")
        a("s_waitcnt lgkmcnt(0)")
        a(f"v_readfirstlane_b32 {stmp}, {vtmp}")
        a(f"s_cmp_ge_u32 {stmp}, {target}")
        a(f"s_cbranch_scc1 {D}")
        if sleep: a(f"s_sleep {sleep}")
        a(f"s_add_u32 {sto}, {sto}, 1")
        a(f"s_cmp_lt_u32 {sto}, {cfg.lds_spin_max if cfg.lds_spin_max else cfg.spin_max}")
        a(f"s_cbranch_scc1 {L}")
        a.label(D)

    def set_exec(lo, hi):
        a(f"s_mov_b32 exec_lo, {hex(lo)}"); a(f"s_mov_b32 exec_hi, {hex(hi)}")

    def gate_late(skvh):
        if not cfg.dn_k:
            spin_v(); return
        Lw = lab("gw"); Lx = lab("gx"); Lp = lab("gp"); Ld = lab("gd")
        a("s_cmp_lg_u32 s36, 0"); a(f"s_cbranch_scc1 {Lw}")
        a("v_and_b32 v160, 15, v1"); a("v_lshlrev_b32 v160, 4, v160")
        a(f"s_lshl_b32 s28, {skvh}, 8"); a(f"s_add_u32 s28, s28, {WS_DN}"); a("v_add_u32 v165, s28, v160")
        spin_v()
        a("s_mov_b32 s31, 0")
        a.label(Lp)
        set_exec(0xffff, 0)
        a("global_load_dwordx4 v[20:23], v165, s[26:27] sc1")
        a("s_waitcnt vmcnt(0)")
        tag_check(20, "v17", "v160", "v161", "v162", True)
        a("v_cmp_eq_u32 vcc, 0, v160")
        a("s_mov_b64 exec, -1")
        a("s_bcnt1_i32_b64 s28, vcc")
        a(f"s_cmp_ge_u32 s28, {cfg.dn_k}"); a(f"s_cbranch_scc1 {Ld}")
        if cfg.sl_dn: a(f"s_sleep {cfg.sl_dn}")
        a("s_add_u32 s31, s31, 1"); a(f"s_cmp_lt_u32 s31, {cfg.spin_max}"); a(f"s_cbranch_scc1 {Lp}")
        a.label(Ld)
        arrive(C_G, "v10", "v11")
        a(f"s_branch {Lx}")
        a.label(Lw)
        if cfg.spin_prio is not None: a(f"s_setprio {cfg.spin_prio}")
        spin_lds(C_G, 1, "v10", "v160", sleep=cfg.sl_v)
        if cfg.spin_prio is not None: a(f"s_setprio {cfg.prio_late}")
        a.label(Lx)

    def spin_v():
        if cfg.spin_prio is not None: a(f"s_setprio {cfg.spin_prio}")
        spin_lds(C_V, 8, "v10", f"v{TM}" if False else "v160", sleep=cfg.sl_v)
        if cfg.spin_prio is not None: a(f"s_setprio {cfg.prio_late}")

    def arrive_rtn(cnt_off, vaddr, vone, vtmp, sdst):
        a("s_mov_b64 exec, 1")
        a(f"ds_add_rtn_u32 {vtmp}, {vaddr}, {vone} offset:{cnt_off}")
        a("s_waitcnt lgkmcnt(0)")
        a(f"v_readfirstlane_b32 {sdst}, {vtmp}")
        a("s_mov_b64 exec, -1")

    def arrive(cnt_off, vaddr, vone):
        a("s_mov_b64 exec, 1")
        a(f"ds_add_u32 {vaddr}, {vone} offset:{cnt_off}")
        a("s_mov_b64 exec, -1")

    DPP = "row_mask:0xf bank_mask:0xf"
    def allreduce8(op, regs, tmp=None):
        for r in regs: a(f"{op}_dpp {r}, {r}, {r} quad_perm:[1,0,3,2] {DPP}")
        for r in regs: a(f"{op}_dpp {r}, {r}, {r} quad_perm:[2,3,0,1] {DPP}")
        for r in regs: a(f"{op}_dpp {r}, {r}, {r} row_half_mirror {DPP}")
    def allreduce_quad(op, regs):
        for r in regs: a(f"{op}_dpp {r}, {r}, {r} quad_perm:[1,0,3,2] {DPP}")
        for r in regs: a(f"{op}_dpp {r}, {r}, {r} quad_perm:[2,3,0,1] {DPP}")
    def allreduce_x16_x32(op, regs, tmps):
        for r, t in zip(regs, tmps): a(f"v_mov_b32 {t}, {r}")
        for r, t in zip(regs, tmps): a(f"v_permlane16_swap_b32 {r}, {t}")
        for r, t in zip(regs, tmps): a(f"{op} {r}, {r}, {t}")
        for r, t in zip(regs, tmps): a(f"v_mov_b32 {t}, {r}")
        for r, t in zip(regs, tmps): a(f"v_permlane32_swap_b32 {r}, {t}")
        for r, t in zip(regs, tmps): a(f"{op} {r}, {r}, {t}")

    def tag_consts():
        for i in range(4): a(f"s_mov_b32 s{40+i}, {hex(0x07060500+i)}")
        a("s_mov_b32 s44, 0x0c0c0400"); a("s_mov_b32 s45, 0x04000c0c"); a("s_mov_b32 s46, 0xffffff00")
    def make_tag(vE, vT, t1):
        a(f"v_add_u32 {vE}, 1, {vE}")
        a(f"s_mov_b32 s28, 0x9E3779B1")
        a(f"v_mul_lo_u32 {vT}, {vE}, s28")
        a(f"v_not_b32 {t1}, {vT}")
        a(f"v_and_b32 {t1}, 1, {t1}")
        a(f"v_lshlrev_b32 {t1}, 8, {t1}")
        a(f"v_and_b32 {vT}, 0xfffffeff, {vT}")
        a(f"v_or_b32 {vT}, {vT}, {t1}")
    def tag_insert(base, vT):
        for i in range(4): a(f"v_perm_b32 v{base+i}, v{base+i}, {vT}, s{40+i}")
    def tag_check(base, vT, vacc, t1, t2, first):
        a(f"v_perm_b32 {t1}, v{base+1}, v{base}, s44")
        a(f"v_perm_b32 {t2}, v{base+3}, v{base+2}, s45")
        if first:
            a(f"v_bitop3_b32 {vacc}, {t1}, {t2}, {vT} bitop3:0x56")
        else:
            a(f"v_bitop3_b32 {t1}, {t1}, {t2}, {vT} bitop3:0x56")
            a(f"v_or_b32 {vacc}, {vacc}, {t1}")
    def tag_strip(base):
        for i in range(4): a(f"v_and_b32 v{base+i}, s46, v{base+i}")
    def poll_loop(issue, check, vacc, sleep=0, pmax=None):
        L = lab("poll"); D = lab("polld")
        a("s_mov_b32 s30, 0")
        a.label(L)
        issue()
        a("s_waitcnt vmcnt(0)")
        check()
        a(f"v_cmp_ne_u32 vcc, 0, {vacc}")
        a(f"s_cbranch_vccz {D}")
        if cfg.masked: a("s_mov_b64 exec, vcc")
        if sleep: a(f"s_sleep {sleep}")
        a("s_add_u32 s30, s30, 1")
        a(f"s_cmp_lt_u32 s30, {pmax if pmax else cfg.spin_max}")
        a(f"s_cbranch_scc1 {L}")
        a.label(D)
        if cfg.masked: a("s_mov_b64 exec, -1")

    a.raw(f"{KNAME}:")
    a("s_cmp_ge_u32 s2, 256")
    a("s_cbranch_scc1 L_end")
    if cfg.dbgout or cfg.stamps:
        for i in range(1, 16): a(f"s_mov_b32 s{64+2*i}, 0")
    stamp(0)
    a("s_load_dwordx16 s[4:19], s[0:1], 0")
    a("s_load_dwordx8 s[20:27], s[0:1], 64")
    a("v_lshrrev_b32 v2, 6, v0")
    a("v_and_b32 v1, 63, v0")
    a("v_readfirstlane_b32 s3, v2")
    a("s_getpc_b64 s[28:29]")
    a.label("L_pc")
    a("s_add_u32 s28, s28, L_roles-L_pc"); a("s_addc_u32 s29, s29, 0")
    a("s_lshl_b32 s30, s2, 2")
    a("s_load_dword s101, s[28:29], s30")
    if cfg.code_pf:
        Lpf = lab("nopf")
        a(f"s_cmp_lg_u32 s3, {cfg.code_pf_wave}"); a(f"s_cbranch_scc1 {Lpf}")
        a("s_getpc_b64 s[30:31]")
        a.label("L_pf")
        a("v_lshlrev_b32 v3, 7, v1")
        for k in range(cfg.code_pf):
            a("v_min_u32 v4, L_roles+1020-L_pf, v3")
            a(f"global_load_dword v167, v4, s[30:31]")
            if k < cfg.code_pf - 1: a("v_add_u32 v3, 0x2000, v3")
        a.label(Lpf)
    a("v_and_b32 v3, 7, v1")
    a("v_and_b32 v4, 1, v3"); a("v_lshlrev_b32 v4, 4, v4"); a("v_mov_b32 v5, 0xffff"); a("v_lshlrev_b32 v4, v4, v5")
    a("v_lshrrev_b32 v3, 1, v3")
    for w in range(4):
        a(f"v_cmp_eq_u32 vcc, {w}, v3"); a(f"v_cndmask_b32 v{12+w}, 0, v4, vcc")
    a(f"v_mov_b32 v10, {LDS_C}")
    a("v_mov_b32 v11, 1")
    tag_consts()
    Lni = lab("noinit")
    a("s_cmp_lg_u32 s3, 0"); a(f"s_cbranch_scc1 {Lni}")
    a("v_lshlrev_b32 v3, 2, v1"); a(f"v_add_u32 v3, {LDS_C}, v3"); a("v_mov_b32 v4, 0")
    set_exec(0xffff, 0); a("ds_write_b32 v3, v4"); a("s_mov_b64 exec, -1")
    a.label(Lni)
    a("s_cmp_ge_u32 s3, 8"); a("s_cbranch_scc1 L_wts")

    vE, vT = "v16", "v17"
    vKA = [2, 3, 4, 5]; vVA = 6; vKR = [7, 8, 9, 18]; vQA = 19
    QB = 20; SB = 36; KF = 52; ACC = 84; BT = 88; VB = 96; TM = 160
    a(f"s_setprio {cfg.prio_k}")
    a("v_lshrrev_b32 v20, 4, v1"); a("v_and_b32 v21, 15, v1")
    a("v_lshlrev_b32 v22, 2, v20"); a("v_lshlrev_b32 v23, 8, v20")
    for r in range(4):
        a(f"v_add_u32 v24, {r}, v22"); a("v_xor_b32 v24, v24, v21"); a(f"v_lshl_add_u32 v{vKA[r]}, v24, 4, v23")
    a(f"v_lshlrev_b32 v{vVA}, 4, v1")
    a("v_lshrrev_b32 v22, 2, v21"); a("v_and_b32 v23, 3, v21")
    a("v_lshl_add_u32 v24, v23, 2, v22"); a("v_lshlrev_b32 v24, 8, v24")
    a("v_xor_b32 v25, v23, v20")
    a("s_lshl_b32 s28, s3, 14"); a("v_add_u32 v24, s28, v24")
    a("v_lshl_add_u32 v24, v25, 4, v24")
    for jj in range(4):
        a(f"v_xor_b32 v26, {jj}, v22"); a(f"v_lshl_add_u32 v{vKR[jj]}, v26, 6, v24")
    a("v_lshrrev_b32 v22, 3, v1"); a("v_and_b32 v22, 1, v22"); a("v_lshlrev_b32 v22, 8, v22")
    a(f"v_lshl_add_u32 v{vQA}, v20, 4, v22"); a(f"v_add_u32 v{vQA}, {LDS_Q}, v{vQA}")
    a(f"v_mov_b32 v{TM}, 0")
    a("s_waitcnt lgkmcnt(0)")
    a("s_and_b32 s96, s101, 0xff"); a("s_bfe_u32 s97, s101, 0x80008"); a("s_bfe_u32 s98, s101, 0x80010"); a("s_lshr_b32 s101, s101, 24")
    if cfg.tilemap == "cu":
        a("s_lshr_b32 s28, s96, 3"); a("s_and_b32 s29, s96, 7")
        a("s_lshl_b32 s28, s28, 23"); a("s_lshl_b32 s29, s29, 17"); a("s_add_u32 s28, s28, s29"); a("s_add_u32 s28, s28, 0x700000")
        a(f"s_mul_i32 s31, s96, {cfg.rot}"); a("s_add_u32 s31, s31, s3")
    else:
        a("s_lshr_b32 s29, s96, 3"); a("s_lshl_b32 s28, s29, 23"); a("s_add_u32 s28, s28, 0x700000")
        a(f"s_mul_i32 s31, s29, {cfg.rot}"); a("s_and_b32 s29, s96, 7")
        if cfg.tilemap == "pair":
            a("s_lshl_b32 s29, s29, 3"); a("s_add_u32 s31, s31, s29"); a("s_add_u32 s31, s31, s3")
        elif cfg.tilemap == "pair2":
            a("s_add_u32 s31, s31, s29"); a("s_lshl_b32 s29, s3, 3"); a("s_add_u32 s31, s31, s29")
    a("s_add_u32 s6, s6, s28"); a("s_addc_u32 s7, s7, 0"); a("s_add_u32 s8, s8, s28"); a("s_addc_u32 s9, s9, 0")
    a("s_lshl_b32 s37, s3, 14")
    if cfg.wtab:
        packed = sum(w << (4*i) for i, w in enumerate(cfg.wtab))
        a("s_getreg_b32 s100, hwreg(HW_REG_XCC_ID, 0, 3)"); a("s_lshl_b32 s100, s100, 2")
        a(f"s_lshr_b32 s100, {hex(packed)}, s100"); a("s_and_b32 s100, s100, 15")
    vmq = []
    def vm_issue(tag): vmq.append(tag)
    def vm_wait(tag):
        idx = max(i for i, t in enumerate(vmq) if t == tag)
        n = len(vmq) - 1 - idx
        a(f"s_waitcnt vmcnt({n})")
    def vm_window(W):
        if not cfg.wtab:
            a(f"s_waitcnt vmcnt({W-1})"); return
        lo, hi = min(cfg.wtab), max(cfg.wtab)
        D = lab("win")
        for w in range(hi, lo - 1, -1):
            a(f"s_waitcnt vmcnt({w-1})")
            if w > lo:
                a(f"s_cmp_ge_u32 s100, {w}"); a(f"s_cbranch_scc1 {D}")
        a.label(D)
    if cfg.bar_first:
        a("s_barrier")
    if cfg.emode == "s": a("s_load_dword s99, s[26:27], 0")
    else:
        a(f"global_load_dword {vE}, v{TM}, s[26:27]" + (" sc1" if cfg.emode == "sc1" else "")); vm_issue("E")
    def tile_off(u):
        if cfg.tilemap == "cu":
            a(f"s_add_u32 s32, s31, {8*u}"); a("s_and_b32 s32, s32, 31"); a("s_lshl_b32 s32, s32, 12")
        else:
            a(f"s_add_u32 s32, s31, {64*u}"); a("s_and_b32 s32, s32, 255"); a("s_lshl_b32 s32, s32, 12")
    nissued = [1]
    def issue_k(u, r):
        if r == 0:
            tile_off(u)
            a("s_add_u32 s34, s6, s32"); a("s_addc_u32 s35, s7, 0")
            a(f"s_add_u32 s33, s37, {4096*u}"); a("s_mov_b32 m0, s33")
        a(f"global_load_lds_dwordx4 v{vKA[r]}, s[34:35] offset:{1024*r}{NTK}"); vm_issue(("k", u, r))
    def issue_v(i):
        u, r = divmod(i, 4)
        if r == 0:
            tile_off(u)
            a("s_add_u32 s38, s8, s32"); a("s_addc_u32 s39, s9, 0")
        a(f"global_load_dwordx4 v[{VB+4*i}:{VB+4*i+3}], v{vVA}, s[38:39] offset:{1024*r}{NTV}"); vm_issue(("v", i))
        if cfg.trig_c is None and i == cfg.trig - 1:
            arrive(C_V, "v10", "v11")
        if i == cfg.v2_at:
            a(f"s_setprio {cfg.prio_v2}")
    kops = [(u, r) for u in range(4) for r in range(4)]
    bar_done = False
    for i, (u, r) in enumerate(kops):
        if i >= (min(cfg.wtab) if cfg.wtab else cfg.Wk): vm_window(cfg.Wk)
        if r == 0 and u > 0: stamp(6 + u)
        issue_k(u, r)
        if i == (cfg.bar_at if cfg.bar_at else (min(cfg.wtab) if cfg.wtab else cfg.Wk)) - 1 and not cfg.bar_first:
            a("s_waitcnt lgkmcnt(0)"); a("s_barrier")
    stamp(1)
    a(f"s_setprio {cfg.prio_v1}")
    nv = 0
    while nv < cfg.qk_at:
        vm_window(cfg.Wk if nv < cfg.Wk else cfg.Wv); issue_v(nv); nv += 1
    vm_wait(("k", 3, 3))
    for i in range(cfg.extra):
        if nv < 16: issue_v(nv); nv += 1
    stamp(2)
    if cfg.emode == "s": a("s_waitcnt lgkmcnt(0)"); a(f"v_mov_b32 {vE}, s99")
    make_tag(vE, vT, f"v{TM}")
    if not cfg.skip_qk:
        spin_lds(C_Q, 1 if cfg.q2 else 4, "v10", f"v{TM}")
        stamp(3)
        for jj in range(4):
            a(f"ds_read_b128 v[{QB+4*jj}:{QB+4*jj+3}], v{vQA} offset:{64*jj}")
        def kread(u):
            b = KF + 16*(u & 1)
            for jj in range(4):
                a(f"ds_read_b128 v[{b+4*jj}:{b+4*jj+3}], v{vKR[jj]} offset:{4096*u}")
        kread(0); kread(1)
        for u in range(4):
            b = KF + 16*(u & 1)
            a("s_waitcnt lgkmcnt(4)" if u < 3 else "s_waitcnt lgkmcnt(0)")
            for jj in range(4):
                c = "0" if jj == 0 else f"v[{SB+4*u}:{SB+4*u+3}]"
                a(f"v_mfma_f32_16x16x32_bf16 v[{SB+4*u}:{SB+4*u+3}], v[{b+4*jj}:{b+4*jj+3}], v[{QB+4*jj}:{QB+4*jj+3}], {c}")
            if u + 2 < 4: kread(u + 2)
        nvb = [nv]
        def vpoint(k):
            for _ in range(cfg.v_pts.count(k)):
                if nvb[0] < 16:
                    a(f"s_waitcnt vmcnt({cfg.Wq-1})"); issue_v(nvb[0]); nvb[0] += 1
        vpoint(1)
        a(f"s_mov_b32 s47, {hex(SCALE)}")
        for u in range(4):
            if u == 2: vpoint(2)
            for h in range(2):
                s0 = SB + 4*u + 2*h
                t = TM + 2*h
                a(f"v_cvt_pk_bf16_f32 v{t}, v{s0}, v{s0+1}")
                a(f"v_lshlrev_b32 v{s0}, 16, v{t}")
                a(f"v_and_b32 v{s0+1}, 0xffff0000, v{t}")
                a(f"v_mul_f32 v{s0}, s47, v{s0}")
                a(f"v_mul_f32 v{s0+1}, s47, v{s0+1}")
                a(f"v_cvt_pk_bf16_f32 v{t+1}, v{s0}, v{s0+1}")
                a(f"v_lshlrev_b32 v{s0}, 16, v{t+1}")
                a(f"v_and_b32 v{s0+1}, 0xffff0000, v{t+1}")
        vpoint(3)
        a(f"v_max3_f32 v{TM}, v{SB}, v{SB+1}, v{SB+2}")
        a(f"v_max3_f32 v{TM+1}, v{SB+3}, v{SB+4}, v{SB+5}")
        a(f"v_max3_f32 v{TM+2}, v{SB+6}, v{SB+7}, v{SB+8}")
        a(f"v_max3_f32 v{TM+3}, v{SB+9}, v{SB+10}, v{SB+11}")
        a(f"v_max3_f32 v{TM}, v{TM}, v{SB+12}, v{SB+13}")
        a(f"v_max3_f32 v{TM+1}, v{TM+1}, v{SB+14}, v{SB+15}")
        a(f"v_max3_f32 v{TM}, v{TM}, v{TM+1}, v{TM+2}")
        a(f"v_max_f32 v{TM}, v{TM}, v{TM+3}")
        allreduce_x16_x32("v_max_f32", [f"v{TM}"], [f"v{TM+1}"])
        a(f"v_mov_b32 v22, v{TM}")
        a("v_lshrrev_b32 v20, 3, v1"); a("v_and_b32 v20, 1, v20"); a("v_lshlrev_b32 v20, 5, v20")
        a(f"v_add_u32 v20, {LDS_M}, v20")
        a("s_lshl_b32 s28, s3, 2"); a("v_add_u32 v21, s28, v20")
        a(f"s_mov_b32 s48, {hex(LOG2E)}")
        a("v_mul_f32 v23, s48, v22")
        vpoint(4)
        for i in range(16):
            a(f"v_fma_f32 v{SB+i}, v{SB+i}, s48, -v23")
        for i in range(16):
            a(f"v_exp_f32 v{SB+i}, v{SB+i}")
        vpoint(5)
        a(f"v_add_f32 v24, v{SB}, v{SB+1}"); a(f"v_add_f32 v25, v{SB+2}, v{SB+3}")
        for i in range(4, 16, 2):
            t = 24 + ((i >> 1) & 1)
            a(f"v_add_f32 v{t}, v{t}, v{SB+i}")
            a(f"v_add_f32 v{t}, v{t}, v{SB+i+1}")
        a(f"v_add_f32 v24, v24, v25")
        for i in range(16):
            a(f"v_cvt_pk_bf16_f32 v{SB+i}, v{SB+i}, v{SB+i}")
        vpoint(6)
        nv = nvb[0]
        stamp(4)
    else:
        a("v_mov_b32 v22, 0"); a("v_mov_b32 v24, 0"); a(f"s_mov_b32 s48, {hex(LOG2E)}")
        a("v_lshrrev_b32 v20, 3, v1"); a("v_and_b32 v20, 1, v20"); a("v_lshlrev_b32 v20, 5, v20")
        a(f"v_add_u32 v20, {LDS_M}, v20"); a("s_lshl_b32 s28, s3, 2"); a("v_add_u32 v21, s28, v20")
    def publish_ml():
        allreduce_x16_x32("v_add_f32", ["v24"], ["v25"])
        set_exec(0x101, 0); a("ds_write_b32 v21, v22"); a("ds_write_b32 v21, v24 offset:64"); a("s_mov_b64 exec, -1")
        if cfg.ml_w3:
            arrive(C_L, "v10", "v11")
            return
        arrive_rtn(C_L, "v10", "v11", f"v{TM+1}", "s49")
        Lnoml = lab("noml")
        a("s_cmp_lg_u32 s49, 7"); a(f"s_cbranch_scc1 {Lnoml}")
        a(f"ds_read_b128 v[{KF}:{KF+3}], v20"); a(f"ds_read_b128 v[{KF+4}:{KF+7}], v20 offset:16")
        a(f"ds_read_b128 v[{KF+8}:{KF+11}], v20 offset:64"); a(f"ds_read_b128 v[{KF+12}:{KF+15}], v20 offset:80")
        a("s_waitcnt lgkmcnt(0)")
        a(f"v_max3_f32 v26, v{KF}, v{KF+1}, v{KF+2}"); a(f"v_max3_f32 v27, v{KF+3}, v{KF+4}, v{KF+5}")
        a(f"v_max3_f32 v26, v26, v{KF+6}, v{KF+7}"); a("v_max_f32 v26, v26, v27")
        for w in range(8): a(f"v_sub_f32 v{KF+w}, v{KF+w}, v26")
        for w in range(8): a(f"v_mul_f32 v{KF+w}, s48, v{KF+w}")
        for w in range(8): a(f"v_exp_f32 v{KF+w}, v{KF+w}")
        for w in range(8): a(f"v_mul_f32 v{KF+w}, v{KF+w}, v{KF+8+w}")
        a(f"v_add_f32 v{KF}, v{KF}, v{KF+1}"); a(f"v_add_f32 v{KF+2}, v{KF+2}, v{KF+3}")
        a(f"v_add_f32 v{KF+4}, v{KF+4}, v{KF+5}"); a(f"v_add_f32 v{KF+6}, v{KF+6}, v{KF+7}")
        a(f"v_add_f32 v{KF}, v{KF}, v{KF+2}"); a(f"v_add_f32 v{KF+4}, v{KF+4}, v{KF+6}")
        a(f"v_add_f32 v{KF+1}, v{KF}, v{KF+4}")
        a("s_getreg_b32 s50, hwreg(HW_REG_XCC_ID, 0, 4)"); a("s_lshl_b32 s50, s50, 8")
        a(f"v_mov_b32 v{KF}, v26"); a(f"v_mov_b32 v{KF+2}, s50"); a(f"v_mov_b32 v{KF+3}, 0")
        tag_insert(KF, vT)
        a("s_lshr_b32 s28, s96, 3"); a("s_and_b32 s29, s28, 15"); a("s_lshr_b32 s28, s28, 4")
        a("s_lshl_b32 s29, s29, 9"); a("s_lshl_b32 s28, s28, 7"); a("s_add_u32 s28, s28, s29")
        a("s_and_b32 s29, s96, 7"); a("s_lshl_b32 s29, s29, 4"); a("s_add_u32 s28, s28, s29"); a(f"s_add_u32 s28, s28, {WS_ML}")
        a("v_lshrrev_b32 v27, 3, v1"); a("v_and_b32 v27, 1, v27"); a("v_lshlrev_b32 v27, 8, v27"); a("v_add_u32 v27, s28, v27")
        set_exec(0x101, 0)
        a(f"global_store_dwordx4 v27, v[{KF}:{KF+3}], s[26:27] sc1")
        a("s_mov_b64 exec, -1")
        a.label(Lnoml)
    def wave_factor():
        spin_lds(C_L, 8, "v10", f"v{TM}")
        a(f"ds_read_b128 v[{KF}:{KF+3}], v20"); a(f"ds_read_b128 v[{KF+4}:{KF+7}], v20 offset:16")
        a("v_lshrrev_b32 v28, 4, v1"); a("v_lshlrev_b32 v28, 7, v28")
        a("v_lshrrev_b32 v29, 3, v1"); a("v_and_b32 v29, 1, v29"); a("v_lshl_add_u32 v28, v29, 9, v28")
        a("v_and_b32 v29, 7, v1"); a("v_lshl_add_u32 v28, v29, 4, v28")
        a("s_lshl_b32 s28, s96, 10"); a(f"s_add_u32 s28, s28, {WS_OB}"); a("v_add_u32 v28, s28, v28")
        a("s_lshl_b32 s28, s3, 10"); a(f"s_add_u32 s28, s28, {LDS_R2}"); a(f"v_add_u32 v29, s28, v{vVA}")
        a(f"v_add_u32 v30, {LDS_R2}, v{vVA}")
        a(f"v_add_u32 v31, {WS_OBL-WS_OB}, v28")
        a("s_waitcnt lgkmcnt(0)")
        a(f"v_max3_f32 v26, v{KF}, v{KF+1}, v{KF+2}"); a(f"v_max3_f32 v27, v{KF+3}, v{KF+4}, v{KF+5}")
        a(f"v_max3_f32 v26, v26, v{KF+6}, v{KF+7}"); a("v_max_f32 v26, v26, v27")
        a("v_sub_f32 v26, v22, v26"); a("v_mul_f32 v26, s48, v26"); a("v_exp_f32 v26, v26")
    did_factor = False
    for i in range(16):
        bt = BT + 4*(i & 1)
        for w in range(4):
            a(f"v_and_b32 v{bt+w}, v{SB+i}, v{12+w}")
        vm_wait(("v", i))
        c = "0" if i == 0 else f"v[{ACC}:{ACC+3}]"
        a(f"v_mfma_f32_16x16x32_bf16 v[{ACC}:{ACC+3}], v[{VB+4*i}:{VB+4*i+3}], v[{bt}:{bt+3}], {c}")
        if i % 4 == 3 and i < 15: stamp(10 + i // 4)
        while nv < 16 and nv - (i + 1) < cfg.Wv:
            issue_v(nv); nv += 1
        if cfg.trig_c is not None and i == cfg.trig_c:
            arrive(C_V, "v10", "v11")
        if i == cfg.ml_at:
            publish_ml()
        if nv == 16 and not did_factor and i > cfg.ml_at and i >= cfg.fac_at:
            wave_factor(); did_factor = True
            a(f"s_setprio {cfg.prio_tail}")
    stamp(5)
    for e in range(4): a(f"v_mul_f32 v{ACC+e}, v{ACC+e}, v26")
    a(f"ds_write_b128 v29, v[{ACC}:{ACC+3}]")
    arrive_rtn(C_O, "v10", "v11", f"v{TM}", "s49")
    a("s_cmp_lg_u32 s49, 7"); a("s_cbranch_scc1 L_att_done")
    for w in range(8):
        a(f"ds_read_b128 v[{KF+4*w}:{KF+4*w+3}], v30 offset:{1024*w}")
    def pk(d, x, y): a(f"v_pk_add_f32 v[{d}:{d+1}], v[{x}:{x+1}], v[{y}:{y+1}]")
    a("s_waitcnt lgkmcnt(6)")
    for e in (0, 2): pk(KF+e, KF+e, KF+4+e)
    a("s_waitcnt lgkmcnt(4)")
    for e in (0, 2): pk(KF+8+e, KF+8+e, KF+12+e)
    a("s_waitcnt lgkmcnt(2)")
    for e in (0, 2): pk(KF+16+e, KF+16+e, KF+20+e)
    for e in (0, 2): pk(KF+e, KF+e, KF+8+e)
    a("s_waitcnt lgkmcnt(0)")
    for e in (0, 2): pk(KF+24+e, KF+24+e, KF+28+e)
    for e in (0, 2): pk(KF+16+e, KF+16+e, KF+24+e)
    for e in (0, 2): pk(KF+e, KF+e, KF+16+e)
    tag_insert(KF, vT)
    if cfg.local_o:
        a(f"global_store_dwordx4 v31, v[{KF}:{KF+3}], s[26:27]")
    a(f"global_store_dwordx4 v28, v[{KF}:{KF+3}], s[26:27] sc1")
    if cfg.dn_k:
        a("s_lshr_b32 s28, s96, 3"); a("s_and_b32 s29, s28, 15"); a("s_lshr_b32 s28, s28, 4")
        a("s_lshl_b32 s29, s29, 8"); a("s_lshl_b32 s28, s28, 7"); a("s_add_u32 s28, s28, s29")
        a("s_and_b32 s29, s96, 7"); a("s_lshl_b32 s29, s29, 4"); a("s_add_u32 s28, s28, s29"); a(f"s_add_u32 s28, s28, {WS_DN}")
        a("v_mov_b32 v20, s28")
        for e in range(4): a(f"v_mov_b32 v{KF+4+e}, 0")
        tag_insert(KF + 4, vT)
        a("s_mov_b64 exec, 1")
        a(f"global_store_dwordx4 v20, v[{KF+4}:{KF+7}], s[26:27] sc1")
        a("s_mov_b64 exec, -1")
    a.label("L_att_done")
    stamp(6)
    dump_stamps(8)
    a("s_endpgm")

    a.label("L_wts")
    a(f"s_setprio {cfg.prio_w}")
    a("s_sub_u32 s36, s3, 8")
    XR = 20; EX = 30; WQD = 48; FD = 68; AC = 116; BB = 140; TP = 148; TM = 160
    a("v_lshrrev_b32 v6, 3, v1"); a("v_and_b32 v7, 7, v1"); a("v_lshlrev_b32 v7, 4, v7")
    a("v_lshl_add_u32 v2, v6, 13, v7")
    a("s_movk_i32 s28, 9216")
    if cfg.f256:
        a("v_lshrrev_b32 v8, 4, v1"); a("v_and_b32 v9, 15, v1"); a("v_lshlrev_b32 v9, 4, v9"); a("v_mad_u32_u24 v3, v8, s28, v9")
    else:
        a("v_mad_u32_u24 v3, v6, s28, v7")
    a("s_movk_i32 s28, 1152"); a("v_mad_u32_u24 v4, v6, s28, v7")
    a("v_lshrrev_b32 v8, 5, v1"); a("v_and_b32 v9, 31, v1")
    a("v_mul_u32_u24 v18, 36, v9"); a("v_mad_u32_u24 v18, v8, s28, v18")
    a(f"v_mov_b32 v{TM}, 0")
    for e in range(4): a(f"v_mov_b32 v{WQD+16+e}, 0")
    a("s_mov_b32 s50, 0x00ff00ff"); a("s_mov_b32 s51, 0xff00ff00")
    a("s_mov_b32 s52, 0xff00ff00"); a("s_mov_b32 s53, 0xff00ff00")
    a("s_mov_b32 s54, 0xffff0000"); a("s_mov_b32 s55, 0xffff0000")
    stamp(11)
    a("s_waitcnt lgkmcnt(0)")
    a("s_and_b32 s96, s101, 0xff"); a("s_bfe_u32 s97, s101, 0x80008"); a("s_bfe_u32 s98, s101, 0x80010"); a("s_lshr_b32 s101, s101, 24")
    stamp(12)
    if cfg.emode != "s":
        a(f"global_load_dword v16, v{TM}, s[26:27]" + (" sc1" if cfg.emode == "sc1" else ""))
    a(f"global_load_dwordx4 v[{XR}:{XR+3}], v18, s[4:5]")
    a(f"global_load_dwordx4 v[{XR+4}:{XR+7}], v18, s[4:5] offset:16")
    a(f"global_load_dword v{XR+8}, v18, s[4:5] offset:32")
    a("s_and_b32 s56, s97, 3"); a("s_lshr_b32 s57, s97, 2")
    a(f"s_mul_i32 s28, s56, {144*8192}"); a("s_lshl_b32 s29, s57, 7"); a("s_add_u32 s28, s28, s29")
    a("s_add_u32 s10, s10, s28"); a("s_addc_u32 s11, s11, 0")
    a("s_lshl_b32 s28, s36, 16"); a("s_add_u32 s32, s10, s28"); a("s_addc_u32 s33, s11, 0")
    for i in range(4):
        a(f"global_load_dwordx4 v[{WQD+4*i}:{WQD+4*i+3}], v2, s[32:33]{NTW}")
        if i < 3:
            a(f"s_add_u32 s32, s32, {32*8192}"); a("s_addc_u32 s33, s33, 0")
    a("s_lshl_b32 s28, s36, 15"); a(f"s_add_u32 s28, s28, {128*8192}")
    a("s_add_u32 s32, s10, s28"); a("s_addc_u32 s33, s11, 0")
    set_exec(0xffffffff, 0)
    a(f"global_load_dwordx4 v[{WQD+16}:{WQD+19}], v2, s[32:33]{NTW}")
    a("s_mov_b64 exec, -1")
    stamp(13)
    a("s_waitcnt lgkmcnt(0)"); a("s_barrier")
    if cfg.emode == "s": a("s_load_dword s99, s[26:27], 0")
    stamp(1)
    if cfg.f256:
        a("s_cmp_ge_u32 s98, 108"); a("s_cselect_b32 s28, 108, 0")
        a("s_cselect_b32 s16, s18, s16"); a("s_cselect_b32 s17, s19, s17")
        a("s_sub_u32 s29, s98, s28")
        a("s_mul_hi_u32 s58, s29, 0x55555556"); a("s_mul_i32 s59, s58, 3"); a("s_sub_u32 s59, s29, s59")
        a(f"s_mul_i32 s28, s59, {192*9216}"); a("s_min_u32 s29, s58, 35"); a("s_lshl_b32 s29, s29, 8"); a("s_add_u32 s28, s28, s29")
        a(f"s_mul_i32 s29, s36, {4*9216}"); a("s_add_u32 s28, s28, s29")
        a("s_add_u32 s16, s16, s28"); a("s_addc_u32 s17, s17, 0")
        def ffn_issue(i0_, i1_):
            for i in range(2*i0_, 2*i1_):
                a(f"global_load_dwordx4 v[{FD+4*i}:{FD+4*i+3}], v3, s[16:17]{NTW}")
                if i < 11:
                    a(f"s_add_u32 s16, s16, {16*9216}"); a("s_addc_u32 s17, s17, 0")
    else:
        a("s_mul_hi_u32 s58, s98, 0x55555556"); a("s_mul_i32 s59, s58, 3"); a("s_sub_u32 s59, s98, s59")
        a(f"s_mul_i32 s28, s59, {192*9216}"); a("s_min_u32 s29, s58, 71"); a("s_lshl_b32 s29, s29, 7"); a("s_add_u32 s28, s28, s29")
        a(f"s_mul_i32 s29, s36, {8*9216}"); a("s_add_u32 s28, s28, s29")
        a("s_add_u32 s16, s16, s28"); a("s_addc_u32 s17, s17, 0"); a("s_add_u32 s18, s18, s28"); a("s_addc_u32 s19, s19, 0")
        def ffn_issue(i0_, i1_):
            for i in range(i0_, i1_):
                a(f"global_load_dwordx4 v[{FD+8*i}:{FD+8*i+3}], v3, s[16:17]{NTW}")
                a(f"global_load_dwordx4 v[{FD+8*i+4}:{FD+8*i+7}], v3, s[18:19]{NTW}")
                if i < 5:
                    a(f"s_add_u32 s16, s16, {32*9216}"); a("s_addc_u32 s17, s17, 0"); a(f"s_add_u32 s18, s18, {32*9216}"); a("s_addc_u32 s19, s19, 0")
    def heavy_wait(n_light, n_extra):
        L1 = lab("hw"); L2 = lab("hwd")
        a("s_cmp_ge_u32 s98, 216"); a(f"s_cbranch_scc1 {L1}")
        a(f"s_waitcnt vmcnt({n_light+n_extra})"); a(f"s_branch {L2}")
        a.label(L1); a(f"s_waitcnt vmcnt({n_light})"); a.label(L2)
    if cfg.ffn_pos == "start":
        assert cfg.ffn1 == 6
        Ls = lab("ffs")
        a("s_cmp_ge_u32 s98, 216"); a(f"s_cbranch_scc1 {Ls}")
        ffn_issue(0, 6)
        a.label(Ls)
    a("v_lshrrev_b32 v6, 3, v1"); a("v_and_b32 v6, 1, v6")
    a("v_lshrrev_b32 v7, 4, v1")
    a("s_movk_i32 s28, 2304"); a("v_mul_u32_u24 v5, 0x900, v6")
    a(f"v_add_u32 v5, {LDS_T}, v5")
    a("v_and_b32 v19, 1, v7"); a("v_lshl_add_u32 v19, v19, 3, v5")
    a("v_lshl_add_u32 v5, v7, 3, v5")
    a("v_mul_u32_u24 v6, 72, v9"); a("v_mul_u32_u24 v7, 0x900, v8"); a("v_add_u32 v6, v6, v7"); a(f"v_add_u32 v6, {LDS_T}, v6")
    a("v_lshl_add_u32 v7, v8, 2, v6")
    a("v_xor_b32 v8, 1, v8"); a("v_lshl_add_u32 v8, v8, 2, v6")
    if cfg.ffn_pos == "start": heavy_wait(5, 12)
    else: a("s_waitcnt vmcnt(5)")
    stamp(2)
    for k in range(9):
        a(f"v_lshlrev_b32 v{EX+2*k}, 16, v{XR+k}"); a(f"v_and_b32 v{EX+2*k+1}, 0xffff0000, v{XR+k}")
    a(f"v_add_f32 v{TM}, v{EX}, v{EX+1}"); a(f"v_add_f32 v{TM+1}, v{EX+2}, v{EX+3}")
    for k in range(4, 18, 2):
        t = TM + ((k >> 1) & 1)
        a(f"v_add_f32 v{t}, v{t}, v{EX+k}"); a(f"v_add_f32 v{t}, v{t}, v{EX+k+1}")
    a(f"v_add_f32 v{TM}, v{TM}, v{TM+1}")
    def allreduce32(r, t):
        allreduce8("v_add_f32", [r])
        a(f"v_add_f32_dpp {r}, {r}, {r} row_mirror {DPP}")
        a(f"v_mov_b32 {t}, {r}"); a(f"v_permlane16_swap_b32 {r}, {t}"); a(f"v_add_f32 {r}, {r}, {t}")
    allreduce32(f"v{TM}", f"v{TM+1}")
    a(f"v_mul_f32 v{TM}, 0x3ae38e39, v{TM}")
    a(f"v_sub_f32 v{TM+2}, v{EX}, v{TM}"); a(f"v_mul_f32 v{TM+1}, v{TM+2}, v{TM+2}")
    a(f"v_sub_f32 v{TM+3}, v{EX+1}, v{TM}"); a(f"v_mul_f32 v{TM+4}, v{TM+3}, v{TM+3}")
    for k in range(2, 18, 2):
        a(f"v_sub_f32 v{TM+2}, v{EX+k}, v{TM}"); a(f"v_sub_f32 v{TM+3}, v{EX+k+1}, v{TM}")
        a(f"v_fmac_f32 v{TM+1}, v{TM+2}, v{TM+2}"); a(f"v_fmac_f32 v{TM+4}, v{TM+3}, v{TM+3}")
    a(f"v_add_f32 v{TM+1}, v{TM+1}, v{TM+4}")
    allreduce32(f"v{TM+1}", f"v{TM+2}")
    a(f"v_mul_f32 v{TM+1}, 0x3ae38e39, v{TM+1}")
    a(f"v_cvt_pk_bf16_f32 v{TM}, v{TM}, v{TM+1}")
    a(f"v_and_b32 v{TM+1}, 0xffff0000, v{TM}")
    a(f"v_lshlrev_b32 v{TM}, 16, v{TM}")
    a(f"v_add_f32 v{TM+1}, 0x3727c5ac, v{TM+1}")
    a(f"v_cvt_pk_bf16_f32 v{TM+1}, v{TM+1}, v{TM+1}"); a(f"v_and_b32 v{TM+1}, 0xffff0000, v{TM+1}")
    a(f"v_sqrt_f32 v{TM+1}, v{TM+1}")
    a(f"v_cvt_pk_bf16_f32 v{TM+1}, v{TM+1}, v{TM+1}"); a(f"v_and_b32 v{TM+1}, 0xffff0000, v{TM+1}")
    a(f"v_rcp_f32 v{TM+2}, v{TM+1}")
    for k in range(9):
        e0, e1 = EX + 2*k, EX + 2*k + 1
        a(f"v_sub_f32 v{e0}, v{e0}, v{TM}"); a(f"v_sub_f32 v{e1}, v{e1}, v{TM}")
        a(f"v_cvt_pk_bf16_f32 v{TM+3}, v{e0}, v{e1}")
        a(f"v_lshlrev_b32 v{e0}, 16, v{TM+3}"); a(f"v_and_b32 v{e1}, 0xffff0000, v{TM+3}")
        a(f"v_mul_f32 v{TM+4}, v{e0}, v{TM+2}"); a(f"v_mul_f32 v{TM+5}, v{e1}, v{TM+2}")
        a(f"v_fma_f32 v{e0}, -v{TM+4}, v{TM+1}, v{e0}"); a(f"v_fma_f32 v{e1}, -v{TM+5}, v{TM+1}, v{e1}")
        a(f"v_fmac_f32 v{TM+4}, v{e0}, v{TM+2}"); a(f"v_fmac_f32 v{TM+5}, v{e1}, v{TM+2}")
        a(f"v_cvt_pk_bf16_f32 v{e0}, v{TM+4}, v{TM+4}"); a(f"v_cvt_pk_bf16_f32 v{e1}, v{TM+5}, v{TM+5}")
        a(f"ds_write_b32 v7, v{e0} offset:{8*k}"); a(f"ds_write_b32 v8, v{e1} offset:{8*k}")
    if cfg.emode == "s": a("s_waitcnt lgkmcnt(0)"); a("v_mov_b32 v16, s99")
    make_tag("v16", "v17", f"v{TM}")
    stamp(3)
    def gemv_unit(dreg_list, pair, accs, first):
        for w in range(4): a(f"v_and_b32 v{BB+w}, v{pair}, v{12+w}")
        for w in range(4): a(f"v_and_b32 v{BB+4+w}, v{pair+1}, v{12+w}")
        for d, (d1, d2) in zip(dreg_list, accs):
            c1 = "0" if first else f"v[{d1}:{d1+3}]"; c2 = "0" if first else f"v[{d2}:{d2+3}]"
            a(f"v_mfma_f32_16x16x32_bf16 v[{d1}:{d1+3}], v[{d}:{d+3}], v[{BB}:{BB+3}], {c1}")
            a(f"v_mfma_f32_16x16x32_bf16 v[{d2}:{d2+3}], v[{d}:{d+3}], v[{BB+4}:{BB+7}], {c2}")
    def zsel(d1, d2):
        for e in range(4): a(f"v_cndmask_b32_e64 v{d1+e}, v{d2+e}, v{d1+e}, s[50:51]")
    a("s_mul_i32 s28, s56, 576"); a("s_lshl_b32 s29, s36, 5"); a("s_add_u32 s28, s28, s29"); a("v_add_u32 v6, s28, v5")
    for i in range(4): a(f"ds_read_b64 v[{TP+2*i}:{TP+2*i+1}], v6 offset:{128*i}")
    a("s_mul_i32 s28, s56, 576"); a("s_lshl_b32 s29, s36, 4"); a("s_add_u32 s28, s28, s29"); a("s_add_u32 s28, s28, 512"); a("v_add_u32 v6, s28, v19")
    a(f"ds_read_b64 v[{TP+8}:{TP+9}], v6")
    if cfg.ffn_pos == "ln":
        assert cfg.ffn1 == 6
        Ls = lab("ffs")
        a("s_cmp_ge_u32 s98, 216"); a(f"s_cbranch_scc1 {Ls}")
        ffn_issue(0, 6)
        a.label(Ls)
    if cfg.ffn_pos in ("start", "ln"): heavy_wait(0, 12)
    else: a("s_waitcnt vmcnt(0)")
    a("s_waitcnt lgkmcnt(0)")
    for i in range(5):
        gemv_unit([WQD + 4*i], TP + 2*i, [(AC, AC + 4)], i == 0)
    zsel(AC, AC + 4)
    a("v_lshlrev_b32 v18, 4, v1")
    a("s_lshl_b32 s28, s36, 10"); a(f"s_add_u32 s28, s28, {LDS_R1}"); a("v_add_u32 v6, s28, v18")
    a(f"ds_write_b128 v6, v[{AC}:{AC+3}]")
    arrive_rtn(C_WQ, "v10", "v11", f"v{TM}", "s49")
    Lnq = lab("noqpub")
    a("s_cmp_lg_u32 s49, 3"); a(f"s_cbranch_scc1 {Lnq}")
    a("v_and_b32 v6, 31, v1"); a("v_lshlrev_b32 v6, 4, v6"); a("v_lshrrev_b32 v7, 5, v1"); a("v_lshl_add_u32 v6, v7, 3, v6"); a(f"v_add_u32 v6, {LDS_R1}, v6")
    for w in range(4):
        for e in range(2):
            a(f"ds_read_b64 v[{EX+4*w+2*e}:{EX+4*w+2*e+1}], v6 offset:{1024*w+512*e}")
    a("v_lshrrev_b32 v8, 3, v1"); a("v_and_b32 v8, 1, v8"); a("v_lshlrev_b32 v8, 9, v8"); a("v_lshl_add_u32 v8, v7, 8, v8")
    a("v_lshrrev_b32 v9, 4, v1"); a("v_and_b32 v9, 1, v9"); a("v_lshl_add_u32 v8, v9, 7, v8")
    a("v_and_b32 v9, 7, v1"); a("v_lshl_add_u32 v8, v9, 4, v8")
    a("s_lshl_b32 s28, s97, 10"); a(f"s_add_u32 s28, s28, {WS_QB}"); a("v_add_u32 v8, s28, v8")
    a("s_waitcnt lgkmcnt(0)")
    for st in range(4):
        a(f"v_add_f32 v{EX+4*st}, v{EX+4*st}, v{EX+4*st+2}"); a(f"v_add_f32 v{EX+4*st+1}, v{EX+4*st+1}, v{EX+4*st+3}")
    for st in (0, 8):
        a(f"v_add_f32 v{EX+st}, v{EX+st}, v{EX+st+4}"); a(f"v_add_f32 v{EX+st+1}, v{EX+st+1}, v{EX+st+5}")
    a(f"v_add_f32 v{EX}, v{EX}, v{EX+8}"); a(f"v_add_f32 v{EX+2}, v{EX+1}, v{EX+9}")
    a(f"v_mov_b32 v{EX+1}, v16"); a(f"v_mov_b32 v{EX+3}, v16")
    a(f"global_store_dwordx4 v8, v[{EX}:{EX+3}], s[26:27] sc1")
    a.label(Lnq)
    stamp(4)
    Lnf1 = lab("noffn1")
    a("s_cmp_ge_u32 s98, 216"); a(f"s_cbranch_scc1 {Lnf1}")
    if cfg.ffn_pos == "q": ffn_issue(0, cfg.ffn1)
    if cfg.f256:
        a("v_lshrrev_b32 v6, 3, v1"); a("v_and_b32 v6, 1, v6")
        a("v_lshrrev_b32 v7, 4, v1")
        a("v_xor_b32 v8, v7, v6"); a("v_and_b32 v8, 1, v8"); a("v_lshlrev_b32 v8, 2, v8")
        a("v_lshrrev_b32 v7, 1, v7"); a("v_lshl_add_u32 v8, v7, 3, v8")
        a("v_mul_u32_u24 v6, 0x900, v6"); a("v_add_u32 v6, v6, v8")
        a("s_mul_i32 s28, s59, 768"); a("s_lshl_b32 s29, s36, 4"); a("s_add_u32 s28, s28, s29"); a(f"s_add_u32 s28, s28, {LDS_T}")
        a("v_add_u32 v6, s28, v6")
        for i in range(12): a(f"ds_read_b32 v{TP+i}, v6 offset:{64*i}")
    else:
        a("s_mul_i32 s28, s59, 768"); a("s_lshl_b32 s29, s36, 5"); a("s_add_u32 s28, s28, s29"); a("v_add_u32 v6, s28, v5")
        for i in range(6): a(f"ds_read_b64 v[{TP+2*i}:{TP+2*i+1}], v6 offset:{128*i}")
    a("s_waitcnt lgkmcnt(0)")
    if cfg.wait_ffn1: a("s_waitcnt vmcnt(0)")
    a.label(Lnf1)
    a("s_lshr_b32 s28, s96, 3"); a("s_lshr_b32 s60, s28, 4"); a("s_and_b32 s61, s28, 15")
    if cfg.q2:
        Lo = lab("q1o"); Lj = lab("q1j")
        a("s_cmp_lg_u32 s36, 0"); a(f"s_cbranch_scc1 {Lo}")
        a("s_lshl_b32 s28, s57, 12"); a("s_lshr_b32 s29, s56, 1"); a("s_lshl_b32 s29, s29, 9"); a("s_add_u32 s28, s28, s29")
        a("s_and_b32 s29, s56, 1"); a("s_lshl_b32 s29, s29, 7"); a("s_add_u32 s28, s28, s29"); a(f"s_add_u32 s28, s28, {WS_QB}")
        a("v_and_b32 v6, 3, v1"); a("v_lshlrev_b32 v6, 10, v6")
        a("v_lshrrev_b32 v7, 2, v1"); a("v_and_b32 v7, 7, v7"); a("v_lshl_add_u32 v6, v7, 4, v6")
        a("v_lshrrev_b32 v8, 5, v1"); a("v_lshl_add_u32 v6, v8, 8, v6"); a("v_add_u32 v6, s28, v6")
        a("s_lshl_b32 s28, s57, 9"); a("s_lshl_b32 s29, s56, 7"); a("s_add_u32 s28, s28, s29"); a(f"s_add_u32 s28, s28, {WS_QF}")
        a("v_lshl_add_u32 v8, v7, 4, s28")
        G = EX
        def iss():
            a(f"global_load_dwordx4 v[{G}:{G+3}], v6, s[26:27] sc1")
        def chk():
            a(f"v_bitop3_b32 v{TM}, v{G+1}, v{G+3}, v16 bitop3:0x7e")
        Lq0 = lab("q0"); Lq1 = lab("q1"); Lq2 = lab("q2")
        iss()
        a("s_cmp_ge_u32 s98, 216"); a(f"s_cbranch_scc1 {Lq0}")
        ffn_issue(cfg.ffn1, 6)
        a(f"s_waitcnt vmcnt({2*(6-cfg.ffn1)})"); a(f"s_branch {Lq1}")
        a.label(Lq0); a("s_waitcnt vmcnt(0)"); a.label(Lq1)
        chk()
        a(f"v_cmp_ne_u32 vcc, 0, v{TM}")
        a(f"s_cbranch_vccz {Lq2}")
        if cfg.masked: a("s_mov_b64 exec, vcc")
        poll_loop(iss, chk, f"v{TM}", sleep=cfg.sl_q, pmax=cfg.pmax_q)
        a.label(Lq2)
        allreduce_quad("v_add_f32", [f"v{G}", f"v{G+2}"])
        a(f"v_mov_b32 v{G+1}, v{G}"); a(f"v_mov_b32 v{G+3}, v{G+2}")
        a(f"v_permlane32_swap_b32 v{G}, v{G+1}"); a(f"v_permlane32_swap_b32 v{G+2}, v{G+3}")
        for k, r in enumerate((G, G + 2, G + 1, G + 3)):
            a(f"v_cvt_pk_bf16_f32 v{G+4+k}, v{r}, v{r}")
        tag_insert(G + 4, "v17")
        set_exec(0x11111111, 0)
        a(f"global_store_dwordx4 v8, v[{G+4}:{G+7}], s[26:27] sc1")
        a("s_mov_b64 exec, -1")
        a(f"s_branch {Lj}")
        a.label(Lo)
        a("s_cmp_ge_u32 s98, 216"); a(f"s_cbranch_scc1 {Lj}")
        ffn_issue(cfg.ffn1, 6)
        a.label(Lj)
    else:
        a("s_lshr_b32 s28, s96, 3"); a("s_lshr_b32 s60, s28, 4"); a("s_and_b32 s61, s28, 15")
        a("s_lshl_b32 s28, s61, 2"); a("s_add_u32 s28, s28, s36"); a("s_lshl_b32 s28, s28, 12")
        a("s_lshl_b32 s29, s60, 9"); a("s_add_u32 s28, s28, s29"); a(f"s_add_u32 s28, s28, {WS_QB}")
        a("v_and_b32 v6, 3, v1"); a("v_lshlrev_b32 v6, 10, v6")
        a("v_lshrrev_b32 v7, 2, v1"); a("v_and_b32 v7, 7, v7"); a("v_lshl_add_u32 v6, v7, 4, v6")
        a("v_lshrrev_b32 v8, 5, v1"); a("v_lshl_add_u32 v6, v8, 7, v6"); a("v_add_u32 v6, s28, v6")
        G = EX
        def iss():
            a(f"global_load_dwordx4 v[{G}:{G+3}], v6, s[26:27] sc1")
            a(f"global_load_dwordx4 v[{G+4}:{G+7}], v6, s[26:27] offset:256 sc1")
        def chk():
            a(f"v_bitop3_b32 v{TM}, v{G+1}, v{G+3}, v16 bitop3:0x7e")
            a(f"v_bitop3_b32 v{TM+1}, v{G+5}, v{G+7}, v16 bitop3:0x7e")
            a(f"v_or_b32 v{TM}, v{TM}, v{TM+1}")
        if cfg.x_noq:
            Lx = lab("xq")
            a("s_cmp_ge_u32 s98, 216"); a(f"s_cbranch_scc1 {Lx}")
            if cfg.ffn1 < 6: ffn_issue(cfg.ffn1, 6)
            a.label(Lx)
        elif cfg.b2_early and cfg.ffn1 < 6:
            Lq0 = lab("q0"); Lq1 = lab("q1"); Lq2 = lab("q2")
            iss()
            a("s_cmp_ge_u32 s98, 216"); a(f"s_cbranch_scc1 {Lq0}")
            ffn_issue(cfg.ffn1, 6)
            a(f"s_waitcnt vmcnt({2*(6-cfg.ffn1)})"); a(f"s_branch {Lq1}")
            a.label(Lq0); a("s_waitcnt vmcnt(0)"); a.label(Lq1)
            chk()
            a(f"v_cmp_ne_u32 vcc, 0, v{TM}")
            a(f"s_cbranch_vccz {Lq2}")
            if cfg.masked: a("s_mov_b64 exec, vcc")
            poll_loop(iss, chk, f"v{TM}", sleep=cfg.sl_q, pmax=cfg.pmax_q)
            a.label(Lq2)
        else:
            poll_loop(iss, chk, f"v{TM}", sleep=cfg.sl_q, pmax=cfg.pmax_q)
        qv = [G, G + 2, G + 4, G + 6]
        allreduce_quad("v_add_f32", [f"v{r}" for r in qv])
        for r in qv: a(f"v_cvt_pk_bf16_f32 v{r}, v{r}, v{r}")
        a("s_lshr_b32 s28, s36, 1"); a("s_lshl_b32 s28, s28, 8"); a("s_and_b32 s29, s36, 1"); a("s_lshl_b32 s29, s29, 7")
        a("s_add_u32 s28, s28, s29"); a(f"s_add_u32 s28, s28, {LDS_Q}")
        a("v_lshlrev_b32 v8, 6, v8"); a("v_lshl_add_u32 v8, v7, 1, v8"); a("v_add_u32 v8, s28, v8")
        a("s_mov_b32 exec_lo, 0x11111111"); a("s_mov_b32 exec_hi, 0x11111111")
        for r in range(4): a(f"ds_write_b16 v8, v{qv[r]} offset:{16*r}")
        a("s_mov_b64 exec, -1")
        arrive(C_Q, "v10", "v11")
        stamp(5)


    Lnf2 = lab("noffn2")
    a("s_cmp_ge_u32 s98, 216"); a(f"s_cbranch_scc1 {Lnf2}")
    if not (cfg.q2 or (cfg.b2_early and cfg.ffn1 < 6)): ffn_issue(cfg.ffn1, 6)
    if cfg.f256:
        for i in range(12):
            b = BB + 4*(i & 1)
            for w in range(4): a(f"v_and_b32 v{b+w}, v{TP+i}, v{12+w}")
            if i >= 2*cfg.ffn1: a(f"s_waitcnt vmcnt({11-i})")
            c = "0" if i == 0 else f"v[{AC}:{AC+3}]"
            a(f"v_mfma_f32_16x16x32_bf16 v[{AC}:{AC+3}], v[{FD+4*i}:{FD+4*i+3}], v[{b}:{b+3}], {c}")
        a("s_lshl_b32 s28, s36, 10"); a(f"s_add_u32 s28, s28, {LDS_R1+4096}"); a("v_add_u32 v6, s28, v18")
        a(f"ds_write_b128 v6, v[{AC}:{AC+3}]")
        arrive_rtn(C_GU, "v10", "v11", f"v{TM}", "s49")
        a("s_cmp_lg_u32 s49, 3"); a(f"s_cbranch_scc1 {Lnf2}")
        a(f"v_add_u32 v6, {LDS_R1+4096}, v18")
        for w in range(4): a(f"ds_read_b128 v[{FD+4*w}:{FD+4*w+3}], v6 offset:{1024*w}")
        a("s_lshl_b32 s28, s98, 10"); a(f"s_add_u32 s28, s28, {WS_GU}"); a("v_add_u32 v8, s28, v18")
        a("s_waitcnt lgkmcnt(0)")
        for e in range(4): a(f"v_add_f32 v{FD+e}, v{FD+e}, v{FD+4+e}")
        for e in range(4): a(f"v_add_f32 v{FD+8+e}, v{FD+8+e}, v{FD+12+e}")
        for e in range(4): a(f"v_add_f32 v{FD+e}, v{FD+e}, v{FD+8+e}")
        tag_insert(FD, "v17")
        a(f"global_store_dwordx4 v8, v[{FD}:{FD+3}], s[26:27] sc1")
    else:
        for i in range(6):
            if i >= cfg.ffn1: a(f"s_waitcnt vmcnt({10-2*i})")
            gemv_unit([FD + 8*i, FD + 8*i + 4], TP + 2*i, [(AC, AC + 4), (AC + 8, AC + 12)], i == 0)
        zsel(AC, AC + 4); zsel(AC + 8, AC + 12)
        a("s_lshl_b32 s28, s36, 11"); a(f"s_add_u32 s28, s28, {LDS_R1+4096}"); a("v_add_u32 v6, s28, v18")
        a(f"ds_write_b128 v6, v[{AC}:{AC+3}]"); a(f"ds_write_b128 v6, v[{AC+8}:{AC+11}] offset:1024")
        arrive_rtn(C_GU, "v10", "v11", f"v{TM}", "s49")
        a("s_cmp_lg_u32 s49, 3"); a(f"s_cbranch_scc1 {Lnf2}")
        a("v_and_b32 v6, 31, v1"); a("v_lshlrev_b32 v6, 4, v6"); a("v_lshrrev_b32 v7, 5, v1"); a("v_lshl_add_u32 v6, v7, 10, v6"); a(f"v_add_u32 v6, {LDS_R1+4096}, v6")
        for w in range(4):
            for e in range(2):
                r = FD + 8*w + 4*e
                a(f"ds_read_b128 v[{r}:{r+3}], v6 offset:{2048*w+512*e}")
        a("v_lshrrev_b32 v8, 3, v1"); a("v_and_b32 v8, 1, v8"); a("v_lshlrev_b32 v8, 8, v8"); a("v_lshl_add_u32 v8, v7, 9, v8")
        a("v_lshrrev_b32 v9, 4, v1"); a("v_and_b32 v9, 1, v9"); a("v_lshl_add_u32 v8, v9, 7, v8")
        a("v_and_b32 v9, 7, v1"); a("v_lshl_add_u32 v8, v9, 4, v8")
        a("s_lshl_b32 s28, s98, 10"); a(f"s_add_u32 s28, s28, {WS_GU}"); a("v_add_u32 v8, s28, v8")
        a("s_waitcnt lgkmcnt(0)")
        for w in range(4):
            for e in range(4): a(f"v_add_f32 v{FD+8*w+e}, v{FD+8*w+e}, v{FD+8*w+4+e}")
        for w in (0, 2):
            for e in range(4): a(f"v_add_f32 v{FD+8*w+e}, v{FD+8*w+e}, v{FD+8*w+8+e}")
        for e in range(4): a(f"v_add_f32 v{FD+e}, v{FD+e}, v{FD+16+e}")
        tag_insert(FD, "v17")
        a(f"global_store_dwordx4 v8, v[{FD}:{FD+3}], s[26:27] sc1")
    a.label(Lnf2)
    stamp(6)
    if cfg.q2:
        Lq3 = lab("q3")
        a("s_cmp_lg_u32 s36, 1"); a(f"s_cbranch_scc1 {Lq3}")
        a("s_lshl_b32 s28, s61, 11"); a("s_lshl_b32 s29, s60, 8"); a("s_add_u32 s28, s28, s29"); a(f"s_add_u32 s28, s28, {WS_QF}")
        a("v_lshrrev_b32 v7, 4, v1"); a("v_lshlrev_b32 v6, 9, v7")
        a("v_lshrrev_b32 v8, 3, v1"); a("v_and_b32 v8, 1, v8"); a("v_lshl_add_u32 v6, v8, 7, v6")
        a("v_and_b32 v9, 7, v1"); a("v_lshl_add_u32 v6, v9, 4, v6"); a("v_add_u32 v6, s28, v6")
        a("v_lshlrev_b32 v7, 7, v7"); a("v_lshl_add_u32 v7, v8, 6, v7"); a("v_lshl_add_u32 v7, v9, 1, v7"); a(f"v_add_u32 v7, {LDS_Q}, v7")
        G = EX
        def iss():
            a(f"global_load_dwordx4 v[{G}:{G+3}], v6, s[26:27] sc1")
        def chk():
            tag_check(G, "v17", f"v{TM}", f"v{TM+1}", f"v{TM+2}", True)
        poll_loop(iss, chk, f"v{TM}", sleep=cfg.sl_q2)
        for r in range(4): a(f"ds_write_b16_d16_hi v7, v{G+r} offset:{16*r}")
        arrive(C_Q, "v10", "v11")
        stamp(5)
        a.label(Lq3)
    if cfg.ml_w3:
        Lm = lab("noml3")
        a("s_cmp_lg_u32 s36, 3"); a(f"s_cbranch_scc1 {Lm}")
        MB = EX
        a("v_lshrrev_b32 v7, 3, v1"); a("v_and_b32 v7, 1, v7"); a("v_lshlrev_b32 v6, 5, v7"); a(f"v_add_u32 v6, {LDS_M}, v6")
        a("s_lshl_b32 s29, s61, 9"); a("s_lshl_b32 s28, s60, 7"); a("s_add_u32 s28, s28, s29")
        a("s_and_b32 s29, s96, 7"); a("s_lshl_b32 s29, s29, 4"); a("s_add_u32 s28, s28, s29"); a(f"s_add_u32 s28, s28, {WS_ML}")
        a("v_lshlrev_b32 v7, 8, v7"); a("v_add_u32 v7, s28, v7")
        a(f"s_mov_b32 s48, {hex(LOG2E)}")
        if cfg.spin_prio is not None: a(f"s_setprio {cfg.spin_prio}")
        spin_lds(C_L, 8, "v10", f"v{TM}", sleep=cfg.sl_l)
        a(f"s_setprio {cfg.prio_w}")
        a(f"ds_read_b128 v[{MB}:{MB+3}], v6"); a(f"ds_read_b128 v[{MB+4}:{MB+7}], v6 offset:16")
        a(f"ds_read_b128 v[{MB+8}:{MB+11}], v6 offset:64"); a(f"ds_read_b128 v[{MB+12}:{MB+15}], v6 offset:80")
        a("s_waitcnt lgkmcnt(0)")
        a(f"v_max3_f32 v8, v{MB}, v{MB+1}, v{MB+2}"); a(f"v_max3_f32 v9, v{MB+3}, v{MB+4}, v{MB+5}")
        a(f"v_max3_f32 v8, v8, v{MB+6}, v{MB+7}"); a("v_max_f32 v8, v8, v9")
        for w in range(8): a(f"v_sub_f32 v{MB+w}, v{MB+w}, v8")
        for w in range(8): a(f"v_mul_f32 v{MB+w}, s48, v{MB+w}")
        for w in range(8): a(f"v_exp_f32 v{MB+w}, v{MB+w}")
        for w in range(8): a(f"v_mul_f32 v{MB+w}, v{MB+w}, v{MB+8+w}")
        a(f"v_add_f32 v{MB}, v{MB}, v{MB+1}"); a(f"v_add_f32 v{MB+2}, v{MB+2}, v{MB+3}")
        a(f"v_add_f32 v{MB+4}, v{MB+4}, v{MB+5}"); a(f"v_add_f32 v{MB+6}, v{MB+6}, v{MB+7}")
        a(f"v_add_f32 v{MB}, v{MB}, v{MB+2}"); a(f"v_add_f32 v{MB+4}, v{MB+4}, v{MB+6}")
        a(f"v_add_f32 v{MB+1}, v{MB}, v{MB+4}")
        a("s_getreg_b32 s28, hwreg(HW_REG_XCC_ID, 0, 4)"); a("s_lshl_b32 s28, s28, 8")
        a(f"v_mov_b32 v{MB}, v8"); a(f"v_mov_b32 v{MB+2}, s28"); a(f"v_mov_b32 v{MB+3}, 0")
        tag_insert(MB, "v17")
        set_exec(0x101, 0)
        a(f"global_store_dwordx4 v7, v[{MB}:{MB+3}], s[26:27] sc1")
        a("s_mov_b64 exec, -1")
        a.label(Lm)
    a("s_cmp_lt_u32 s101, 144"); a("s_cbranch_scc1 L_wtype")
    a("s_cmp_lt_u32 s101, 160"); a("s_cbranch_scc1 L_wts_done")

    OA = EX
    def late_loads(sb):
        n = 0
        for t in range(4):
            for cg in range(3):
                r = FD + 12*t + 4*cg
                if n >= cfg.Wl: a(f"s_waitcnt vmcnt({cfg.Wl-1})")
                a(f"global_load_dwordx4 v[{r}:{r+3}], v4, s[{sb}:{sb+1}] offset:{128*cg}{NTL}")
                n += 1
            if t < 3:
                a(f"s_add_u32 s{sb}, s{sb}, 9216"); a(f"s_addc_u32 s{sb+1}, s{sb+1}, 0")
    BBUF = [BB, 152]
    def late_bops(t):
        b = BBUF[t & 1]
        L = [f"v_cndmask_b32_e64 v{TP}, v{OA+t}, v{OA+4+t}, s[52:53]",
             f"v_cndmask_b32_e64 v{TP+2}, v{OA+4+t}, v{OA+t}, s[52:53]"]
        L += [f"v_and_b32 v{b+w}, v{TP}, v{12+w}" for w in range(2)]
        L += [f"v_mov_b32_dpp v{TP+1}, v{TP+2} row_ror:8 {DPP}"]
        L += [f"v_and_b32 v{b+w}, v{TP}, v{12+w}" for w in range(2, 4)]
        L += [f"v_and_b32 v{b+4+w}, v{TP+1}, v{12+w}" for w in range(4)]
        return L
    def late_gemv():
        for ins in late_bops(0): a(ins)
        for t in range(4):
            b = BBUF[t & 1]
            nxt = late_bops(t + 1) if t < 3 else []
            k = 0
            for cg in range(3):
                d = FD + 12*t + 4*cg
                for half in range(2):
                    acc = AC + 8*cg + 4*half
                    c = "0" if t == 0 else f"v[{acc}:{acc+3}]"
                    a(f"v_mfma_f32_16x16x32_bf16 v[{acc}:{acc+3}], v[{d}:{d+3}], v[{b+4*half}:{b+4*half+3}], {c}")
                    for ins in nxt[k:k+2]: a(ins)
                    k += 2
            for ins in nxt[k:]: a(ins)
    def late_addr(sj, sslot):
        a("v_lshrrev_b32 v9, 3, v1"); a("v_and_b32 v9, 3, v9"); a("s_movk_i32 s28, 10240"); a("v_mul_u32_u24 v9, s28, v9")
        a("v_and_b32 v8, 7, v1"); a("v_lshl_add_u32 v9, v8, 4, v9")
        a(f"s_mul_i32 s28, {sj}, 12"); a("s_lshl_b32 s29, s36, 2"); a("s_add_u32 s28, s28, s29"); a("s_mul_i32 s28, s28, 10240")
        a(f"s_lshl_b32 s29, {sslot}, 7"); a("s_add_u32 s28, s28, s29"); a(f"s_add_u32 s28, s28, {WS_FIN}"); a("v_add_u32 v9, s28, v9")
        a("s_mul_i32 s28, s36, 3072"); a(f"s_add_u32 s28, s28, {LDS_R3}"); a("v_add_u32 v8, s28, v18")
        a("s_lshl_b32 s28, s36, 10"); a(f"s_add_u32 s28, s28, {LDS_R3}"); a("v_add_u32 v19, s28, v18")
    def late_reduce(nW):
        for cg in range(3):
            zsel(AC + 8*cg, AC + 8*cg + 4)
            a(f"ds_write_b128 v8, v[{AC+8*cg}:{AC+8*cg+3}] offset:{1024*cg}")
        arrive(C_LATE, "v10", "v11")
        if nW == 4:
            a("s_cmp_eq_u32 s36, 3"); a("s_cbranch_scc1 L_wts_done")
        spin_lds(C_LATE, nW, "v10", f"v{TM}")
        r = FD
        for w in range(nW):
            a(f"ds_read_b128 v[{r+4*w}:{r+4*w+3}], v19 offset:{3072*w}")
        def pk(d, x, y): a(f"v_pk_add_f32 v[{d}:{d+1}], v[{x}:{x+1}], v[{y}:{y+1}]")
        a(f"s_waitcnt lgkmcnt({nW-2})")
        for e in (0, 2): pk(r+e, r+e, r+4+e)
        a("s_waitcnt lgkmcnt(0)")
        if nW == 4:
            for e in (0, 2): pk(r+8+e, r+8+e, r+12+e)
        for e in (0, 2): pk(r+e, r+e, r+8+e)
        for e in range(4): a(f"v_mov_b32 v{r+4+e}, v{r+e}")
        for e in range(4): a(f"v_permlane32_swap_b32 v{r+e}, v{r+4+e}")
        for e in (0, 2): pk(r+e, r+e, r+4+e)
        tag_insert(r, "v17")
        set_exec(0xffffffff, 0)
        a(f"global_store_dwordx4 v9, v[{r}:{r+3}], s[26:27] sc1")
        a("s_mov_b64 exec, -1")

    a("; ---- O type ----")
    a("s_sub_u32 s28, s101, 160"); a("s_mul_hi_u32 s62, s28, 0x55555556"); a("s_mul_i32 s29, s62, 3"); a("s_sub_u32 s63, s28, s29")
    a("v_and_b32 v5, 7, v1"); a("v_lshlrev_b32 v5, 4, v5"); a("s_lshl_b32 s28, s62, 8"); a(f"s_add_u32 s28, s28, {WS_ML}"); a("v_add_u32 v5, s28, v5")
    a(f"s_mul_i32 s28, s62, {128*1152}"); a("s_mul_i32 s29, s63, 384"); a("s_add_u32 s28, s28, s29"); a(f"s_mul_i32 s29, s36, {32*1152}"); a("s_add_u32 s28, s28, s29")
    a("s_add_u32 s12, s12, s28"); a("s_addc_u32 s13, s13, 0")
    a("s_lshr_b32 s28, s62, 1"); a("s_lshl_b32 s28, s28, 13"); a("s_and_b32 s29, s62, 1"); a("s_lshl_b32 s29, s29, 9"); a("s_add_u32 s28, s28, s29")
    a("s_lshl_b32 s29, s36, 7"); a("s_add_u32 s28, s28, s29"); a(f"s_add_u32 s28, s28, {WS_OB}")
    a("v_and_b32 v6, 7, v1"); a("v_lshlrev_b32 v6, 10, v6"); a("v_lshrrev_b32 v7, 3, v1"); a("v_lshl_add_u32 v6, v7, 4, v6"); a("v_add_u32 v6, s28, v6")
    a(f"v_add_u32 v7, {16*8*1024}, v6")
    late_addr("s63", "s62")
    a(f"s_mov_b32 s48, {hex(LOG2E)}")
    a("s_lshr_b32 s64x, s62, 1".replace("s64x", "s63") if False else "s_lshr_b32 s57, s62, 1")
    gate_late("s57")
    a(f"s_setprio {cfg.prio_late}")
    stamp(7)
    late_loads(12)
    G = XR
    def ml_factor():
        for bb in range(2):
            g = G + 4*bb
            a(f"v_and_b32 v{g}, s46, v{g}"); a(f"v_and_b32 v{g+1}, s46, v{g+1}")
            a(f"v_mov_b32 v{g+3}, v{g+2}")
            a(f"v_mov_b32 v{g+2}, v{g}")
        allreduce8("v_max_f32", [f"v{G+2}", f"v{G+6}"])
        for bb in range(2):
            g = G + 4*bb
            a(f"v_sub_f32 v{g}, v{g}, v{g+2}"); a(f"v_mul_f32 v{g}, s48, v{g}"); a(f"v_exp_f32 v{g}, v{g}")
        for bb in range(2):
            g = G + 4*bb
            a(f"v_mul_f32 v{g+1}, v{g+1}, v{g}")
        allreduce8("v_add_f32", [f"v{G+1}", f"v{G+5}"])
        for bb in range(2):
            g = G + 4*bb
            a(f"v_rcp_f32 v{g+2}, v{g+1}")
        for bb in range(2):
            g = G + 4*bb
            a(f"v_mul_f32 v{28+bb}, v{g}, v{g+2}")
        if cfg.local_o:
            a("s_getreg_b32 s28, hwreg(HW_REG_XCC_ID, 0, 4)")
            for bb, va in ((0, "v6"), (1, "v7")):
                a(f"v_lshrrev_b32 v{TM}, 8, v{G+4*bb+3}")
                a(f"v_cmp_eq_u32 vcc, s28, v{TM}")
                a(f"v_add_u32 v{TM+1}, {WS_OBL-WS_OB}, {va}")
                a(f"v_cndmask_b32 {va}, {va}, v{TM+1}, vcc")
    Lp = lab("opoll"); Lf = lab("opollf"); Ld = lab("opolld"); Lr = lab("opollr")
    a("s_mov_b32 s30, 0"); a("s_mov_b32 s31, 0")
    a("s_mov_b64 s[32:33], -1"); a("s_mov_b64 s[34:35], -1")
    a.label(Lp)
    for bb, va in ((0, "v6"), (1, "v7")):
        Ls = lab("oskip"); Lm = lab("oskipm")
        a(f"s_mov_b64 exec, s[{32+2*bb}:{33+2*bb}]")
        a(f"s_cbranch_execz {Ls}")
        a("s_cmp_lg_u32 s31, 0"); a(f"s_cbranch_scc1 {Lm}")
        a(f"global_load_dwordx4 v[{G+4*bb}:{G+4*bb+3}], v5, s[26:27] offset:{128*bb} sc1")
        a.label(Lm)
        a(f"global_load_dwordx4 v[{OA+4*bb}:{OA+4*bb+3}], {va}, s[26:27] sc1")
        a.label(Ls)
    a("s_mov_b64 exec, -1")
    a("s_waitcnt vmcnt(0)")
    a("s_mov_b64 s[38:39], 0"); a("s_mov_b64 s[56:57], 0")
    a("s_cmp_lg_u32 s31, 0"); a(f"s_cbranch_scc1 {Lf}")
    tag_check(G, "v17", f"v{TM}", f"v{TM+1}", f"v{TM+2}", True)
    tag_check(G + 4, "v17", f"v{TM+3}", f"v{TM+1}", f"v{TM+2}", True)
    a(f"v_cmp_ne_u32 s[38:39], 0, v{TM}")
    a(f"v_cmp_ne_u32 s[56:57], 0, v{TM+3}")
    a("s_or_b64 s[58:59], s[38:39], s[56:57]")
    a(f"s_cbranch_scc1 {Lf}")
    ml_factor()
    a("s_mov_b32 s31, 1")
    a.label(Lf)
    tag_check(OA, "v17", f"v{TM}", f"v{TM+1}", f"v{TM+2}", True)
    tag_check(OA + 4, "v17", f"v{TM+3}", f"v{TM+1}", f"v{TM+2}", True)
    a(f"v_cmp_ne_u32 s[32:33], 0, v{TM}")
    a(f"v_cmp_ne_u32 s[34:35], 0, v{TM+3}")
    a("s_or_b64 s[32:33], s[32:33], s[38:39]")
    a("s_or_b64 s[34:35], s[34:35], s[56:57]")
    a("s_or_b64 s[58:59], s[32:33], s[34:35]")
    a(f"s_cbranch_scc0 {Ld}")
    if cfg.sl_o: a(f"s_sleep {cfg.sl_o}")
    a("s_add_u32 s30, s30, 1"); a(f"s_cmp_lt_u32 s30, {cfg.spin_max}"); a(f"s_cbranch_scc1 {Lp}")
    a.label(Ld)
    stamp(8)
    tag_strip(OA); tag_strip(OA + 4)
    for e in (0, 2): a(f"v_pk_mul_f32 v[{OA+e}:{OA+e+1}], v[{OA+e}:{OA+e+1}], v[28:29] op_sel_hi:[1,0]")
    for e in (4, 6): a(f"v_pk_mul_f32 v[{OA+e}:{OA+e+1}], v[{OA+e}:{OA+e+1}], v[28:29] op_sel:[0,1] op_sel_hi:[1,1]")
    allreduce8("v_add_f32", [f"v{OA+e}" for e in range(8)])
    for e in range(8): a(f"v_cvt_pk_bf16_f32 v{OA+e}, v{OA+e}, v{OA+e}")
    late_gemv()
    late_reduce(4)
    stamp(9)
    a("s_branch L_wts_done")

    a.label("L_wtype")
    a("; ---- W type ----")
    a("s_cmp_eq_u32 s36, 3"); a("s_cbranch_scc1 L_final")
    a("s_mul_hi_u32 s58, s101, 0x55555556"); a("s_mul_i32 s59, s58, 3"); a("s_sub_u32 s59, s101, s59")
    if cfg.late_gather: spin_lds(C_V, cfg.late_gather, "v10", f"v{TM}", sleep=cfg.sl_v)
    if cfg.f256:
        a("s_mul_i32 s28, s58, 3"); a("s_add_u32 s28, s28, s36"); a("s_lshr_b32 s29, s28, 2"); a("s_and_b32 s28, s28, 3")
        a("s_mul_i32 s29, s29, 3072"); a("s_lshl_b32 s28, s28, 8"); a("s_add_u32 s28, s28, s29"); a(f"s_add_u32 s28, s28, {WS_GU}")
        a("v_and_b32 v6, 3, v1"); a("v_cmp_ne_u32 s[56:57], 3, v6"); a("v_cndmask_b32_e64 v6, 0, v6, s[56:57]")
        a("v_lshlrev_b32 v6, 10, v6")
        a("v_lshrrev_b32 v7, 2, v1"); a("v_and_b32 v7, 1, v7"); a(f"v_mul_u32_u24 v7, {hex(108*1024)}, v7"); a("v_add_u32 v6, v6, v7")
        a("v_lshrrev_b32 v7, 3, v1"); a("v_lshl_add_u32 v6, v7, 4, v6"); a("v_add_u32 v6, s28, v6")
    else:
        a("s_mul_i32 s28, s58, 3"); a("s_add_u32 s28, s28, s36"); a("s_lshr_b32 s29, s28, 1"); a("s_and_b32 s28, s28, 1")
        a("s_mul_i32 s29, s29, 3072"); a("s_lshl_b32 s28, s28, 7"); a("s_add_u32 s28, s28, s29"); a(f"s_add_u32 s28, s28, {WS_GU}")
        a("v_and_b32 v6, 3, v1"); a("v_cmp_ne_u32 s[56:57], 3, v6"); a("v_cndmask_b32_e64 v6, 0, v6, s[56:57]")
        a("v_lshlrev_b32 v6, 10, v6")
        a("v_lshrrev_b32 v7, 2, v1"); a("v_and_b32 v7, 1, v7"); a("v_lshl_add_u32 v6, v7, 9, v6")
        a("v_lshrrev_b32 v7, 3, v1"); a("v_lshl_add_u32 v6, v7, 4, v6"); a("v_add_u32 v6, s28, v6")
    def iss():
        a(f"global_load_dwordx4 v[{OA}:{OA+3}], v6, s[26:27] sc1")
        a(f"global_load_dwordx4 v[{OA+4}:{OA+7}], v6, s[26:27] offset:{128 if cfg.f256 else 256} sc1")
    def chk():
        tag_check(OA, "v17", f"v{TM}", f"v{TM+1}", f"v{TM+2}", True)
        tag_check(OA + 4, "v17", f"v{TM}", f"v{TM+1}", f"v{TM+2}", False)
    def w2_setup():
        a(f"s_mul_i32 s28, s58, {96*1152}"); a("s_mul_i32 s29, s59, 384"); a("s_add_u32 s28, s28, s29"); a(f"s_mul_i32 s29, s36, {32*1152}"); a("s_add_u32 s28, s28, s29")
        a("s_add_u32 s20, s20, s28"); a("s_addc_u32 s21, s21, 0")
        a("s_add_u32 s62, s58, 32")
        late_addr("s59", "s62")
        a("s_and_b32 s61, s101, 15")
        gate_late("s61")
        a(f"s_setprio {cfg.prio_late}")
        stamp(7)
    if cfg.gu_late:
        assert cfg.Wl == 12
        Lg = lab("gul")
        w2_setup()
        iss()
        late_loads(20)
        a("s_waitcnt vmcnt(12)")
        chk()
        a(f"v_cmp_ne_u32 vcc, 0, v{TM}")
        a(f"s_cbranch_vccz {Lg}")
        if cfg.masked: a("s_mov_b64 exec, vcc")
        poll_loop(iss, chk, f"v{TM}", sleep=0)
        a.label(Lg)
    elif not cfg.x_nogu: poll_loop(iss, chk, f"v{TM}", sleep=cfg.sl_gu, pmax=cfg.pmax_gu)
    tag_strip(OA); tag_strip(OA + 4)
    for e in range(8): a(f"v_cndmask_b32_e64 v{OA+e}, 0, v{OA+e}, s[56:57]")
    allreduce_quad("v_add_f32", [f"v{OA+e}" for e in range(8)])
    OB2 = OA + 8
    for e in range(8): a(f"v_mov_b32_dpp v{OB2+e}, v{OA+e} row_half_mirror {DPP}")
    a("s_mov_b32 s56, 0xf0f0f0f0"); a("s_mov_b32 s57, 0xf0f0f0f0")
    a(f"s_mov_b32 s48, {hex(LOG2E)}")
    for e in range(8):
        g, u = TM, TM + 1
        a(f"v_cndmask_b32_e64 v{g}, v{OA+e}, v{OB2+e}, s[56:57]")
        a(f"v_cndmask_b32_e64 v{u}, v{OB2+e}, v{OA+e}, s[56:57]")
        a(f"v_cvt_pk_bf16_f32 v{g}, v{g}, v{u}")
        a(f"v_and_b32 v{u}, 0xffff0000, v{g}"); a(f"v_lshlrev_b32 v{g}, 16, v{g}")
        a(f"v_mul_f32 v{TM+2}, s48, v{g}"); a(f"v_exp_f32 v{TM+2}, -v{TM+2}"); a(f"v_add_f32 v{TM+2}, 1.0, v{TM+2}")
        a(f"v_rcp_f32 v{TM+3}, v{TM+2}")
        a(f"v_mul_f32 v{TM+4}, v{g}, v{TM+3}")
        a(f"v_fma_f32 v{TM+5}, -v{TM+4}, v{TM+2}, v{g}"); a(f"v_fmac_f32 v{TM+4}, v{TM+5}, v{TM+3}")
        a(f"v_cvt_pk_bf16_f32 v{TM+4}, v{TM+4}, v{TM+4}"); a(f"v_and_b32 v{TM+4}, 0xffff0000, v{TM+4}")
        a(f"v_mul_f32 v{TM+4}, v{TM+4}, v{u}")
        a(f"v_cvt_pk_bf16_f32 v{OA+e}, v{TM+4}, v{TM+4}")
    if not cfg.gu_late:
        w2_setup()
        late_loads(20)
    a("s_waitcnt vmcnt(0)")
    stamp(8)
    late_gemv()
    late_reduce(3)
    stamp(9)
    a("s_branch L_wts_done")

    a.label("L_final")
    a("s_cmp_ge_u32 s101, 36"); a("s_cbranch_scc1 L_wts_done")
    a("s_mul_i32 s28, s101, 10240"); a(f"s_add_u32 s28, s28, {WS_FIN}"); a("v_add_u32 v6, s28, v18")
    a("v_add_u32 v7, 4096, v6"); a("v_add_u32 v8, 8192, v6")
    a("s_and_b32 s28, s101, 1"); a("s_mul_i32 s28, s28, 576"); a("s_lshr_b32 s29, s101, 1"); a("s_lshl_b32 s29, s29, 5"); a("s_add_u32 s28, s28, s29")
    a("v_and_b32 v9, 31, v1"); a("v_add_u32 v9, s28, v9"); a("v_lshlrev_b32 v9, 1, v9")
    a("global_load_ushort v19, v9, s[4:5]")
    if cfg.fin_wait_v: spin_v()
    G = FD
    def iss():
        for t in range(6):
            base, off = (("v7", 1024*t) if t < 4 else ("v8", 1024*(t-4)))
            a(f"global_load_dwordx4 v[{G+4*t}:{G+4*t+3}], {base}, s[26:27] offset:{off} sc1")
    def chk():
        for t in range(6): tag_check(G + 4*t, "v17", f"v{TM}", f"v{TM+1}", f"v{TM+2}", t == 0)
    poll_loop(iss, chk, f"v{TM}", sleep=cfg.sl_fin)
    stamp(7)
    def reduce_slots(n, G=None):
        if G is None: G = FD
        for t in range(n): tag_strip(G + 4*t)
        for t in range(1, n):
            for e in (0, 2): a(f"v_pk_add_f32 v[{G+e}:{G+e+1}], v[{G+e}:{G+e+1}], v[{G+4*t+e}:{G+4*t+e+1}]")
        for e in range(4): a(f"v_add_f32_dpp v{G+e}, v{G+e}, v{G+e} row_ror:8 {DPP}")
        allreduce_x16_x32("v_add_f32", [f"v{G+e}" for e in range(4)], [f"v{G+4+e}" for e in range(4)])
        a(f"v_cndmask_b32_e64 v{G}, v{G}, v{G+1}, s[52:53]"); a(f"v_cndmask_b32_e64 v{G+2}, v{G+2}, v{G+3}, s[52:53]")
        a(f"v_cndmask_b32_e64 v{G}, v{G}, v{G+2}, s[54:55]")
    GA, GB = G + 24, G + 40
    def issx(b):
        for t in range(4): a(f"global_load_dwordx4 v[{b+4*t}:{b+4*t+3}], v6, s[26:27] offset:{1024*t} sc1")
    if cfg.fin2: issx(GA)
    reduce_slots(6)
    a(f"s_mov_b32 s48, {hex(LOG2E)}")
    a(f"v_cvt_pk_bf16_f32 v{G}, v{G}, v{G}"); a(f"v_and_b32 v{G}, 0xffff0000, v{G}")
    a(f"v_mul_f32 v{TM+2}, s48, v{G}"); a(f"v_exp_f32 v{TM+2}, -v{TM+2}"); a(f"v_add_f32 v{TM+2}, 1.0, v{TM+2}")
    a(f"v_rcp_f32 v{TM+3}, v{TM+2}"); a(f"v_mul_f32 v{TM+4}, v{G}, v{TM+3}")
    a(f"v_fma_f32 v{TM+5}, -v{TM+4}, v{TM+2}, v{G}"); a(f"v_fmac_f32 v{TM+4}, v{TM+5}, v{TM+3}")
    a(f"v_cvt_pk_bf16_f32 v{TM+4}, v{TM+4}, v{TM+4}"); a(f"v_and_b32 v20, 0xffff0000, v{TM+4}")
    a("v_lshlrev_b32 v19, 16, v19")
    def iss():
        for t in range(4):
            a(f"global_load_dwordx4 v[{G+4*t}:{G+4*t+3}], v6, s[26:27] offset:{1024*t} sc1")
    def chk():
        for t in range(4): tag_check(G + 4*t, "v17", f"v{TM}", f"v{TM+1}", f"v{TM+2}", t == 0)
    if cfg.fin2:
        def chkx(b):
            for t in range(4): tag_check(b + 4*t, "v17", f"v{TM}", f"v{TM+1}", f"v{TM+2}", t == 0)
            a(f"v_cmp_ne_u32 vcc, 0, v{TM}")
        Lp = lab("f2"); LA = lab("f2a"); LB = lab("f2b"); Lx = lab("f2x")
        a("s_mov_b32 s30, 0")
        a.label(Lp)
        issx(GB)
        a("s_waitcnt vmcnt(4)")
        chkx(GA); a(f"s_cbranch_vccz {LA}")
        issx(GA)
        a("s_waitcnt vmcnt(4)")
        chkx(GB); a(f"s_cbranch_vccz {LB}")
        a("s_add_u32 s30, s30, 1"); a(f"s_cmp_lt_u32 s30, {cfg.spin_max}"); a(f"s_cbranch_scc1 {Lp}")
        a.label(LB)
        stamp(8)
        reduce_slots(4, GB)
        a(f"v_mov_b32 v{TM+6}, v{GB}")
        a(f"s_branch {Lx}")
        a.label(LA)
        stamp(8)
        reduce_slots(4, GA)
        a(f"v_mov_b32 v{TM+6}, v{GA}")
        a.label(Lx)
        G = TM + 6
    else:
        poll_loop(iss, chk, f"v{TM}")
        stamp(8)
        reduce_slots(4)
    a(f"v_cvt_pk_bf16_f32 v{G}, v{G}, v{G}"); a(f"v_and_b32 v{G}, 0xffff0000, v{G}")
    a(f"v_mul_f32 v{G}, v{G}, v20"); a(f"v_cvt_pk_bf16_f32 v{G}, v{G}, v{G}"); a(f"v_and_b32 v{G}, 0xffff0000, v{G}")
    a(f"v_add_f32 v{G}, v19, v{G}"); a(f"v_cvt_pk_bf16_f32 v{G}, v{G}, v{G}")
    set_exec(0xffffffff, 0)
    a(f"global_store_short v9, v{G}, s[22:23]")
    a("s_mov_b64 exec, -1")
    a("s_cmp_lg_u32 s101, 0"); a("s_cbranch_scc1 L_wts_done")
    a(f"v_mov_b32 v{TM}, 0")
    a("s_mov_b64 exec, 1")
    a(f"global_store_dword v{TM}, v16, s[26:27]" + ("" if cfg.epoch_plain else " sc1"))
    a("s_mov_b64 exec, -1")
    a.label("L_wts_done")
    stamp(10)
    dump_stamps(12)
    a.label("L_end")
    a("s_endpgm")
    a.raw(".p2align 6")
    a.raw(".type L_roles,@object")
    a.label("L_roles")
    roles = make_roles(cfg)
    for c0 in range(0, 256, 8):
        a.raw("    .long " + ", ".join(hex(r[0] | r[1] << 8 | r[2] << 16 | r[3] << 24) for r in roles[c0:c0+8]))
    a.raw(".size L_roles, 1024")
    return a

HEADER = """; Fused decode step: LayerNorm -> (sliding-window GQA attention -> wo) * silu(SwiGLU FFN) + x.   gfx950 / MI355X
; word (d_ws[0] + 1), written with sc1 stores and polled with sc1 loads; every wait is bounded.
; @launch grid=(256,1,1) block=(768,1,1) lds=%d
.amdgcn_target "amdgcn-amd-amdhsa--gfx950"
.text
.globl %s
.p2align 8
.type %s,@function
"""
FOOTER = """.section .rodata,"a"
.p2align 6
.amdhsa_kernel %s
  .amdhsa_next_free_vgpr 168
  .amdhsa_next_free_sgpr 102
  .amdhsa_accum_offset 168
  .amdhsa_group_segment_fixed_size 0
  .amdhsa_kernarg_size 96
  .amdhsa_user_sgpr_count 2
  .amdhsa_user_sgpr_kernarg_segment_ptr 1
  .amdhsa_system_sgpr_workgroup_id_x 1
  .amdhsa_float_denorm_mode_32 3
.end_amdhsa_kernel
"""
def build(cfg):
    a = gen(cfg)
    lds = (LDS_END + 255) // 256 * 256
    return HEADER % (lds, KNAME, KNAME) + a.text() + FOOTER % KNAME

if __name__ == "__main__":
    out = sys.argv[1] if len(sys.argv) > 1 else "k.s"
    kw = eval(sys.argv[2]) if len(sys.argv) > 2 else {}
    open(out, "w").write(build(Cfg(**kw)))
```

```python
import sys, json
sys.path.insert(0, 'work')
from asmb import Asm

KNAME = "recurrent_scan__sliding_block_cached__glu_gated_swiglu__decode_kernel"

LDS_K  = 0
LDS_T  = 131072
LDS_Q  = LDS_T + 4608
LDS_R1 = LDS_Q + 512
LDS_R2 = LDS_K + 16384
LDS_R3 = LDS_R1 + 12288
LDS_M  = LDS_R3 + 12288
LDS_C  = LDS_M + 128
LDS_END = LDS_C + 64
C_WQ, C_GU, C_Q, C_M, C_L, C_V, C_O, C_LATE, C_G = [4*i for i in range(9)]

WS_QB  = 0x010000
WS_QF  = 0x050000
WS_GU  = 0x060000
WS_ML  = 0x0A0000
WS_DN  = 0x0A8000
WS_OB  = 0x0B0000
WS_OBL = 0x180000
WS_FIN = 0x100000
WS_DBG = 0x200000

LOG2E = 0x3fb8aa3b
SCALE = 0x3db504f3
SPIN_MAX = 1 << 22

class Cfg:
    def __init__(self, **kw):
        self.Wk = 4; self.Wv = 4; self.extra = 2; self.trig = 16; self.rot = 1
        self.attmap = 'id'; self.rmap = 'id'; self.emode = 's'; self.dbgout = False; self.sl_v = 0; self.late_gather = 0; self.qk_at = 12; self.fac_at = 8; self.Wl = 12; self.tilemap = 'cu'; self.wtab = None; self.plan = None; self.b2_early = True; self.sl_q = 0; self.trig_c = None; self.pmax_q = None; self.pmax_gu = None; self.local_o = False; self.stamp_set = None; self.skip_qk = False; self.code_pf = 0; self.code_pf_wave = 11; self.sl_o = 0; self.x_noq = False; self.x_nogu = False; self.q2 = False; self.sl_q2 = 2; self.f256 = False; self.ffn_pos = 'q'; self.spin_prio = None; self.bar_at = None; self.ml_w3 = False; self.sl_l = 4; self.gu_late = False; self.fin2 = 0; self.epoch_plain = False; self.dn_k = 0; self.sl_dn = 1; self.v_pts = []; self.Wq = 6; self.lds_spin_max = None; self.nt_k = None; self.nt_v = None; self.nt_w = None; self.nt_l = None; self.bar_early = False; self.masked = True; self.wait_ffn1 = True; self.bar_first = True; self.sl_gu = 4; self.sl_ml = 4; self.sl_fin = 2; self.fin_wait_v = True; self.ffn1 = 3; self.ml_at = 3; self.prio_k = 2; self.prio_v1 = 1; self.prio_v2 = 0; self.v2_at = 8; self.prio_tail = 3; self.prio_w = 3; self.prio_late = 3; self.stamps = False; self.nt = " nt"
        self.spin_max = SPIN_MAX
        self.__dict__.update(kw)

def make_roles(cfg):
    ids = list(range(256))
    def att_of(c):
        x, i = c & 7, c >> 3
        if cfg.attmap == "id": return c
        if cfg.attmap == "T": return (c & 31) * 8 + (c >> 5)
        if cfg.attmap == "X":
            return (((i >> 3) & 1) * 16 + 2 * x + (i >> 4)) * 8 + (i & 7)
    att = [att_of(c) for c in ids]
    if cfg.plan is None:
        if cfg.rmap == "odd":
            R = [c if c < 176 else (176 + ((c - 176) >> 1) + 40 * (c & 1)) for c in ids]
        else: R = list(ids)
        return [(att[c], c, R[c], R[c]) for c in ids]
    p = cfg.plan
    nlight = p["nlight"]
    assert sum(nlight) == 40
    light = [c for c in ids if (c >> 3) >= 32 - nlight[c & 7]]
    heavy = [c for c in ids if c not in light]
    slowR = [] if cfg.f256 else [r for r in range(216) if (r // 3) % 8 == 3]
    normR = [r for r in range(216) if r not in slowR]
    R = {}
    pref = p.get("slow_dies", [0, 2, 6])
    cand = sorted([c for c in heavy if (c & 7) in pref], key=lambda c: (c >> 3, pref.index(c & 7)))
    for c, r in zip(cand, slowR): R[c] = r
    rest = [c for c in heavy if c not in R]
    for c, r in zip(rest, normR): R[c] = r
    for k, c in enumerate(light): R[c] = 216 + k
    slowQ = [w for w in range(256) if (w >> 2) % 8 == 3]
    normQ = [w for w in range(256) if w not in slowQ]
    Q = {}
    if p.get("slowq_light", True):
        for c, w in zip(light, slowQ): Q[c] = w
    else:
        cand = [c for c in heavy if (c & 7) in pref and R[c] not in slowR]
        for c, w in zip(cand, slowQ): Q[c] = w
    rest = [c for c in ids if c not in Q]
    used = set(Q.values())
    for c, w in zip(rest, [w for w in range(256) if w not in used]): Q[c] = w
    nO = p.get("nO", [12]*8); nS = p.get("nS", [2]*8)
    assert sum(nO) == 96 and sum(nS) == 16
    L = {}
    Os, Ss, Ws = [], [], []
    for x in range(8):
        cs = [c for c in ids if (c & 7) == x]
        cs.sort(key=lambda c: (0 if c in light else 1, 1 if R[c] in slowR else 0, c))
        if p.get("o_heavy_first"): cs = cs[::-1]
        Os += cs[:nO[x]]; rem = cs[nO[x]:]
        Ss += rem[len(rem)-nS[x]:] if nS[x] else []
        Ws += rem[:len(rem)-nS[x]]
    Ws.sort(key=lambda c: (c >> 3, c & 7))
    Os.sort(key=lambda c: (c >> 3, c & 7))
    for k, c in enumerate(Ws): L[c] = k
    for k, c in enumerate(Ss): L[c] = 144 + k
    if cfg.attmap == "X":
        assert nO == [12]*8
        for x in range(8):
            cs = sorted(c for c in Os if (c & 7) == x)
            for k, c in enumerate(cs): L[c] = 160 + 12 * x + k
    else:
        for k, c in enumerate(Os): L[c] = 160 + k
    out = [(att[c], Q[c], R[c], L[c]) for c in ids]
    for k in range(4): assert sorted(o[k] for o in out) == ids
    return out

def gen(cfg):
    a = Asm()
    NT = cfg.nt
    NTK = cfg.nt if cfg.nt_k is None else cfg.nt_k
    NTV = cfg.nt if cfg.nt_v is None else cfg.nt_v
    NTW = cfg.nt if cfg.nt_w is None else cfg.nt_w
    NTL = cfg.nt if cfg.nt_l is None else cfg.nt_l
    uid = [0]
    def lab(p):
        uid[0] += 1
        return f"L_{p}_{uid[0]}"

    nstamp = [0]
    def stamp(idx):
        if cfg.stamps and (cfg.stamp_set is None or idx in cfg.stamp_set):
            a(f"s_memrealtime s[{64+2*idx}:{65+2*idx}]")
    def dump_dbg(att):
        if att: return
        L = lab("nodbg")
        a("s_waitcnt vmcnt(0) lgkmcnt(0)")
        a("s_cmp_lg_u32 s3, 11"); a(f"s_cbranch_scc1 {L}")
        a("s_cmp_ge_u32 s2, 8"); a(f"s_cbranch_scc1 {L}")
        a("s_mov_b64 exec, 1")
        a("s_lshl_b32 s29, s2, 2"); a("v_mov_b32 v2, s29")
        a("v_mov_b32 v4, s64"); a("v_mov_b32 v5, s84")
        a("global_store_dword v2, v4, s[24:25]"); a("global_store_dword v2, v5, s[24:25] offset:32")
        a.label(L)
    def dump_stamps(n):
        if cfg.dbgout:
            dump_dbg(n == 8)
            return
        if not cfg.stamps: return
        a("s_waitcnt vmcnt(0) lgkmcnt(0)")
        a("s_mov_b64 exec, 1")
        a("s_lshl_b32 s28, s2, 4"); a("s_add_u32 s28, s28, s3"); a("s_lshl_b32 s28, s28, 7")
        a(f"s_add_u32 s28, s28, {WS_DBG}")
        a("v_mov_b32 v2, s28")
        for q in range(0, 16, 4):
            for e in range(4):
                a(f"v_mov_b32 v{4+e}, s{64+2*(q+e)}")
            a(f"global_store_dwordx4 v2, v[4:7], s[26:27] offset:{q*4}")
        a("s_getreg_b32 s28, hwreg(HW_REG_XCC_ID)")
        a("v_mov_b32 v4, s28")
        a("global_store_dword v2, v4, s[26:27] offset:64")

    def spin_lds(cnt_off, target, vaddr, vtmp, stmp="s29", sto="s30", sleep=0):
        L = lab("spin"); D = lab("spind")
        a(f"s_mov_b32 {sto}, 0")
        a.label(L)
        a(f"ds_read_b32 {vtmp}, {vaddr} offset:{cnt_off}")
        a("s_waitcnt lgkmcnt(0)")
        a(f"v_readfirstlane_b32 {stmp}, {vtmp}")
        a(f"s_cmp_ge_u32 {stmp}, {target}")
        a(f"s_cbranch_scc1 {D}")
        if sleep: a(f"s_sleep {sleep}")
        a(f"s_add_u32 {sto}, {sto}, 1")
        a(f"s_cmp_lt_u32 {sto}, {cfg.lds_spin_max if cfg.lds_spin_max else cfg.spin_max}")
        a(f"s_cbranch_scc1 {L}")
        a.label(D)

    def set_exec(lo, hi):
        a(f"s_mov_b32 exec_lo, {hex(lo)}"); a(f"s_mov_b32 exec_hi, {hex(hi)}")

    def gate_late(skvh):
        if not cfg.dn_k:
            spin_v(); return
        Lw = lab("gw"); Lx = lab("gx"); Lp = lab("gp"); Ld = lab("gd")
        a("s_cmp_lg_u32 s36, 0"); a(f"s_cbranch_scc1 {Lw}")
        a("v_and_b32 v160, 15, v1"); a("v_lshlrev_b32 v160, 4, v160")
        a(f"s_lshl_b32 s28, {skvh}, 8"); a(f"s_add_u32 s28, s28, {WS_DN}"); a("v_add_u32 v165, s28, v160")
        spin_v()
        a("s_mov_b32 s31, 0")
        a.label(Lp)
        set_exec(0xffff, 0)
        a("global_load_dwordx4 v[20:23], v165, s[26:27] sc1")
        a("s_waitcnt vmcnt(0)")
        tag_check(20, "v17", "v160", "v161", "v162", True)
        a("v_cmp_eq_u32 vcc, 0, v160")
        a("s_mov_b64 exec, -1")
        a("s_bcnt1_i32_b64 s28, vcc")
        a(f"s_cmp_ge_u32 s28, {cfg.dn_k}"); a(f"s_cbranch_scc1 {Ld}")
        if cfg.sl_dn: a(f"s_sleep {cfg.sl_dn}")
        a("s_add_u32 s31, s31, 1"); a(f"s_cmp_lt_u32 s31, {cfg.spin_max}"); a(f"s_cbranch_scc1 {Lp}")
        a.label(Ld)
        arrive(C_G, "v10", "v11")
        a(f"s_branch {Lx}")
        a.label(Lw)
        if cfg.spin_prio is not None: a(f"s_setprio {cfg.spin_prio}")
        spin_lds(C_G, 1, "v10", "v160", sleep=cfg.sl_v)
        if cfg.spin_prio is not None: a(f"s_setprio {cfg.prio_late}")
        a.label(Lx)

    def spin_v():
        if cfg.spin_prio is not None: a(f"s_setprio {cfg.spin_prio}")
        spin_lds(C_V, 8, "v10", f"v{TM}" if False else "v160", sleep=cfg.sl_v)
        if cfg.spin_prio is not None: a(f"s_setprio {cfg.prio_late}")

    def arrive_rtn(cnt_off, vaddr, vone, vtmp, sdst):
        a("s_mov_b64 exec, 1")
        a(f"ds_add_rtn_u32 {vtmp}, {vaddr}, {vone} offset:{cnt_off}")
        a("s_waitcnt lgkmcnt(0)")
        a(f"v_readfirstlane_b32 {sdst}, {vtmp}")
        a("s_mov_b64 exec, -1")

    def arrive(cnt_off, vaddr, vone):
        a("s_mov_b64 exec, 1")
        a(f"ds_add_u32 {vaddr}, {vone} offset:{cnt_off}")
        a("s_mov_b64 exec, -1")

    DPP = "row_mask:0xf bank_mask:0xf"
    def allreduce8(op, regs, tmp=None):
        for r in regs: a(f"{op}_dpp {r}, {r}, {r} quad_perm:[1,0,3,2] {DPP}")
        for r in regs: a(f"{op}_dpp {r}, {r}, {r} quad_perm:[2,3,0,1] {DPP}")
        for r in regs: a(f"{op}_dpp {r}, {r}, {r} row_half_mirror {DPP}")
    def allreduce_quad(op, regs):
        for r in regs: a(f"{op}_dpp {r}, {r}, {r} quad_perm:[1,0,3,2] {DPP}")
        for r in regs: a(f"{op}_dpp {r}, {r}, {r} quad_perm:[2,3,0,1] {DPP}")
    def allreduce_x16_x32(op, regs, tmps):
        for r, t in zip(regs, tmps): a(f"v_mov_b32 {t}, {r}")
        for r, t in zip(regs, tmps): a(f"v_permlane16_swap_b32 {r}, {t}")
        for r, t in zip(regs, tmps): a(f"{op} {r}, {r}, {t}")
        for r, t in zip(regs, tmps): a(f"v_mov_b32 {t}, {r}")
        for r, t in zip(regs, tmps): a(f"v_permlane32_swap_b32 {r}, {t}")
        for r, t in zip(regs, tmps): a(f"{op} {r}, {r}, {t}")

    def tag_consts():
        for i in range(4): a(f"s_mov_b32 s{40+i}, {hex(0x07060500+i)}")
        a("s_mov_b32 s44, 0x0c0c0400"); a("s_mov_b32 s45, 0x04000c0c"); a("s_mov_b32 s46, 0xffffff00")
    def make_tag(vE, vT, t1):
        a(f"v_add_u32 {vE}, 1, {vE}")
        a(f"s_mov_b32 s28, 0x9E3779B1")
        a(f"v_mul_lo_u32 {vT}, {vE}, s28")
        a(f"v_not_b32 {t1}, {vT}")
        a(f"v_and_b32 {t1}, 1, {t1}")
        a(f"v_lshlrev_b32 {t1}, 8, {t1}")
        a(f"v_and_b32 {vT}, 0xfffffeff, {vT}")
        a(f"v_or_b32 {vT}, {vT}, {t1}")
    def tag_insert(base, vT):
        for i in range(4): a(f"v_perm_b32 v{base+i}, v{base+i}, {vT}, s{40+i}")
    def tag_check(base, vT, vacc, t1, t2, first):
        a(f"v_perm_b32 {t1}, v{base+1}, v{base}, s44")
        a(f"v_perm_b32 {t2}, v{base+3}, v{base+2}, s45")
        if first:
            a(f"v_bitop3_b32 {vacc}, {t1}, {t2}, {vT} bitop3:0x56")
        else:
            a(f"v_bitop3_b32 {t1}, {t1}, {t2}, {vT} bitop3:0x56")
            a(f"v_or_b32 {vacc}, {vacc}, {t1}")
    def tag_strip(base):
        for i in range(4): a(f"v_and_b32 v{base+i}, s46, v{base+i}")
    def poll_loop(issue, check, vacc, sleep=0, pmax=None):
        L = lab("poll"); D = lab("polld")
        a("s_mov_b32 s30, 0")
        a.label(L)
        issue()
        a("s_waitcnt vmcnt(0)")
        check()
        a(f"v_cmp_ne_u32 vcc, 0, {vacc}")
        a(f"s_cbranch_vccz {D}")
        if cfg.masked: a("s_mov_b64 exec, vcc")
        if sleep: a(f"s_sleep {sleep}")
        a("s_add_u32 s30, s30, 1")
        a(f"s_cmp_lt_u32 s30, {pmax if pmax else cfg.spin_max}")
        a(f"s_cbranch_scc1 {L}")
        a.label(D)
        if cfg.masked: a("s_mov_b64 exec, -1")

    a.raw(f"{KNAME}:")
    a("s_cmp_ge_u32 s2, 256")
    a("s_cbranch_scc1 L_end")
    if cfg.dbgout or cfg.stamps:
        for i in range(1, 16): a(f"s_mov_b32 s{64+2*i}, 0")
    stamp(0)
    a("s_load_dwordx16 s[4:19], s[0:1], 0")
    a("s_load_dwordx8 s[20:27], s[0:1], 64")
    a("v_lshrrev_b32 v2, 6, v0")
    a("v_and_b32 v1, 63, v0")
    a("v_readfirstlane_b32 s3, v2")
    a("s_getpc_b64 s[28:29]")
    a.label("L_pc")
    a("s_add_u32 s28, s28, L_roles-L_pc"); a("s_addc_u32 s29, s29, 0")
    a("s_lshl_b32 s30, s2, 2")
    a("s_load_dword s101, s[28:29], s30")
    if cfg.code_pf:
        Lpf = lab("nopf")
        a(f"s_cmp_lg_u32 s3, {cfg.code_pf_wave}"); a(f"s_cbranch_scc1 {Lpf}")
        a("s_getpc_b64 s[30:31]")
        a.label("L_pf")
        a("v_lshlrev_b32 v3, 7, v1")
        for k in range(cfg.code_pf):
            a("v_min_u32 v4, L_roles+1020-L_pf, v3")
            a(f"global_load_dword v167, v4, s[30:31]")
            if k < cfg.code_pf - 1: a("v_add_u32 v3, 0x2000, v3")
        a.label(Lpf)
    a("v_and_b32 v3, 7, v1")
    a("v_and_b32 v4, 1, v3"); a("v_lshlrev_b32 v4, 4, v4"); a("v_mov_b32 v5, 0xffff"); a("v_lshlrev_b32 v4, v4, v5")
    a("v_lshrrev_b32 v3, 1, v3")
    for w in range(4):
        a(f"v_cmp_eq_u32 vcc, {w}, v3"); a(f"v_cndmask_b32 v{12+w}, 0, v4, vcc")
    a(f"v_mov_b32 v10, {LDS_C}")
    a("v_mov_b32 v11, 1")
    tag_consts()
    Lni = lab("noinit")
    a("s_cmp_lg_u32 s3, 0"); a(f"s_cbranch_scc1 {Lni}")
    a("v_lshlrev_b32 v3, 2, v1"); a(f"v_add_u32 v3, {LDS_C}, v3"); a("v_mov_b32 v4, 0")
    set_exec(0xffff, 0); a("ds_write_b32 v3, v4"); a("s_mov_b64 exec, -1")
    a.label(Lni)
    a("s_cmp_ge_u32 s3, 8"); a("s_cbranch_scc1 L_wts")

    vE, vT = "v16", "v17"
    vKA = [2, 3, 4, 5]; vVA = 6; vKR = [7, 8, 9, 18]; vQA = 19
    QB = 20; SB = 36; KF = 52; ACC = 84; BT = 88; VB = 96; TM = 160
    a(f"s_setprio {cfg.prio_k}")
    a("v_lshrrev_b32 v20, 4, v1"); a("v_and_b32 v21, 15, v1")
    a("v_lshlrev_b32 v22, 2, v20"); a("v_lshlrev_b32 v23, 8, v20")
    for r in range(4):
        a(f"v_add_u32 v24, {r}, v22"); a("v_xor_b32 v24, v24, v21"); a(f"v_lshl_add_u32 v{vKA[r]}, v24, 4, v23")
    a(f"v_lshlrev_b32 v{vVA}, 4, v1")
    a("v_lshrrev_b32 v22, 2, v21"); a("v_and_b32 v23, 3, v21")
    a("v_lshl_add_u32 v24, v23, 2, v22"); a("v_lshlrev_b32 v24, 8, v24")
    a("v_xor_b32 v25, v23, v20")
    a("s_lshl_b32 s28, s3, 14"); a("v_add_u32 v24, s28, v24")
    a("v_lshl_add_u32 v24, v25, 4, v24")
    for jj in range(4):
        a(f"v_xor_b32 v26, {jj}, v22"); a(f"v_lshl_add_u32 v{vKR[jj]}, v26, 6, v24")
    a("v_lshrrev_b32 v22, 3, v1"); a("v_and_b32 v22, 1, v22"); a("v_lshlrev_b32 v22, 8, v22")
    a(f"v_lshl_add_u32 v{vQA}, v20, 4, v22"); a(f"v_add_u32 v{vQA}, {LDS_Q}, v{vQA}")
    a(f"v_mov_b32 v{TM}, 0")
    a("s_waitcnt lgkmcnt(0)")
    if cfg.bar_early: a("s_barrier")
    a("s_and_b32 s96, s101, 0xff"); a("s_bfe_u32 s97, s101, 0x80008"); a("s_bfe_u32 s98, s101, 0x80010"); a("s_lshr_b32 s101, s101, 24")
    if cfg.tilemap == "cu":
        a("s_lshr_b32 s28, s96, 3"); a("s_and_b32 s29, s96, 7")
        a("s_lshl_b32 s28, s28, 23"); a("s_lshl_b32 s29, s29, 17"); a("s_add_u32 s28, s28, s29"); a("s_add_u32 s28, s28, 0x700000")
        a(f"s_mul_i32 s31, s96, {cfg.rot}"); a("s_add_u32 s31, s31, s3")
    else:
        a("s_lshr_b32 s29, s96, 3"); a("s_lshl_b32 s28, s29, 23"); a("s_add_u32 s28, s28, 0x700000")
        a(f"s_mul_i32 s31, s29, {cfg.rot}"); a("s_and_b32 s29, s96, 7")
        if cfg.tilemap == "pair":
            a("s_lshl_b32 s29, s29, 3"); a("s_add_u32 s31, s31, s29"); a("s_add_u32 s31, s31, s3")
        elif cfg.tilemap == "pair2":
            a("s_add_u32 s31, s31, s29"); a("s_lshl_b32 s29, s3, 3"); a("s_add_u32 s31, s31, s29")
    a("s_add_u32 s6, s6, s28"); a("s_addc_u32 s7, s7, 0"); a("s_add_u32 s8, s8, s28"); a("s_addc_u32 s9, s9, 0")
    a("s_lshl_b32 s37, s3, 14")
    if cfg.wtab:
        packed = sum(w << (4*i) for i, w in enumerate(cfg.wtab))
        a("s_getreg_b32 s100, hwreg(HW_REG_XCC_ID, 0, 3)"); a("s_lshl_b32 s100, s100, 2")
        a(f"s_lshr_b32 s100, {hex(packed)}, s100"); a("s_and_b32 s100, s100, 15")
    vmq = []
    def vm_issue(tag): vmq.append(tag)
    def vm_wait(tag):
        idx = max(i for i, t in enumerate(vmq) if t == tag)
        n = len(vmq) - 1 - idx
        a(f"s_waitcnt vmcnt({n})")
    def vm_window(W):
        if not cfg.wtab:
            a(f"s_waitcnt vmcnt({W-1})"); return
        lo, hi = min(cfg.wtab), max(cfg.wtab)
        D = lab("win")
        for w in range(hi, lo - 1, -1):
            a(f"s_waitcnt vmcnt({w-1})")
            if w > lo:
                a(f"s_cmp_ge_u32 s100, {w}"); a(f"s_cbranch_scc1 {D}")
        a.label(D)
    if cfg.bar_first and not cfg.bar_early:
        a("s_barrier")
    if cfg.emode == "s": a("s_load_dword s99, s[26:27], 0")
    else:
        a(f"global_load_dword {vE}, v{TM}, s[26:27]" + (" sc1" if cfg.emode == "sc1" else "")); vm_issue("E")
    def tile_off(u):
        if cfg.tilemap == "cu":
            a(f"s_add_u32 s32, s31, {8*u}"); a("s_and_b32 s32, s32, 31"); a("s_lshl_b32 s32, s32, 12")
        else:
            a(f"s_add_u32 s32, s31, {64*u}"); a("s_and_b32 s32, s32, 255"); a("s_lshl_b32 s32, s32, 12")
    nissued = [1]
    def issue_k(u, r):
        if r == 0:
            tile_off(u)
            a("s_add_u32 s34, s6, s32"); a("s_addc_u32 s35, s7, 0")
            a(f"s_add_u32 s33, s37, {4096*u}"); a("s_mov_b32 m0, s33")
        a(f"global_load_lds_dwordx4 v{vKA[r]}, s[34:35] offset:{1024*r}{NTK}"); vm_issue(("k", u, r))
    def issue_v(i):
        u, r = divmod(i, 4)
        if r == 0:
            tile_off(u)
            a("s_add_u32 s38, s8, s32"); a("s_addc_u32 s39, s9, 0")
        a(f"global_load_dwordx4 v[{VB+4*i}:{VB+4*i+3}], v{vVA}, s[38:39] offset:{1024*r}{NTV}"); vm_issue(("v", i))
        if cfg.trig_c is None and i == cfg.trig - 1:
            arrive(C_V, "v10", "v11")
        if i == cfg.v2_at:
            a(f"s_setprio {cfg.prio_v2}")
    kops = [(u, r) for u in range(4) for r in range(4)]
    bar_done = False
    for i, (u, r) in enumerate(kops):
        if i >= (min(cfg.wtab) if cfg.wtab else cfg.Wk): vm_window(cfg.Wk)
        if r == 0 and u > 0: stamp(6 + u)
        issue_k(u, r)
        if i == (cfg.bar_at if cfg.bar_at else (min(cfg.wtab) if cfg.wtab else cfg.Wk)) - 1 and not cfg.bar_first and not cfg.bar_early:
            a("s_waitcnt lgkmcnt(0)"); a("s_barrier")
    stamp(1)
    a(f"s_setprio {cfg.prio_v1}")
    nv = 0
    while nv < cfg.qk_at:
        vm_window(cfg.Wk if nv < cfg.Wk else cfg.Wv); issue_v(nv); nv += 1
    vm_wait(("k", 3, 3))
    for i in range(cfg.extra):
        if nv < 16: issue_v(nv); nv += 1
    stamp(2)
    if cfg.emode == "s": a("s_waitcnt lgkmcnt(0)"); a(f"v_mov_b32 {vE}, s99")
    make_tag(vE, vT, f"v{TM}")
    if not cfg.skip_qk:
        spin_lds(C_Q, 1 if cfg.q2 else 4, "v10", f"v{TM}")
        stamp(3)
        for jj in range(4):
            a(f"ds_read_b128 v[{QB+4*jj}:{QB+4*jj+3}], v{vQA} offset:{64*jj}")
        def kread(u):
            b = KF + 16*(u & 1)
            for jj in range(4):
                a(f"ds_read_b128 v[{b+4*jj}:{b+4*jj+3}], v{vKR[jj]} offset:{4096*u}")
        kread(0); kread(1)
        for u in range(4):
            b = KF + 16*(u & 1)
            a("s_waitcnt lgkmcnt(4)" if u < 3 else "s_waitcnt lgkmcnt(0)")
            for jj in range(4):
                c = "0" if jj == 0 else f"v[{SB+4*u}:{SB+4*u+3}]"
                a(f"v_mfma_f32_16x16x32_bf16 v[{SB+4*u}:{SB+4*u+3}], v[{b+4*jj}:{b+4*jj+3}], v[{QB+4*jj}:{QB+4*jj+3}], {c}")
            if u + 2 < 4: kread(u + 2)
        nvb = [nv]
        def vpoint(k):
            for _ in range(cfg.v_pts.count(k)):
                if nvb[0] < 16:
                    a(f"s_waitcnt vmcnt({cfg.Wq-1})"); issue_v(nvb[0]); nvb[0] += 1
        vpoint(1)
        a(f"s_mov_b32 s47, {hex(SCALE)}")
        for u in range(4):
            if u == 2: vpoint(2)
            for h in range(2):
                s0 = SB + 4*u + 2*h
                t = TM + 2*h
                a(f"v_cvt_pk_bf16_f32 v{t}, v{s0}, v{s0+1}")
                a(f"v_lshlrev_b32 v{s0}, 16, v{t}")
                a(f"v_and_b32 v{s0+1}, 0xffff0000, v{t}")
                a(f"v_mul_f32 v{s0}, s47, v{s0}")
                a(f"v_mul_f32 v{s0+1}, s47, v{s0+1}")
                a(f"v_cvt_pk_bf16_f32 v{t+1}, v{s0}, v{s0+1}")
                a(f"v_lshlrev_b32 v{s0}, 16, v{t+1}")
                a(f"v_and_b32 v{s0+1}, 0xffff0000, v{t+1}")
        vpoint(3)
        a(f"v_max3_f32 v{TM}, v{SB}, v{SB+1}, v{SB+2}")
        a(f"v_max3_f32 v{TM+1}, v{SB+3}, v{SB+4}, v{SB+5}")
        a(f"v_max3_f32 v{TM+2}, v{SB+6}, v{SB+7}, v{SB+8}")
        a(f"v_max3_f32 v{TM+3}, v{SB+9}, v{SB+10}, v{SB+11}")
        a(f"v_max3_f32 v{TM}, v{TM}, v{SB+12}, v{SB+13}")
        a(f"v_max3_f32 v{TM+1}, v{TM+1}, v{SB+14}, v{SB+15}")
        a(f"v_max3_f32 v{TM}, v{TM}, v{TM+1}, v{TM+2}")
        a(f"v_max_f32 v{TM}, v{TM}, v{TM+3}")
        allreduce_x16_x32("v_max_f32", [f"v{TM}"], [f"v{TM+1}"])
        a(f"v_mov_b32 v22, v{TM}")
        a("v_lshrrev_b32 v20, 3, v1"); a("v_and_b32 v20, 1, v20"); a("v_lshlrev_b32 v20, 5, v20")
        a(f"v_add_u32 v20, {LDS_M}, v20")
        a("s_lshl_b32 s28, s3, 2"); a("v_add_u32 v21, s28, v20")
        a(f"s_mov_b32 s48, {hex(LOG2E)}")
        a("v_mul_f32 v23, s48, v22")
        vpoint(4)
        for i in range(16):
            a(f"v_fma_f32 v{SB+i}, v{SB+i}, s48, -v23")
        for i in range(16):
            a(f"v_exp_f32 v{SB+i}, v{SB+i}")
        vpoint(5)
        a(f"v_add_f32 v24, v{SB}, v{SB+1}"); a(f"v_add_f32 v25, v{SB+2}, v{SB+3}")
        for i in range(4, 16, 2):
            t = 24 + ((i >> 1) & 1)
            a(f"v_add_f32 v{t}, v{t}, v{SB+i}")
            a(f"v_add_f32 v{t}, v{t}, v{SB+i+1}")
        a(f"v_add_f32 v24, v24, v25")
        for i in range(16):
            a(f"v_cvt_pk_bf16_f32 v{SB+i}, v{SB+i}, v{SB+i}")
        vpoint(6)
        nv = nvb[0]
        stamp(4)
    else:
        a("v_mov_b32 v22, 0"); a("v_mov_b32 v24, 0"); a(f"s_mov_b32 s48, {hex(LOG2E)}")
        a("v_lshrrev_b32 v20, 3, v1"); a("v_and_b32 v20, 1, v20"); a("v_lshlrev_b32 v20, 5, v20")
        a(f"v_add_u32 v20, {LDS_M}, v20"); a("s_lshl_b32 s28, s3, 2"); a("v_add_u32 v21, s28, v20")
    def publish_ml():
        allreduce_x16_x32("v_add_f32", ["v24"], ["v25"])
        set_exec(0x101, 0); a("ds_write_b32 v21, v22"); a("ds_write_b32 v21, v24 offset:64"); a("s_mov_b64 exec, -1")
        if cfg.ml_w3:
            arrive(C_L, "v10", "v11")
            return
        arrive_rtn(C_L, "v10", "v11", f"v{TM+1}", "s49")
        Lnoml = lab("noml")
        a("s_cmp_lg_u32 s49, 7"); a(f"s_cbranch_scc1 {Lnoml}")
        a(f"ds_read_b128 v[{KF}:{KF+3}], v20"); a(f"ds_read_b128 v[{KF+4}:{KF+7}], v20 offset:16")
        a(f"ds_read_b128 v[{KF+8}:{KF+11}], v20 offset:64"); a(f"ds_read_b128 v[{KF+12}:{KF+15}], v20 offset:80")
        a("s_waitcnt lgkmcnt(0)")
        a(f"v_max3_f32 v26, v{KF}, v{KF+1}, v{KF+2}"); a(f"v_max3_f32 v27, v{KF+3}, v{KF+4}, v{KF+5}")
        a(f"v_max3_f32 v26, v26, v{KF+6}, v{KF+7}"); a("v_max_f32 v26, v26, v27")
        for w in range(8): a(f"v_sub_f32 v{KF+w}, v{KF+w}, v26")
        for w in range(8): a(f"v_mul_f32 v{KF+w}, s48, v{KF+w}")
        for w in range(8): a(f"v_exp_f32 v{KF+w}, v{KF+w}")
        for w in range(8): a(f"v_mul_f32 v{KF+w}, v{KF+w}, v{KF+8+w}")
        a(f"v_add_f32 v{KF}, v{KF}, v{KF+1}"); a(f"v_add_f32 v{KF+2}, v{KF+2}, v{KF+3}")
        a(f"v_add_f32 v{KF+4}, v{KF+4}, v{KF+5}"); a(f"v_add_f32 v{KF+6}, v{KF+6}, v{KF+7}")
        a(f"v_add_f32 v{KF}, v{KF}, v{KF+2}"); a(f"v_add_f32 v{KF+4}, v{KF+4}, v{KF+6}")
        a(f"v_add_f32 v{KF+1}, v{KF}, v{KF+4}")
        a("s_getreg_b32 s50, hwreg(HW_REG_XCC_ID, 0, 4)"); a("s_lshl_b32 s50, s50, 8")
        a(f"v_mov_b32 v{KF}, v26"); a(f"v_mov_b32 v{KF+2}, s50"); a(f"v_mov_b32 v{KF+3}, 0")
        tag_insert(KF, vT)
        a("s_lshr_b32 s28, s96, 3"); a("s_and_b32 s29, s28, 15"); a("s_lshr_b32 s28, s28, 4")
        a("s_lshl_b32 s29, s29, 9"); a("s_lshl_b32 s28, s28, 7"); a("s_add_u32 s28, s28, s29")
        a("s_and_b32 s29, s96, 7"); a("s_lshl_b32 s29, s29, 4"); a("s_add_u32 s28, s28, s29"); a(f"s_add_u32 s28, s28, {WS_ML}")
        a("v_lshrrev_b32 v27, 3, v1"); a("v_and_b32 v27, 1, v27"); a("v_lshlrev_b32 v27, 8, v27"); a("v_add_u32 v27, s28, v27")
        set_exec(0x101, 0)
        a(f"global_store_dwordx4 v27, v[{KF}:{KF+3}], s[26:27] sc1")
        a("s_mov_b64 exec, -1")
        a.label(Lnoml)
    def wave_factor():
        spin_lds(C_L, 8, "v10", f"v{TM}")
        a(f"ds_read_b128 v[{KF}:{KF+3}], v20"); a(f"ds_read_b128 v[{KF+4}:{KF+7}], v20 offset:16")
        a("v_lshrrev_b32 v28, 4, v1"); a("v_lshlrev_b32 v28, 7, v28")
        a("v_lshrrev_b32 v29, 3, v1"); a("v_and_b32 v29, 1, v29"); a("v_lshl_add_u32 v28, v29, 9, v28")
        a("v_and_b32 v29, 7, v1"); a("v_lshl_add_u32 v28, v29, 4, v28")
        a("s_lshl_b32 s28, s96, 10"); a(f"s_add_u32 s28, s28, {WS_OB}"); a("v_add_u32 v28, s28, v28")
        a("s_lshl_b32 s28, s3, 10"); a(f"s_add_u32 s28, s28, {LDS_R2}"); a(f"v_add_u32 v29, s28, v{vVA}")
        a(f"v_add_u32 v30, {LDS_R2}, v{vVA}")
        a(f"v_add_u32 v31, {WS_OBL-WS_OB}, v28")
        a("s_waitcnt lgkmcnt(0)")
        a(f"v_max3_f32 v26, v{KF}, v{KF+1}, v{KF+2}"); a(f"v_max3_f32 v27, v{KF+3}, v{KF+4}, v{KF+5}")
        a(f"v_max3_f32 v26, v26, v{KF+6}, v{KF+7}"); a("v_max_f32 v26, v26, v27")
        a("v_sub_f32 v26, v22, v26"); a("v_mul_f32 v26, s48, v26"); a("v_exp_f32 v26, v26")
    did_factor = False
    for i in range(16):
        bt = BT + 4*(i & 1)
        for w in range(4):
            a(f"v_and_b32 v{bt+w}, v{SB+i}, v{12+w}")
        vm_wait(("v", i))
        c = "0" if i == 0 else f"v[{ACC}:{ACC+3}]"
        a(f"v_mfma_f32_16x16x32_bf16 v[{ACC}:{ACC+3}], v[{VB+4*i}:{VB+4*i+3}], v[{bt}:{bt+3}], {c}")
        if i % 4 == 3 and i < 15: stamp(10 + i // 4)
        while nv < 16 and nv - (i + 1) < cfg.Wv:
            issue_v(nv); nv += 1
        if cfg.trig_c is not None and i == cfg.trig_c:
            arrive(C_V, "v10", "v11")
        if i == cfg.ml_at:
            publish_ml()
        if nv == 16 and not did_factor and i > cfg.ml_at and i >= cfg.fac_at:
            wave_factor(); did_factor = True
            a(f"s_setprio {cfg.prio_tail}")
    stamp(5)
    for e in range(4): a(f"v_mul_f32 v{ACC+e}, v{ACC+e}, v26")
    a(f"ds_write_b128 v29, v[{ACC}:{ACC+3}]")
    arrive_rtn(C_O, "v10", "v11", f"v{TM}", "s49")
    a("s_cmp_lg_u32 s49, 7"); a("s_cbranch_scc1 L_att_done")
    for w in range(8):
        a(f"ds_read_b128 v[{KF+4*w}:{KF+4*w+3}], v30 offset:{1024*w}")
    def pk(d, x, y): a(f"v_pk_add_f32 v[{d}:{d+1}], v[{x}:{x+1}], v[{y}:{y+1}]")
    a("s_waitcnt lgkmcnt(6)")
    for e in (0, 2): pk(KF+e, KF+e, KF+4+e)
    a("s_waitcnt lgkmcnt(4)")
    for e in (0, 2): pk(KF+8+e, KF+8+e, KF+12+e)
    a("s_waitcnt lgkmcnt(2)")
    for e in (0, 2): pk(KF+16+e, KF+16+e, KF+20+e)
    for e in (0, 2): pk(KF+e, KF+e, KF+8+e)
    a("s_waitcnt lgkmcnt(0)")
    for e in (0, 2): pk(KF+24+e, KF+24+e, KF+28+e)
    for e in (0, 2): pk(KF+16+e, KF+16+e, KF+24+e)
    for e in (0, 2): pk(KF+e, KF+e, KF+16+e)
    tag_insert(KF, vT)
    if cfg.local_o:
        a(f"global_store_dwordx4 v31, v[{KF}:{KF+3}], s[26:27]")
    a(f"global_store_dwordx4 v28, v[{KF}:{KF+3}], s[26:27] sc1")
    if cfg.dn_k:
        a("s_lshr_b32 s28, s96, 3"); a("s_and_b32 s29, s28, 15"); a("s_lshr_b32 s28, s28, 4")
        a("s_lshl_b32 s29, s29, 8"); a("s_lshl_b32 s28, s28, 7"); a("s_add_u32 s28, s28, s29")
        a("s_and_b32 s29, s96, 7"); a("s_lshl_b32 s29, s29, 4"); a("s_add_u32 s28, s28, s29"); a(f"s_add_u32 s28, s28, {WS_DN}")
        a("v_mov_b32 v20, s28")
        for e in range(4): a(f"v_mov_b32 v{KF+4+e}, 0")
        tag_insert(KF + 4, vT)
        a("s_mov_b64 exec, 1")
        a(f"global_store_dwordx4 v20, v[{KF+4}:{KF+7}], s[26:27] sc1")
        a("s_mov_b64 exec, -1")
    a.label("L_att_done")
    stamp(6)
    dump_stamps(8)
    a("s_endpgm")

    a.label("L_wts")
    a(f"s_setprio {cfg.prio_w}")
    a("s_sub_u32 s36, s3, 8")
    XR = 20; EX = 30; WQD = 48; FD = 68; AC = 116; BB = 140; TP = 148; TM = 160
    a("v_lshrrev_b32 v6, 3, v1"); a("v_and_b32 v7, 7, v1"); a("v_lshlrev_b32 v7, 4, v7")
    a("v_lshl_add_u32 v2, v6, 13, v7")
    a("s_movk_i32 s28, 9216")
    if cfg.f256:
        a("v_lshrrev_b32 v8, 4, v1"); a("v_and_b32 v9, 15, v1"); a("v_lshlrev_b32 v9, 4, v9"); a("v_mad_u32_u24 v3, v8, s28, v9")
    else:
        a("v_mad_u32_u24 v3, v6, s28, v7")
    a("s_movk_i32 s28, 1152"); a("v_mad_u32_u24 v4, v6, s28, v7")
    a("v_lshrrev_b32 v8, 5, v1"); a("v_and_b32 v9, 31, v1")
    a("v_mul_u32_u24 v18, 36, v9"); a("v_mad_u32_u24 v18, v8, s28, v18")
    a(f"v_mov_b32 v{TM}, 0")
    for e in range(4): a(f"v_mov_b32 v{WQD+16+e}, 0")
    a("s_mov_b32 s50, 0x00ff00ff"); a("s_mov_b32 s51, 0xff00ff00")
    a("s_mov_b32 s52, 0xff00ff00"); a("s_mov_b32 s53, 0xff00ff00")
    a("s_mov_b32 s54, 0xffff0000"); a("s_mov_b32 s55, 0xffff0000")
    stamp(11)
    a("s_waitcnt lgkmcnt(0)")
    if cfg.bar_early: a("s_barrier")
    a("s_and_b32 s96, s101, 0xff"); a("s_bfe_u32 s97, s101, 0x80008"); a("s_bfe_u32 s98, s101, 0x80010"); a("s_lshr_b32 s101, s101, 24")
    stamp(12)
    if cfg.emode != "s":
        a(f"global_load_dword v16, v{TM}, s[26:27]" + (" sc1" if cfg.emode == "sc1" else ""))
    a(f"global_load_dwordx4 v[{XR}:{XR+3}], v18, s[4:5]")
    a(f"global_load_dwordx4 v[{XR+4}:{XR+7}], v18, s[4:5] offset:16")
    a(f"global_load_dword v{XR+8}, v18, s[4:5] offset:32")
    a("s_and_b32 s56, s97, 3"); a("s_lshr_b32 s57, s97, 2")
    a(f"s_mul_i32 s28, s56, {144*8192}"); a("s_lshl_b32 s29, s57, 7"); a("s_add_u32 s28, s28, s29")
    a("s_add_u32 s10, s10, s28"); a("s_addc_u32 s11, s11, 0")
    a("s_lshl_b32 s28, s36, 16"); a("s_add_u32 s32, s10, s28"); a("s_addc_u32 s33, s11, 0")
    for i in range(4):
        a(f"global_load_dwordx4 v[{WQD+4*i}:{WQD+4*i+3}], v2, s[32:33]{NTW}")
        if i < 3:
            a(f"s_add_u32 s32, s32, {32*8192}"); a("s_addc_u32 s33, s33, 0")
    a("s_lshl_b32 s28, s36, 15"); a(f"s_add_u32 s28, s28, {128*8192}")
    a("s_add_u32 s32, s10, s28"); a("s_addc_u32 s33, s11, 0")
    set_exec(0xffffffff, 0)
    a(f"global_load_dwordx4 v[{WQD+16}:{WQD+19}], v2, s[32:33]{NTW}")
    a("s_mov_b64 exec, -1")
    stamp(13)
    if not cfg.bar_early:
        a("s_waitcnt lgkmcnt(0)"); a("s_barrier")
    if cfg.emode == "s": a("s_load_dword s99, s[26:27], 0")
    stamp(1)
    if cfg.f256:
        a("s_cmp_ge_u32 s98, 108"); a("s_cselect_b32 s28, 108, 0")
        a("s_cselect_b32 s16, s18, s16"); a("s_cselect_b32 s17, s19, s17")
        a("s_sub_u32 s29, s98, s28")
        a("s_mul_hi_u32 s58, s29, 0x55555556"); a("s_mul_i32 s59, s58, 3"); a("s_sub_u32 s59, s29, s59")
        a(f"s_mul_i32 s28, s59, {192*9216}"); a("s_min_u32 s29, s58, 35"); a("s_lshl_b32 s29, s29, 8"); a("s_add_u32 s28, s28, s29")
        a(f"s_mul_i32 s29, s36, {4*9216}"); a("s_add_u32 s28, s28, s29")
        a("s_add_u32 s16, s16, s28"); a("s_addc_u32 s17, s17, 0")
        def ffn_issue(i0_, i1_):
            for i in range(2*i0_, 2*i1_):
                a(f"global_load_dwordx4 v[{FD+4*i}:{FD+4*i+3}], v3, s[16:17]{NTW}")
                if i < 11:
                    a(f"s_add_u32 s16, s16, {16*9216}"); a("s_addc_u32 s17, s17, 0")
    else:
        a("s_mul_hi_u32 s58, s98, 0x55555556"); a("s_mul_i32 s59, s58, 3"); a("s_sub_u32 s59, s98, s59")
        a(f"s_mul_i32 s28, s59, {192*9216}"); a("s_min_u32 s29, s58, 71"); a("s_lshl_b32 s29, s29, 7"); a("s_add_u32 s28, s28, s29")
        a(f"s_mul_i32 s29, s36, {8*9216}"); a("s_add_u32 s28, s28, s29")
        a("s_add_u32 s16, s16, s28"); a("s_addc_u32 s17, s17, 0"); a("s_add_u32 s18, s18, s28"); a("s_addc_u32 s19, s19, 0")
        def ffn_issue(i0_, i1_):
            for i in range(i0_, i1_):
                a(f"global_load_dwordx4 v[{FD+8*i}:{FD+8*i+3}], v3, s[16:17]{NTW}")
                a(f"global_load_dwordx4 v[{FD+8*i+4}:{FD+8*i+7}], v3, s[18:19]{NTW}")
                if i < 5:
                    a(f"s_add_u32 s16, s16, {32*9216}"); a("s_addc_u32 s17, s17, 0"); a(f"s_add_u32 s18, s18, {32*9216}"); a("s_addc_u32 s19, s19, 0")
    def heavy_wait(n_light, n_extra):
        L1 = lab("hw"); L2 = lab("hwd")
        a("s_cmp_ge_u32 s98, 216"); a(f"s_cbranch_scc1 {L1}")
        a(f"s_waitcnt vmcnt({n_light+n_extra})"); a(f"s_branch {L2}")
        a.label(L1); a(f"s_waitcnt vmcnt({n_light})"); a.label(L2)
    if cfg.ffn_pos == "start":
        assert cfg.ffn1 == 6
        Ls = lab("ffs")
        a("s_cmp_ge_u32 s98, 216"); a(f"s_cbranch_scc1 {Ls}")
        ffn_issue(0, 6)
        a.label(Ls)
    a("v_lshrrev_b32 v6, 3, v1"); a("v_and_b32 v6, 1, v6")
    a("v_lshrrev_b32 v7, 4, v1")
    a("s_movk_i32 s28, 2304"); a("v_mul_u32_u24 v5, 0x900, v6")
    a(f"v_add_u32 v5, {LDS_T}, v5")
    a("v_and_b32 v19, 1, v7"); a("v_lshl_add_u32 v19, v19, 3, v5")
    a("v_lshl_add_u32 v5, v7, 3, v5")
    a("v_mul_u32_u24 v6, 72, v9"); a("v_mul_u32_u24 v7, 0x900, v8"); a("v_add_u32 v6, v6, v7"); a(f"v_add_u32 v6, {LDS_T}, v6")
    a("v_lshl_add_u32 v7, v8, 2, v6")
    a("v_xor_b32 v8, 1, v8"); a("v_lshl_add_u32 v8, v8, 2, v6")
    if cfg.ffn_pos == "start": heavy_wait(5, 12)
    else: a("s_waitcnt vmcnt(5)")
    stamp(2)
    for k in range(9):
        a(f"v_lshlrev_b32 v{EX+2*k}, 16, v{XR+k}"); a(f"v_and_b32 v{EX+2*k+1}, 0xffff0000, v{XR+k}")
    a(f"v_add_f32 v{TM}, v{EX}, v{EX+1}"); a(f"v_add_f32 v{TM+1}, v{EX+2}, v{EX+3}")
    for k in range(4, 18, 2):
        t = TM + ((k >> 1) & 1)
        a(f"v_add_f32 v{t}, v{t}, v{EX+k}"); a(f"v_add_f32 v{t}, v{t}, v{EX+k+1}")
    a(f"v_add_f32 v{TM}, v{TM}, v{TM+1}")
    def allreduce32(r, t):
        allreduce8("v_add_f32", [r])
        a(f"v_add_f32_dpp {r}, {r}, {r} row_mirror {DPP}")
        a(f"v_mov_b32 {t}, {r}"); a(f"v_permlane16_swap_b32 {r}, {t}"); a(f"v_add_f32 {r}, {r}, {t}")
    allreduce32(f"v{TM}", f"v{TM+1}")
    a(f"v_mul_f32 v{TM}, 0x3ae38e39, v{TM}")
    a(f"v_sub_f32 v{TM+2}, v{EX}, v{TM}"); a(f"v_mul_f32 v{TM+1}, v{TM+2}, v{TM+2}")
    a(f"v_sub_f32 v{TM+3}, v{EX+1}, v{TM}"); a(f"v_mul_f32 v{TM+4}, v{TM+3}, v{TM+3}")
    for k in range(2, 18, 2):
        a(f"v_sub_f32 v{TM+2}, v{EX+k}, v{TM}"); a(f"v_sub_f32 v{TM+3}, v{EX+k+1}, v{TM}")
        a(f"v_fmac_f32 v{TM+1}, v{TM+2}, v{TM+2}"); a(f"v_fmac_f32 v{TM+4}, v{TM+3}, v{TM+3}")
    a(f"v_add_f32 v{TM+1}, v{TM+1}, v{TM+4}")
    allreduce32(f"v{TM+1}", f"v{TM+2}")
    a(f"v_mul_f32 v{TM+1}, 0x3ae38e39, v{TM+1}")
    a(f"v_cvt_pk_bf16_f32 v{TM}, v{TM}, v{TM+1}")
    a(f"v_and_b32 v{TM+1}, 0xffff0000, v{TM}")
    a(f"v_lshlrev_b32 v{TM}, 16, v{TM}")
    a(f"v_add_f32 v{TM+1}, 0x3727c5ac, v{TM+1}")
    a(f"v_cvt_pk_bf16_f32 v{TM+1}, v{TM+1}, v{TM+1}"); a(f"v_and_b32 v{TM+1}, 0xffff0000, v{TM+1}")
    a(f"v_sqrt_f32 v{TM+1}, v{TM+1}")
    a(f"v_cvt_pk_bf16_f32 v{TM+1}, v{TM+1}, v{TM+1}"); a(f"v_and_b32 v{TM+1}, 0xffff0000, v{TM+1}")
    a(f"v_rcp_f32 v{TM+2}, v{TM+1}")
    for k in range(9):
        e0, e1 = EX + 2*k, EX + 2*k + 1
        a(f"v_sub_f32 v{e0}, v{e0}, v{TM}"); a(f"v_sub_f32 v{e1}, v{e1}, v{TM}")
        a(f"v_cvt_pk_bf16_f32 v{TM+3}, v{e0}, v{e1}")
        a(f"v_lshlrev_b32 v{e0}, 16, v{TM+3}"); a(f"v_and_b32 v{e1}, 0xffff0000, v{TM+3}")
        a(f"v_mul_f32 v{TM+4}, v{e0}, v{TM+2}"); a(f"v_mul_f32 v{TM+5}, v{e1}, v{TM+2}")
        a(f"v_fma_f32 v{e0}, -v{TM+4}, v{TM+1}, v{e0}"); a(f"v_fma_f32 v{e1}, -v{TM+5}, v{TM+1}, v{e1}")
        a(f"v_fmac_f32 v{TM+4}, v{e0}, v{TM+2}"); a(f"v_fmac_f32 v{TM+5}, v{e1}, v{TM+2}")
        a(f"v_cvt_pk_bf16_f32 v{e0}, v{TM+4}, v{TM+4}"); a(f"v_cvt_pk_bf16_f32 v{e1}, v{TM+5}, v{TM+5}")
        a(f"ds_write_b32 v7, v{e0} offset:{8*k}"); a(f"ds_write_b32 v8, v{e1} offset:{8*k}")
    if cfg.emode == "s": a("s_waitcnt lgkmcnt(0)"); a("v_mov_b32 v16, s99")
    make_tag("v16", "v17", f"v{TM}")
    stamp(3)
    def gemv_unit(dreg_list, pair, accs, first):
        for w in range(4): a(f"v_and_b32 v{BB+w}, v{pair}, v{12+w}")
        for w in range(4): a(f"v_and_b32 v{BB+4+w}, v{pair+1}, v{12+w}")
        for d, (d1, d2) in zip(dreg_list, accs):
            c1 = "0" if first else f"v[{d1}:{d1+3}]"; c2 = "0" if first else f"v[{d2}:{d2+3}]"
            a(f"v_mfma_f32_16x16x32_bf16 v[{d1}:{d1+3}], v[{d}:{d+3}], v[{BB}:{BB+3}], {c1}")
            a(f"v_mfma_f32_16x16x32_bf16 v[{d2}:{d2+3}], v[{d}:{d+3}], v[{BB+4}:{BB+7}], {c2}")
    def zsel(d1, d2):
        for e in range(4): a(f"v_cndmask_b32_e64 v{d1+e}, v{d2+e}, v{d1+e}, s[50:51]")
    a("s_mul_i32 s28, s56, 576"); a("s_lshl_b32 s29, s36, 5"); a("s_add_u32 s28, s28, s29"); a("v_add_u32 v6, s28, v5")
    for i in range(4): a(f"ds_read_b64 v[{TP+2*i}:{TP+2*i+1}], v6 offset:{128*i}")
    a("s_mul_i32 s28, s56, 576"); a("s_lshl_b32 s29, s36, 4"); a("s_add_u32 s28, s28, s29"); a("s_add_u32 s28, s28, 512"); a("v_add_u32 v6, s28, v19")
    a(f"ds_read_b64 v[{TP+8}:{TP+9}], v6")
    if cfg.ffn_pos == "ln":
        assert cfg.ffn1 == 6
        Ls = lab("ffs")
        a("s_cmp_ge_u32 s98, 216"); a(f"s_cbranch_scc1 {Ls}")
        ffn_issue(0, 6)
        a.label(Ls)
    if cfg.ffn_pos in ("start", "ln"): heavy_wait(0, 12)
    else: a("s_waitcnt vmcnt(0)")
    a("s_waitcnt lgkmcnt(0)")
    for i in range(5):
        gemv_unit([WQD + 4*i], TP + 2*i, [(AC, AC + 4)], i == 0)
    zsel(AC, AC + 4)
    a("v_lshlrev_b32 v18, 4, v1")
    a("s_lshl_b32 s28, s36, 10"); a(f"s_add_u32 s28, s28, {LDS_R1}"); a("v_add_u32 v6, s28, v18")
    a(f"ds_write_b128 v6, v[{AC}:{AC+3}]")
    arrive_rtn(C_WQ, "v10", "v11", f"v{TM}", "s49")
    Lnq = lab("noqpub")
    a("s_cmp_lg_u32 s49, 3"); a(f"s_cbranch_scc1 {Lnq}")
    a("v_and_b32 v6, 31, v1"); a("v_lshlrev_b32 v6, 4, v6"); a("v_lshrrev_b32 v7, 5, v1"); a("v_lshl_add_u32 v6, v7, 3, v6"); a(f"v_add_u32 v6, {LDS_R1}, v6")
    for w in range(4):
        for e in range(2):
            a(f"ds_read_b64 v[{EX+4*w+2*e}:{EX+4*w+2*e+1}], v6 offset:{1024*w+512*e}")
    a("v_lshrrev_b32 v8, 3, v1"); a("v_and_b32 v8, 1, v8"); a("v_lshlrev_b32 v8, 9, v8"); a("v_lshl_add_u32 v8, v7, 8, v8")
    a("v_lshrrev_b32 v9, 4, v1"); a("v_and_b32 v9, 1, v9"); a("v_lshl_add_u32 v8, v9, 7, v8")
    a("v_and_b32 v9, 7, v1"); a("v_lshl_add_u32 v8, v9, 4, v8")
    a("s_lshl_b32 s28, s97, 10"); a(f"s_add_u32 s28, s28, {WS_QB}"); a("v_add_u32 v8, s28, v8")
    a("s_waitcnt lgkmcnt(0)")
    for st in range(4):
        a(f"v_add_f32 v{EX+4*st}, v{EX+4*st}, v{EX+4*st+2}"); a(f"v_add_f32 v{EX+4*st+1}, v{EX+4*st+1}, v{EX+4*st+3}")
    for st in (0, 8):
        a(f"v_add_f32 v{EX+st}, v{EX+st}, v{EX+st+4}"); a(f"v_add_f32 v{EX+st+1}, v{EX+st+1}, v{EX+st+5}")
    a(f"v_add_f32 v{EX}, v{EX}, v{EX+8}"); a(f"v_add_f32 v{EX+2}, v{EX+1}, v{EX+9}")
    a(f"v_mov_b32 v{EX+1}, v16"); a(f"v_mov_b32 v{EX+3}, v16")
    a(f"global_store_dwordx4 v8, v[{EX}:{EX+3}], s[26:27] sc1")
    a.label(Lnq)
    stamp(4)
    Lnf1 = lab("noffn1")
    a("s_cmp_ge_u32 s98, 216"); a(f"s_cbranch_scc1 {Lnf1}")
    if cfg.ffn_pos == "q": ffn_issue(0, cfg.ffn1)
    if cfg.f256:
        a("v_lshrrev_b32 v6, 3, v1"); a("v_and_b32 v6, 1, v6")
        a("v_lshrrev_b32 v7, 4, v1")
        a("v_xor_b32 v8, v7, v6"); a("v_and_b32 v8, 1, v8"); a("v_lshlrev_b32 v8, 2, v8")
        a("v_lshrrev_b32 v7, 1, v7"); a("v_lshl_add_u32 v8, v7, 3, v8")
        a("v_mul_u32_u24 v6, 0x900, v6"); a("v_add_u32 v6, v6, v8")
        a("s_mul_i32 s28, s59, 768"); a("s_lshl_b32 s29, s36, 4"); a("s_add_u32 s28, s28, s29"); a(f"s_add_u32 s28, s28, {LDS_T}")
        a("v_add_u32 v6, s28, v6")
        for i in range(12): a(f"ds_read_b32 v{TP+i}, v6 offset:{64*i}")
    else:
        a("s_mul_i32 s28, s59, 768"); a("s_lshl_b32 s29, s36, 5"); a("s_add_u32 s28, s28, s29"); a("v_add_u32 v6, s28, v5")
        for i in range(6): a(f"ds_read_b64 v[{TP+2*i}:{TP+2*i+1}], v6 offset:{128*i}")
    a("s_waitcnt lgkmcnt(0)")
    if cfg.wait_ffn1: a("s_waitcnt vmcnt(0)")
    a.label(Lnf1)
    a("s_lshr_b32 s28, s96, 3"); a("s_lshr_b32 s60, s28, 4"); a("s_and_b32 s61, s28, 15")
    if cfg.q2:
        Lo = lab("q1o"); Lj = lab("q1j")
        a("s_cmp_lg_u32 s36, 0"); a(f"s_cbranch_scc1 {Lo}")
        a("s_lshl_b32 s28, s57, 12"); a("s_lshr_b32 s29, s56, 1"); a("s_lshl_b32 s29, s29, 9"); a("s_add_u32 s28, s28, s29")
        a("s_and_b32 s29, s56, 1"); a("s_lshl_b32 s29, s29, 7"); a("s_add_u32 s28, s28, s29"); a(f"s_add_u32 s28, s28, {WS_QB}")
        a("v_and_b32 v6, 3, v1"); a("v_lshlrev_b32 v6, 10, v6")
        a("v_lshrrev_b32 v7, 2, v1"); a("v_and_b32 v7, 7, v7"); a("v_lshl_add_u32 v6, v7, 4, v6")
        a("v_lshrrev_b32 v8, 5, v1"); a("v_lshl_add_u32 v6, v8, 8, v6"); a("v_add_u32 v6, s28, v6")
        a("s_lshl_b32 s28, s57, 9"); a("s_lshl_b32 s29, s56, 7"); a("s_add_u32 s28, s28, s29"); a(f"s_add_u32 s28, s28, {WS_QF}")
        a("v_lshl_add_u32 v8, v7, 4, s28")
        G = EX
        def iss():
            a(f"global_load_dwordx4 v[{G}:{G+3}], v6, s[26:27] sc1")
        def chk():
            a(f"v_bitop3_b32 v{TM}, v{G+1}, v{G+3}, v16 bitop3:0x7e")
        Lq0 = lab("q0"); Lq1 = lab("q1"); Lq2 = lab("q2")
        iss()
        a("s_cmp_ge_u32 s98, 216"); a(f"s_cbranch_scc1 {Lq0}")
        ffn_issue(cfg.ffn1, 6)
        a(f"s_waitcnt vmcnt({2*(6-cfg.ffn1)})"); a(f"s_branch {Lq1}")
        a.label(Lq0); a("s_waitcnt vmcnt(0)"); a.label(Lq1)
        chk()
        a(f"v_cmp_ne_u32 vcc, 0, v{TM}")
        a(f"s_cbranch_vccz {Lq2}")
        if cfg.masked: a("s_mov_b64 exec, vcc")
        poll_loop(iss, chk, f"v{TM}", sleep=cfg.sl_q, pmax=cfg.pmax_q)
        a.label(Lq2)
        allreduce_quad("v_add_f32", [f"v{G}", f"v{G+2}"])
        a(f"v_mov_b32 v{G+1}, v{G}"); a(f"v_mov_b32 v{G+3}, v{G+2}")
        a(f"v_permlane32_swap_b32 v{G}, v{G+1}"); a(f"v_permlane32_swap_b32 v{G+2}, v{G+3}")
        for k, r in enumerate((G, G + 2, G + 1, G + 3)):
            a(f"v_cvt_pk_bf16_f32 v{G+4+k}, v{r}, v{r}")
        tag_insert(G + 4, "v17")
        set_exec(0x11111111, 0)
        a(f"global_store_dwordx4 v8, v[{G+4}:{G+7}], s[26:27] sc1")
        a("s_mov_b64 exec, -1")
        a(f"s_branch {Lj}")
        a.label(Lo)
        a("s_cmp_ge_u32 s98, 216"); a(f"s_cbranch_scc1 {Lj}")
        ffn_issue(cfg.ffn1, 6)
        a.label(Lj)
    else:
        a("s_lshr_b32 s28, s96, 3"); a("s_lshr_b32 s60, s28, 4"); a("s_and_b32 s61, s28, 15")
        a("s_lshl_b32 s28, s61, 2"); a("s_add_u32 s28, s28, s36"); a("s_lshl_b32 s28, s28, 12")
        a("s_lshl_b32 s29, s60, 9"); a("s_add_u32 s28, s28, s29"); a(f"s_add_u32 s28, s28, {WS_QB}")
        a("v_and_b32 v6, 3, v1"); a("v_lshlrev_b32 v6, 10, v6")
        a("v_lshrrev_b32 v7, 2, v1"); a("v_and_b32 v7, 7, v7"); a("v_lshl_add_u32 v6, v7, 4, v6")
        a("v_lshrrev_b32 v8, 5, v1"); a("v_lshl_add_u32 v6, v8, 7, v6"); a("v_add_u32 v6, s28, v6")
        G = EX
        def iss():
            a(f"global_load_dwordx4 v[{G}:{G+3}], v6, s[26:27] sc1")
            a(f"global_load_dwordx4 v[{G+4}:{G+7}], v6, s[26:27] offset:256 sc1")
        def chk():
            a(f"v_bitop3_b32 v{TM}, v{G+1}, v{G+3}, v16 bitop3:0x7e")
            a(f"v_bitop3_b32 v{TM+1}, v{G+5}, v{G+7}, v16 bitop3:0x7e")
            a(f"v_or_b32 v{TM}, v{TM}, v{TM+1}")
        if cfg.x_noq:
            Lx = lab("xq")
            a("s_cmp_ge_u32 s98, 216"); a(f"s_cbranch_scc1 {Lx}")
            if cfg.ffn1 < 6: ffn_issue(cfg.ffn1, 6)
            a.label(Lx)
        elif cfg.b2_early and cfg.ffn1 < 6:
            Lq0 = lab("q0"); Lq1 = lab("q1"); Lq2 = lab("q2")
            iss()
            a("s_cmp_ge_u32 s98, 216"); a(f"s_cbranch_scc1 {Lq0}")
            ffn_issue(cfg.ffn1, 6)
            a(f"s_waitcnt vmcnt({2*(6-cfg.ffn1)})"); a(f"s_branch {Lq1}")
            a.label(Lq0); a("s_waitcnt vmcnt(0)"); a.label(Lq1)
            chk()
            a(f"v_cmp_ne_u32 vcc, 0, v{TM}")
            a(f"s_cbranch_vccz {Lq2}")
            if cfg.masked: a("s_mov_b64 exec, vcc")
            poll_loop(iss, chk, f"v{TM}", sleep=cfg.sl_q, pmax=cfg.pmax_q)
            a.label(Lq2)
        else:
            poll_loop(iss, chk, f"v{TM}", sleep=cfg.sl_q, pmax=cfg.pmax_q)
        qv = [G, G + 2, G + 4, G + 6]
        allreduce_quad("v_add_f32", [f"v{r}" for r in qv])
        for r in qv: a(f"v_cvt_pk_bf16_f32 v{r}, v{r}, v{r}")
        a("s_lshr_b32 s28, s36, 1"); a("s_lshl_b32 s28, s28, 8"); a("s_and_b32 s29, s36, 1"); a("s_lshl_b32 s29, s29, 7")
        a("s_add_u32 s28, s28, s29"); a(f"s_add_u32 s28, s28, {LDS_Q}")
        a("v_lshlrev_b32 v8, 6, v8"); a("v_lshl_add_u32 v8, v7, 1, v8"); a("v_add_u32 v8, s28, v8")
        a("s_mov_b32 exec_lo, 0x11111111"); a("s_mov_b32 exec_hi, 0x11111111")
        for r in range(4): a(f"ds_write_b16 v8, v{qv[r]} offset:{16*r}")
        a("s_mov_b64 exec, -1")
        arrive(C_Q, "v10", "v11")
        stamp(5)


    Lnf2 = lab("noffn2")
    a("s_cmp_ge_u32 s98, 216"); a(f"s_cbranch_scc1 {Lnf2}")
    if not (cfg.q2 or (cfg.b2_early and cfg.ffn1 < 6)): ffn_issue(cfg.ffn1, 6)
    if cfg.f256:
        for i in range(12):
            b = BB + 4*(i & 1)
            for w in range(4): a(f"v_and_b32 v{b+w}, v{TP+i}, v{12+w}")
            if i >= 2*cfg.ffn1: a(f"s_waitcnt vmcnt({11-i})")
            c = "0" if i == 0 else f"v[{AC}:{AC+3}]"
            a(f"v_mfma_f32_16x16x32_bf16 v[{AC}:{AC+3}], v[{FD+4*i}:{FD+4*i+3}], v[{b}:{b+3}], {c}")
        a("s_lshl_b32 s28, s36, 10"); a(f"s_add_u32 s28, s28, {LDS_R1+4096}"); a("v_add_u32 v6, s28, v18")
        a(f"ds_write_b128 v6, v[{AC}:{AC+3}]")
        arrive_rtn(C_GU, "v10", "v11", f"v{TM}", "s49")
        a("s_cmp_lg_u32 s49, 3"); a(f"s_cbranch_scc1 {Lnf2}")
        a(f"v_add_u32 v6, {LDS_R1+4096}, v18")
        for w in range(4): a(f"ds_read_b128 v[{FD+4*w}:{FD+4*w+3}], v6 offset:{1024*w}")
        a("s_lshl_b32 s28, s98, 10"); a(f"s_add_u32 s28, s28, {WS_GU}"); a("v_add_u32 v8, s28, v18")
        a("s_waitcnt lgkmcnt(0)")
        for e in range(4): a(f"v_add_f32 v{FD+e}, v{FD+e}, v{FD+4+e}")
        for e in range(4): a(f"v_add_f32 v{FD+8+e}, v{FD+8+e}, v{FD+12+e}")
        for e in range(4): a(f"v_add_f32 v{FD+e}, v{FD+e}, v{FD+8+e}")
        tag_insert(FD, "v17")
        a(f"global_store_dwordx4 v8, v[{FD}:{FD+3}], s[26:27] sc1")
    else:
        for i in range(6):
            if i >= cfg.ffn1: a(f"s_waitcnt vmcnt({10-2*i})")
            gemv_unit([FD + 8*i, FD + 8*i + 4], TP + 2*i, [(AC, AC + 4), (AC + 8, AC + 12)], i == 0)
        zsel(AC, AC + 4); zsel(AC + 8, AC + 12)
        a("s_lshl_b32 s28, s36, 11"); a(f"s_add_u32 s28, s28, {LDS_R1+4096}"); a("v_add_u32 v6, s28, v18")
        a(f"ds_write_b128 v6, v[{AC}:{AC+3}]"); a(f"ds_write_b128 v6, v[{AC+8}:{AC+11}] offset:1024")
        arrive_rtn(C_GU, "v10", "v11", f"v{TM}", "s49")
        a("s_cmp_lg_u32 s49, 3"); a(f"s_cbranch_scc1 {Lnf2}")
        a("v_and_b32 v6, 31, v1"); a("v_lshlrev_b32 v6, 4, v6"); a("v_lshrrev_b32 v7, 5, v1"); a("v_lshl_add_u32 v6, v7, 10, v6"); a(f"v_add_u32 v6, {LDS_R1+4096}, v6")
        for w in range(4):
            for e in range(2):
                r = FD + 8*w + 4*e
                a(f"ds_read_b128 v[{r}:{r+3}], v6 offset:{2048*w+512*e}")
        a("v_lshrrev_b32 v8, 3, v1"); a("v_and_b32 v8, 1, v8"); a("v_lshlrev_b32 v8, 8, v8"); a("v_lshl_add_u32 v8, v7, 9, v8")
        a("v_lshrrev_b32 v9, 4, v1"); a("v_and_b32 v9, 1, v9"); a("v_lshl_add_u32 v8, v9, 7, v8")
        a("v_and_b32 v9, 7, v1"); a("v_lshl_add_u32 v8, v9, 4, v8")
        a("s_lshl_b32 s28, s98, 10"); a(f"s_add_u32 s28, s28, {WS_GU}"); a("v_add_u32 v8, s28, v8")
        a("s_waitcnt lgkmcnt(0)")
        for w in range(4):
            for e in range(4): a(f"v_add_f32 v{FD+8*w+e}, v{FD+8*w+e}, v{FD+8*w+4+e}")
        for w in (0, 2):
            for e in range(4): a(f"v_add_f32 v{FD+8*w+e}, v{FD+8*w+e}, v{FD+8*w+8+e}")
        for e in range(4): a(f"v_add_f32 v{FD+e}, v{FD+e}, v{FD+16+e}")
        tag_insert(FD, "v17")
        a(f"global_store_dwordx4 v8, v[{FD}:{FD+3}], s[26:27] sc1")
    a.label(Lnf2)
    stamp(6)
    if cfg.q2:
        Lq3 = lab("q3")
        a("s_cmp_lg_u32 s36, 1"); a(f"s_cbranch_scc1 {Lq3}")
        a("s_lshl_b32 s28, s61, 11"); a("s_lshl_b32 s29, s60, 8"); a("s_add_u32 s28, s28, s29"); a(f"s_add_u32 s28, s28, {WS_QF}")
        a("v_lshrrev_b32 v7, 4, v1"); a("v_lshlrev_b32 v6, 9, v7")
        a("v_lshrrev_b32 v8, 3, v1"); a("v_and_b32 v8, 1, v8"); a("v_lshl_add_u32 v6, v8, 7, v6")
        a("v_and_b32 v9, 7, v1"); a("v_lshl_add_u32 v6, v9, 4, v6"); a("v_add_u32 v6, s28, v6")
        a("v_lshlrev_b32 v7, 7, v7"); a("v_lshl_add_u32 v7, v8, 6, v7"); a("v_lshl_add_u32 v7, v9, 1, v7"); a(f"v_add_u32 v7, {LDS_Q}, v7")
        G = EX
        def iss():
            a(f"global_load_dwordx4 v[{G}:{G+3}], v6, s[26:27] sc1")
        def chk():
            tag_check(G, "v17", f"v{TM}", f"v{TM+1}", f"v{TM+2}", True)
        poll_loop(iss, chk, f"v{TM}", sleep=cfg.sl_q2)
        for r in range(4): a(f"ds_write_b16_d16_hi v7, v{G+r} offset:{16*r}")
        arrive(C_Q, "v10", "v11")
        stamp(5)
        a.label(Lq3)
    if cfg.ml_w3:
        Lm = lab("noml3")
        a("s_cmp_lg_u32 s36, 3"); a(f"s_cbranch_scc1 {Lm}")
        MB = EX
        a("v_lshrrev_b32 v7, 3, v1"); a("v_and_b32 v7, 1, v7"); a("v_lshlrev_b32 v6, 5, v7"); a(f"v_add_u32 v6, {LDS_M}, v6")
        a("s_lshl_b32 s29, s61, 9"); a("s_lshl_b32 s28, s60, 7"); a("s_add_u32 s28, s28, s29")
        a("s_and_b32 s29, s96, 7"); a("s_lshl_b32 s29, s29, 4"); a("s_add_u32 s28, s28, s29"); a(f"s_add_u32 s28, s28, {WS_ML}")
        a("v_lshlrev_b32 v7, 8, v7"); a("v_add_u32 v7, s28, v7")
        a(f"s_mov_b32 s48, {hex(LOG2E)}")
        if cfg.spin_prio is not None: a(f"s_setprio {cfg.spin_prio}")
        spin_lds(C_L, 8, "v10", f"v{TM}", sleep=cfg.sl_l)
        a(f"s_setprio {cfg.prio_w}")
        a(f"ds_read_b128 v[{MB}:{MB+3}], v6"); a(f"ds_read_b128 v[{MB+4}:{MB+7}], v6 offset:16")
        a(f"ds_read_b128 v[{MB+8}:{MB+11}], v6 offset:64"); a(f"ds_read_b128 v[{MB+12}:{MB+15}], v6 offset:80")
        a("s_waitcnt lgkmcnt(0)")
        a(f"v_max3_f32 v8, v{MB}, v{MB+1}, v{MB+2}"); a(f"v_max3_f32 v9, v{MB+3}, v{MB+4}, v{MB+5}")
        a(f"v_max3_f32 v8, v8, v{MB+6}, v{MB+7}"); a("v_max_f32 v8, v8, v9")
        for w in range(8): a(f"v_sub_f32 v{MB+w}, v{MB+w}, v8")
        for w in range(8): a(f"v_mul_f32 v{MB+w}, s48, v{MB+w}")
        for w in range(8): a(f"v_exp_f32 v{MB+w}, v{MB+w}")
        for w in range(8): a(f"v_mul_f32 v{MB+w}, v{MB+w}, v{MB+8+w}")
        a(f"v_add_f32 v{MB}, v{MB}, v{MB+1}"); a(f"v_add_f32 v{MB+2}, v{MB+2}, v{MB+3}")
        a(f"v_add_f32 v{MB+4}, v{MB+4}, v{MB+5}"); a(f"v_add_f32 v{MB+6}, v{MB+6}, v{MB+7}")
        a(f"v_add_f32 v{MB}, v{MB}, v{MB+2}"); a(f"v_add_f32 v{MB+4}, v{MB+4}, v{MB+6}")
        a(f"v_add_f32 v{MB+1}, v{MB}, v{MB+4}")
        a("s_getreg_b32 s28, hwreg(HW_REG_XCC_ID, 0, 4)"); a("s_lshl_b32 s28, s28, 8")
        a(f"v_mov_b32 v{MB}, v8"); a(f"v_mov_b32 v{MB+2}, s28"); a(f"v_mov_b32 v{MB+3}, 0")
        tag_insert(MB, "v17")
        set_exec(0x101, 0)
        a(f"global_store_dwordx4 v7, v[{MB}:{MB+3}], s[26:27] sc1")
        a("s_mov_b64 exec, -1")
        a.label(Lm)
    a("s_cmp_lt_u32 s101, 144"); a("s_cbranch_scc1 L_wtype")
    a("s_cmp_lt_u32 s101, 160"); a("s_cbranch_scc1 L_wts_done")

    OA = EX
    def late_loads(sb):
        n = 0
        for t in range(4):
            for cg in range(3):
                r = FD + 12*t + 4*cg
                if n >= cfg.Wl: a(f"s_waitcnt vmcnt({cfg.Wl-1})")
                a(f"global_load_dwordx4 v[{r}:{r+3}], v4, s[{sb}:{sb+1}] offset:{128*cg}{NTL}")
                n += 1
            if t < 3:
                a(f"s_add_u32 s{sb}, s{sb}, 9216"); a(f"s_addc_u32 s{sb+1}, s{sb+1}, 0")
    BBUF = [BB, 152]
    def late_bops(t):
        b = BBUF[t & 1]
        L = [f"v_cndmask_b32_e64 v{TP}, v{OA+t}, v{OA+4+t}, s[52:53]",
             f"v_cndmask_b32_e64 v{TP+2}, v{OA+4+t}, v{OA+t}, s[52:53]"]
        L += [f"v_and_b32 v{b+w}, v{TP}, v{12+w}" for w in range(2)]
        L += [f"v_mov_b32_dpp v{TP+1}, v{TP+2} row_ror:8 {DPP}"]
        L += [f"v_and_b32 v{b+w}, v{TP}, v{12+w}" for w in range(2, 4)]
        L += [f"v_and_b32 v{b+4+w}, v{TP+1}, v{12+w}" for w in range(4)]
        return L
    def late_gemv():
        for ins in late_bops(0): a(ins)
        for t in range(4):
            b = BBUF[t & 1]
            nxt = late_bops(t + 1) if t < 3 else []
            k = 0
            for cg in range(3):
                d = FD + 12*t + 4*cg
                for half in range(2):
                    acc = AC + 8*cg + 4*half
                    c = "0" if t == 0 else f"v[{acc}:{acc+3}]"
                    a(f"v_mfma_f32_16x16x32_bf16 v[{acc}:{acc+3}], v[{d}:{d+3}], v[{b+4*half}:{b+4*half+3}], {c}")
                    for ins in nxt[k:k+2]: a(ins)
                    k += 2
            for ins in nxt[k:]: a(ins)
    def late_addr(sj, sslot):
        a("v_lshrrev_b32 v9, 3, v1"); a("v_and_b32 v9, 3, v9"); a("s_movk_i32 s28, 10240"); a("v_mul_u32_u24 v9, s28, v9")
        a("v_and_b32 v8, 7, v1"); a("v_lshl_add_u32 v9, v8, 4, v9")
        a(f"s_mul_i32 s28, {sj}, 12"); a("s_lshl_b32 s29, s36, 2"); a("s_add_u32 s28, s28, s29"); a("s_mul_i32 s28, s28, 10240")
        a(f"s_lshl_b32 s29, {sslot}, 7"); a("s_add_u32 s28, s28, s29"); a(f"s_add_u32 s28, s28, {WS_FIN}"); a("v_add_u32 v9, s28, v9")
        a("s_mul_i32 s28, s36, 3072"); a(f"s_add_u32 s28, s28, {LDS_R3}"); a("v_add_u32 v8, s28, v18")
        a("s_lshl_b32 s28, s36, 10"); a(f"s_add_u32 s28, s28, {LDS_R3}"); a("v_add_u32 v19, s28, v18")
    def late_reduce(nW):
        for cg in range(3):
            zsel(AC + 8*cg, AC + 8*cg + 4)
            a(f"ds_write_b128 v8, v[{AC+8*cg}:{AC+8*cg+3}] offset:{1024*cg}")
        arrive(C_LATE, "v10", "v11")
        if nW == 4:
            a("s_cmp_eq_u32 s36, 3"); a("s_cbranch_scc1 L_wts_done")
        spin_lds(C_LATE, nW, "v10", f"v{TM}")
        r = FD
        for w in range(nW):
            a(f"ds_read_b128 v[{r+4*w}:{r+4*w+3}], v19 offset:{3072*w}")
        def pk(d, x, y): a(f"v_pk_add_f32 v[{d}:{d+1}], v[{x}:{x+1}], v[{y}:{y+1}]")
        a(f"s_waitcnt lgkmcnt({nW-2})")
        for e in (0, 2): pk(r+e, r+e, r+4+e)
        a("s_waitcnt lgkmcnt(0)")
        if nW == 4:
            for e in (0, 2): pk(r+8+e, r+8+e, r+12+e)
        for e in (0, 2): pk(r+e, r+e, r+8+e)
        for e in range(4): a(f"v_mov_b32 v{r+4+e}, v{r+e}")
        for e in range(4): a(f"v_permlane32_swap_b32 v{r+e}, v{r+4+e}")
        for e in (0, 2): pk(r+e, r+e, r+4+e)
        tag_insert(r, "v17")
        set_exec(0xffffffff, 0)
        a(f"global_store_dwordx4 v9, v[{r}:{r+3}], s[26:27] sc1")
        a("s_mov_b64 exec, -1")

    a("; ---- O type ----")
    a("s_sub_u32 s28, s101, 160"); a("s_mul_hi_u32 s62, s28, 0x55555556"); a("s_mul_i32 s29, s62, 3"); a("s_sub_u32 s63, s28, s29")
    a("v_and_b32 v5, 7, v1"); a("v_lshlrev_b32 v5, 4, v5"); a("s_lshl_b32 s28, s62, 8"); a(f"s_add_u32 s28, s28, {WS_ML}"); a("v_add_u32 v5, s28, v5")
    a(f"s_mul_i32 s28, s62, {128*1152}"); a("s_mul_i32 s29, s63, 384"); a("s_add_u32 s28, s28, s29"); a(f"s_mul_i32 s29, s36, {32*1152}"); a("s_add_u32 s28, s28, s29")
    a("s_add_u32 s12, s12, s28"); a("s_addc_u32 s13, s13, 0")
    a("s_lshr_b32 s28, s62, 1"); a("s_lshl_b32 s28, s28, 13"); a("s_and_b32 s29, s62, 1"); a("s_lshl_b32 s29, s29, 9"); a("s_add_u32 s28, s28, s29")
    a("s_lshl_b32 s29, s36, 7"); a("s_add_u32 s28, s28, s29"); a(f"s_add_u32 s28, s28, {WS_OB}")
    a("v_and_b32 v6, 7, v1"); a("v_lshlrev_b32 v6, 10, v6"); a("v_lshrrev_b32 v7, 3, v1"); a("v_lshl_add_u32 v6, v7, 4, v6"); a("v_add_u32 v6, s28, v6")
    a(f"v_add_u32 v7, {16*8*1024}, v6")
    late_addr("s63", "s62")
    a(f"s_mov_b32 s48, {hex(LOG2E)}")
    a("s_lshr_b32 s64x, s62, 1".replace("s64x", "s63") if False else "s_lshr_b32 s57, s62, 1")
    gate_late("s57")
    a(f"s_setprio {cfg.prio_late}")
    stamp(7)
    late_loads(12)
    G = XR
    def ml_factor():
        for bb in range(2):
            g = G + 4*bb
            a(f"v_and_b32 v{g}, s46, v{g}"); a(f"v_and_b32 v{g+1}, s46, v{g+1}")
            a(f"v_mov_b32 v{g+3}, v{g+2}")
            a(f"v_mov_b32 v{g+2}, v{g}")
        allreduce8("v_max_f32", [f"v{G+2}", f"v{G+6}"])
        for bb in range(2):
            g = G + 4*bb
            a(f"v_sub_f32 v{g}, v{g}, v{g+2}"); a(f"v_mul_f32 v{g}, s48, v{g}"); a(f"v_exp_f32 v{g}, v{g}")
        for bb in range(2):
            g = G + 4*bb
            a(f"v_mul_f32 v{g+1}, v{g+1}, v{g}")
        allreduce8("v_add_f32", [f"v{G+1}", f"v{G+5}"])
        for bb in range(2):
            g = G + 4*bb
            a(f"v_rcp_f32 v{g+2}, v{g+1}")
        for bb in range(2):
            g = G + 4*bb
            a(f"v_mul_f32 v{28+bb}, v{g}, v{g+2}")
        if cfg.local_o:
            a("s_getreg_b32 s28, hwreg(HW_REG_XCC_ID, 0, 4)")
            for bb, va in ((0, "v6"), (1, "v7")):
                a(f"v_lshrrev_b32 v{TM}, 8, v{G+4*bb+3}")
                a(f"v_cmp_eq_u32 vcc, s28, v{TM}")
                a(f"v_add_u32 v{TM+1}, {WS_OBL-WS_OB}, {va}")
                a(f"v_cndmask_b32 {va}, {va}, v{TM+1}, vcc")
    Lp = lab("opoll"); Lf = lab("opollf"); Ld = lab("opolld"); Lr = lab("opollr")
    a("s_mov_b32 s30, 0"); a("s_mov_b32 s31, 0")
    a("s_mov_b64 s[32:33], -1"); a("s_mov_b64 s[34:35], -1")
    a.label(Lp)
    for bb, va in ((0, "v6"), (1, "v7")):
        Ls = lab("oskip"); Lm = lab("oskipm")
        a(f"s_mov_b64 exec, s[{32+2*bb}:{33+2*bb}]")
        a(f"s_cbranch_execz {Ls}")
        a("s_cmp_lg_u32 s31, 0"); a(f"s_cbranch_scc1 {Lm}")
        a(f"global_load_dwordx4 v[{G+4*bb}:{G+4*bb+3}], v5, s[26:27] offset:{128*bb} sc1")
        a.label(Lm)
        a(f"global_load_dwordx4 v[{OA+4*bb}:{OA+4*bb+3}], {va}, s[26:27] sc1")
        a.label(Ls)
    a("s_mov_b64 exec, -1")
    a("s_waitcnt vmcnt(0)")
    a("s_mov_b64 s[38:39], 0"); a("s_mov_b64 s[56:57], 0")
    a("s_cmp_lg_u32 s31, 0"); a(f"s_cbranch_scc1 {Lf}")
    tag_check(G, "v17", f"v{TM}", f"v{TM+1}", f"v{TM+2}", True)
    tag_check(G + 4, "v17", f"v{TM+3}", f"v{TM+1}", f"v{TM+2}", True)
    a(f"v_cmp_ne_u32 s[38:39], 0, v{TM}")
    a(f"v_cmp_ne_u32 s[56:57], 0, v{TM+3}")
    a("s_or_b64 s[58:59], s[38:39], s[56:57]")
    a(f"s_cbranch_scc1 {Lf}")
    ml_factor()
    a("s_mov_b32 s31, 1")
    a.label(Lf)
    tag_check(OA, "v17", f"v{TM}", f"v{TM+1}", f"v{TM+2}", True)
    tag_check(OA + 4, "v17", f"v{TM+3}", f"v{TM+1}", f"v{TM+2}", True)
    a(f"v_cmp_ne_u32 s[32:33], 0, v{TM}")
    a(f"v_cmp_ne_u32 s[34:35], 0, v{TM+3}")
    a("s_or_b64 s[32:33], s[32:33], s[38:39]")
    a("s_or_b64 s[34:35], s[34:35], s[56:57]")
    a("s_or_b64 s[58:59], s[32:33], s[34:35]")
    a(f"s_cbranch_scc0 {Ld}")
    if cfg.sl_o: a(f"s_sleep {cfg.sl_o}")
    a("s_add_u32 s30, s30, 1"); a(f"s_cmp_lt_u32 s30, {cfg.spin_max}"); a(f"s_cbranch_scc1 {Lp}")
    a.label(Ld)
    stamp(8)
    tag_strip(OA); tag_strip(OA + 4)
    for e in (0, 2): a(f"v_pk_mul_f32 v[{OA+e}:{OA+e+1}], v[{OA+e}:{OA+e+1}], v[28:29] op_sel_hi:[1,0]")
    for e in (4, 6): a(f"v_pk_mul_f32 v[{OA+e}:{OA+e+1}], v[{OA+e}:{OA+e+1}], v[28:29] op_sel:[0,1] op_sel_hi:[1,1]")
    allreduce8("v_add_f32", [f"v{OA+e}" for e in range(8)])
    for e in range(8): a(f"v_cvt_pk_bf16_f32 v{OA+e}, v{OA+e}, v{OA+e}")
    late_gemv()
    late_reduce(4)
    stamp(9)
    a("s_branch L_wts_done")

    a.label("L_wtype")
    a("; ---- W type ----")
    a("s_cmp_eq_u32 s36, 3"); a("s_cbranch_scc1 L_final")
    a("s_mul_hi_u32 s58, s101, 0x55555556"); a("s_mul_i32 s59, s58, 3"); a("s_sub_u32 s59, s101, s59")
    if cfg.late_gather: spin_lds(C_V, cfg.late_gather, "v10", f"v{TM}", sleep=cfg.sl_v)
    if cfg.f256:
        a("s_mul_i32 s28, s58, 3"); a("s_add_u32 s28, s28, s36"); a("s_lshr_b32 s29, s28, 2"); a("s_and_b32 s28, s28, 3")
        a("s_mul_i32 s29, s29, 3072"); a("s_lshl_b32 s28, s28, 8"); a("s_add_u32 s28, s28, s29"); a(f"s_add_u32 s28, s28, {WS_GU}")
        a("v_and_b32 v6, 3, v1"); a("v_cmp_ne_u32 s[56:57], 3, v6"); a("v_cndmask_b32_e64 v6, 0, v6, s[56:57]")
        a("v_lshlrev_b32 v6, 10, v6")
        a("v_lshrrev_b32 v7, 2, v1"); a("v_and_b32 v7, 1, v7"); a(f"v_mul_u32_u24 v7, {hex(108*1024)}, v7"); a("v_add_u32 v6, v6, v7")
        a("v_lshrrev_b32 v7, 3, v1"); a("v_lshl_add_u32 v6, v7, 4, v6"); a("v_add_u32 v6, s28, v6")
    else:
        a("s_mul_i32 s28, s58, 3"); a("s_add_u32 s28, s28, s36"); a("s_lshr_b32 s29, s28, 1"); a("s_and_b32 s28, s28, 1")
        a("s_mul_i32 s29, s29, 3072"); a("s_lshl_b32 s28, s28, 7"); a("s_add_u32 s28, s28, s29"); a(f"s_add_u32 s28, s28, {WS_GU}")
        a("v_and_b32 v6, 3, v1"); a("v_cmp_ne_u32 s[56:57], 3, v6"); a("v_cndmask_b32_e64 v6, 0, v6, s[56:57]")
        a("v_lshlrev_b32 v6, 10, v6")
        a("v_lshrrev_b32 v7, 2, v1"); a("v_and_b32 v7, 1, v7"); a("v_lshl_add_u32 v6, v7, 9, v6")
        a("v_lshrrev_b32 v7, 3, v1"); a("v_lshl_add_u32 v6, v7, 4, v6"); a("v_add_u32 v6, s28, v6")
    def iss():
        a(f"global_load_dwordx4 v[{OA}:{OA+3}], v6, s[26:27] sc1")
        a(f"global_load_dwordx4 v[{OA+4}:{OA+7}], v6, s[26:27] offset:{128 if cfg.f256 else 256} sc1")
    def chk():
        tag_check(OA, "v17", f"v{TM}", f"v{TM+1}", f"v{TM+2}", True)
        tag_check(OA + 4, "v17", f"v{TM}", f"v{TM+1}", f"v{TM+2}", False)
    def w2_setup():
        a(f"s_mul_i32 s28, s58, {96*1152}"); a("s_mul_i32 s29, s59, 384"); a("s_add_u32 s28, s28, s29"); a(f"s_mul_i32 s29, s36, {32*1152}"); a("s_add_u32 s28, s28, s29")
        a("s_add_u32 s20, s20, s28"); a("s_addc_u32 s21, s21, 0")
        a("s_add_u32 s62, s58, 32")
        late_addr("s59", "s62")
        a("s_and_b32 s61, s101, 15")
        gate_late("s61")
        a(f"s_setprio {cfg.prio_late}")
        stamp(7)
    if cfg.gu_late:
        assert cfg.Wl == 12
        Lg = lab("gul")
        w2_setup()
        iss()
        late_loads(20)
        a("s_waitcnt vmcnt(12)")
        chk()
        a(f"v_cmp_ne_u32 vcc, 0, v{TM}")
        a(f"s_cbranch_vccz {Lg}")
        if cfg.masked: a("s_mov_b64 exec, vcc")
        poll_loop(iss, chk, f"v{TM}", sleep=0)
        a.label(Lg)
    elif not cfg.x_nogu: poll_loop(iss, chk, f"v{TM}", sleep=cfg.sl_gu, pmax=cfg.pmax_gu)
    tag_strip(OA); tag_strip(OA + 4)
    for e in range(8): a(f"v_cndmask_b32_e64 v{OA+e}, 0, v{OA+e}, s[56:57]")
    allreduce_quad("v_add_f32", [f"v{OA+e}" for e in range(8)])
    OB2 = OA + 8
    for e in range(8): a(f"v_mov_b32_dpp v{OB2+e}, v{OA+e} row_half_mirror {DPP}")
    a("s_mov_b32 s56, 0xf0f0f0f0"); a("s_mov_b32 s57, 0xf0f0f0f0")
    a(f"s_mov_b32 s48, {hex(LOG2E)}")
    for e in range(8):
        g, u = TM, TM + 1
        a(f"v_cndmask_b32_e64 v{g}, v{OA+e}, v{OB2+e}, s[56:57]")
        a(f"v_cndmask_b32_e64 v{u}, v{OB2+e}, v{OA+e}, s[56:57]")
        a(f"v_cvt_pk_bf16_f32 v{g}, v{g}, v{u}")
        a(f"v_and_b32 v{u}, 0xffff0000, v{g}"); a(f"v_lshlrev_b32 v{g}, 16, v{g}")
        a(f"v_mul_f32 v{TM+2}, s48, v{g}"); a(f"v_exp_f32 v{TM+2}, -v{TM+2}"); a(f"v_add_f32 v{TM+2}, 1.0, v{TM+2}")
        a(f"v_rcp_f32 v{TM+3}, v{TM+2}")
        a(f"v_mul_f32 v{TM+4}, v{g}, v{TM+3}")
        a(f"v_fma_f32 v{TM+5}, -v{TM+4}, v{TM+2}, v{g}"); a(f"v_fmac_f32 v{TM+4}, v{TM+5}, v{TM+3}")
        a(f"v_cvt_pk_bf16_f32 v{TM+4}, v{TM+4}, v{TM+4}"); a(f"v_and_b32 v{TM+4}, 0xffff0000, v{TM+4}")
        a(f"v_mul_f32 v{TM+4}, v{TM+4}, v{u}")
        a(f"v_cvt_pk_bf16_f32 v{OA+e}, v{TM+4}, v{TM+4}")
    if not cfg.gu_late:
        w2_setup()
        late_loads(20)
    a("s_waitcnt vmcnt(0)")
    stamp(8)
    late_gemv()
    late_reduce(3)
    stamp(9)
    a("s_branch L_wts_done")

    a.label("L_final")
    a("s_cmp_ge_u32 s101, 36"); a("s_cbranch_scc1 L_wts_done")
    a("s_mul_i32 s28, s101, 10240"); a(f"s_add_u32 s28, s28, {WS_FIN}"); a("v_add_u32 v6, s28, v18")
    a("v_add_u32 v7, 4096, v6"); a("v_add_u32 v8, 8192, v6")
    a("s_and_b32 s28, s101, 1"); a("s_mul_i32 s28, s28, 576"); a("s_lshr_b32 s29, s101, 1"); a("s_lshl_b32 s29, s29, 5"); a("s_add_u32 s28, s28, s29")
    a("v_and_b32 v9, 31, v1"); a("v_add_u32 v9, s28, v9"); a("v_lshlrev_b32 v9, 1, v9")
    a("global_load_ushort v19, v9, s[4:5]")
    if cfg.fin_wait_v: spin_v()
    G = FD
    def iss():
        for t in range(6):
            base, off = (("v7", 1024*t) if t < 4 else ("v8", 1024*(t-4)))
            a(f"global_load_dwordx4 v[{G+4*t}:{G+4*t+3}], {base}, s[26:27] offset:{off} sc1")
    def chk():
        for t in range(6): tag_check(G + 4*t, "v17", f"v{TM}", f"v{TM+1}", f"v{TM+2}", t == 0)
    poll_loop(iss, chk, f"v{TM}", sleep=cfg.sl_fin)
    stamp(7)
    def reduce_slots(n, G=None):
        if G is None: G = FD
        for t in range(n): tag_strip(G + 4*t)
        for t in range(1, n):
            for e in (0, 2): a(f"v_pk_add_f32 v[{G+e}:{G+e+1}], v[{G+e}:{G+e+1}], v[{G+4*t+e}:{G+4*t+e+1}]")
        for e in range(4): a(f"v_add_f32_dpp v{G+e}, v{G+e}, v{G+e} row_ror:8 {DPP}")
        allreduce_x16_x32("v_add_f32", [f"v{G+e}" for e in range(4)], [f"v{G+4+e}" for e in range(4)])
        a(f"v_cndmask_b32_e64 v{G}, v{G}, v{G+1}, s[52:53]"); a(f"v_cndmask_b32_e64 v{G+2}, v{G+2}, v{G+3}, s[52:53]")
        a(f"v_cndmask_b32_e64 v{G}, v{G}, v{G+2}, s[54:55]")
    GA, GB = G + 24, G + 40
    def issx(b):
        for t in range(4): a(f"global_load_dwordx4 v[{b+4*t}:{b+4*t+3}], v6, s[26:27] offset:{1024*t} sc1")
    if cfg.fin2: issx(GA)
    reduce_slots(6)
    a(f"s_mov_b32 s48, {hex(LOG2E)}")
    a(f"v_cvt_pk_bf16_f32 v{G}, v{G}, v{G}"); a(f"v_and_b32 v{G}, 0xffff0000, v{G}")
    a(f"v_mul_f32 v{TM+2}, s48, v{G}"); a(f"v_exp_f32 v{TM+2}, -v{TM+2}"); a(f"v_add_f32 v{TM+2}, 1.0, v{TM+2}")
    a(f"v_rcp_f32 v{TM+3}, v{TM+2}"); a(f"v_mul_f32 v{TM+4}, v{G}, v{TM+3}")
    a(f"v_fma_f32 v{TM+5}, -v{TM+4}, v{TM+2}, v{G}"); a(f"v_fmac_f32 v{TM+4}, v{TM+5}, v{TM+3}")
    a(f"v_cvt_pk_bf16_f32 v{TM+4}, v{TM+4}, v{TM+4}"); a(f"v_and_b32 v20, 0xffff0000, v{TM+4}")
    a("v_lshlrev_b32 v19, 16, v19")
    def iss():
        for t in range(4):
            a(f"global_load_dwordx4 v[{G+4*t}:{G+4*t+3}], v6, s[26:27] offset:{1024*t} sc1")
    def chk():
        for t in range(4): tag_check(G + 4*t, "v17", f"v{TM}", f"v{TM+1}", f"v{TM+2}", t == 0)
    if cfg.fin2:
        def chkx(b):
            for t in range(4): tag_check(b + 4*t, "v17", f"v{TM}", f"v{TM+1}", f"v{TM+2}", t == 0)
            a(f"v_cmp_ne_u32 vcc, 0, v{TM}")
        Lp = lab("f2"); LA = lab("f2a"); LB = lab("f2b"); Lx = lab("f2x")
        a("s_mov_b32 s30, 0")
        a.label(Lp)
        issx(GB)
        a("s_waitcnt vmcnt(4)")
        chkx(GA); a(f"s_cbranch_vccz {LA}")
        issx(GA)
        a("s_waitcnt vmcnt(4)")
        chkx(GB); a(f"s_cbranch_vccz {LB}")
        a("s_add_u32 s30, s30, 1"); a(f"s_cmp_lt_u32 s30, {cfg.spin_max}"); a(f"s_cbranch_scc1 {Lp}")
        a.label(LB)
        stamp(8)
        reduce_slots(4, GB)
        a(f"v_mov_b32 v{TM+6}, v{GB}")
        a(f"s_branch {Lx}")
        a.label(LA)
        stamp(8)
        reduce_slots(4, GA)
        a(f"v_mov_b32 v{TM+6}, v{GA}")
        a.label(Lx)
        G = TM + 6
    else:
        poll_loop(iss, chk, f"v{TM}")
        stamp(8)
        reduce_slots(4)
    a(f"v_cvt_pk_bf16_f32 v{G}, v{G}, v{G}"); a(f"v_and_b32 v{G}, 0xffff0000, v{G}")
    a(f"v_mul_f32 v{G}, v{G}, v20"); a(f"v_cvt_pk_bf16_f32 v{G}, v{G}, v{G}"); a(f"v_and_b32 v{G}, 0xffff0000, v{G}")
    a(f"v_add_f32 v{G}, v19, v{G}"); a(f"v_cvt_pk_bf16_f32 v{G}, v{G}, v{G}")
    set_exec(0xffffffff, 0)
    a(f"global_store_short v9, v{G}, s[22:23]")
    a("s_mov_b64 exec, -1")
    a("s_cmp_lg_u32 s101, 0"); a("s_cbranch_scc1 L_wts_done")
    a(f"v_mov_b32 v{TM}, 0")
    a("s_mov_b64 exec, 1")
    a(f"global_store_dword v{TM}, v16, s[26:27]" + ("" if cfg.epoch_plain else " sc1"))
    a("s_mov_b64 exec, -1")
    a.label("L_wts_done")
    stamp(10)
    dump_stamps(12)
    a.label("L_end")
    a("s_endpgm")
    a.raw(".p2align 6")
    a.raw(".type L_roles,@object")
    a.label("L_roles")
    roles = make_roles(cfg)
    for c0 in range(0, 256, 8):
        a.raw("    .long " + ", ".join(hex(r[0] | r[1] << 8 | r[2] << 16 | r[3] << 24) for r in roles[c0:c0+8]))
    a.raw(".size L_roles, 1024")
    return a

HEADER = """; Fused decode step: LayerNorm -> (sliding-window GQA attention -> wo) * silu(SwiGLU FFN) + x.   gfx950 / MI355X
; word (d_ws[0] + 1), written with sc1 stores and polled with sc1 loads; every wait is bounded.
; @launch grid=(256,1,1) block=(768,1,1) lds=%d
.amdgcn_target "amdgcn-amd-amdhsa--gfx950"
.text
.globl %s
.p2align 8
.type %s,@function
"""
FOOTER = """.section .rodata,"a"
.p2align 6
.amdhsa_kernel %s
  .amdhsa_next_free_vgpr 168
  .amdhsa_next_free_sgpr 102
  .amdhsa_accum_offset 168
  .amdhsa_group_segment_fixed_size 0
  .amdhsa_kernarg_size 96
  .amdhsa_user_sgpr_count 2
  .amdhsa_user_sgpr_kernarg_segment_ptr 1
  .amdhsa_system_sgpr_workgroup_id_x 1
  .amdhsa_float_denorm_mode_32 3
.end_amdhsa_kernel
"""
def build(cfg):
    a = gen(cfg)
    lds = (LDS_END + 255) // 256 * 256
    return HEADER % (lds, KNAME, KNAME) + a.text() + FOOTER % KNAME

if __name__ == "__main__":
    out = sys.argv[1] if len(sys.argv) > 1 else "k.s"
    kw = eval(sys.argv[2]) if len(sys.argv) > 2 else {}
    open(out, "w").write(build(Cfg(**kw)))
```
